```python
import torch

def _softmax(x, axis=-1):
    return torch.softmax(x, dim=axis)
def _gelu(x):
    return torch.nn.functional.gelu(x, approximate="tanh")
def _silu(x):
    return torch.nn.functional.silu(x)
def _sigmoid(x):
    return torch.sigmoid(x)
def _layernorm(x, axis=-1, eps=1e-5):
    m = x.mean(dim=axis, keepdim=True)
    v = x.var(dim=axis, keepdim=True, unbiased=False)
    return (x - m) / torch.sqrt(v + eps)
def _scatter_add(tgt, idx, src, axis=0):
    return tgt.clone().index_add_(axis, idx, src)
def _segment_sum(src, seg, n):
    out = torch.zeros((n,) + src.shape[1:], dtype=src.dtype)
    return out.index_add_(0, seg, src)
def _pad(x, pw):
    flat = tuple(v for pair in reversed(pw) for v in pair)
    return torch.nn.functional.pad(x, flat)

kernel_name = 'standalone__moe_arch_mod__prompt'

def setup_inputs():

    _w = (lambda a: (lambda t: t.to(torch.bfloat16) if t.is_floating_point() else t)(torch.as_tensor(a)))
    B, S, D, F, C = 1, 2048, 576, 4608, 1
    return {
        "x": _w((lambda *s: torch.randn(*s, dtype=torch.bfloat16) * 0.1)(B, S, D)),
        "w_r": _w((lambda *s: torch.randn(*s, dtype=torch.bfloat16) * 0.1)(D)),
        "w_gate": _w((lambda *s: torch.randn(*s, dtype=torch.bfloat16) * 0.1)(D, F)),
        "w_up": _w((lambda *s: torch.randn(*s, dtype=torch.bfloat16) * 0.1)(D, F)),
        "w_down": _w((lambda *s: torch.randn(*s, dtype=torch.bfloat16) * 0.1)(F, D)),
    }

def reference(x, w_r, w_gate, w_up, w_down):
    B, S, D = x.shape
    C = 1
    r = x @ w_r
    idx = torch.argsort(-r, axis=-1)[:, :C]
    idx_e = (lambda x, n, axis: torch.repeat_interleave(x, n, dim=axis))(idx.reshape(B, C, 1), D, axis=2)
    x_sel = (lambda x, i, axis: torch.take_along_dim(x, i, dim=axis))(x, idx_e, axis=1)
    g = _silu(x_sel @ w_gate)
    u = x_sel @ w_up
    y = (g * u) @ w_down
    r_sel = _sigmoid((lambda x, i, axis: torch.take_along_dim(x, i, dim=axis))(r, idx, axis=1))
    y = y * r_sel.reshape(B, C, 1)
    b_off = (torch.arange(B) * S).reshape(B, 1)
    flat_idx = (idx + b_off).reshape(B * C)
    zero = (x * 0.0).reshape(B * S, D)
    upd = _scatter_add(zero, flat_idx, y.reshape(B * C, D), axis=0)
    return x + upd.reshape(B, S, D)
```

```python
import sys
STAMP = ('stamp' in sys.argv)
NAME = "standalone__moe_arch_mod__prompt"
NR = 64
NF = 144
NRED = 36
SENT = 0xFF800001
out = []
def e(s=""):
    out.append(s)
stampn = [0]
def stamp(slot):
    if STAMP:
        e(f"  s_memrealtime s[58:59]")
        e(f"  s_waitcnt lgkmcnt(0)")
        e(f"  s_mov_b32 s{60+slot}, s58")
def stamp_flush():
    if STAMP:
        e("  s_mov_b64 exec, -1")
        e("  s_mul_i32 s56, s2, 10")
        e("  s_add_u32 s56, s56, s3")
        e("  s_lshl_b32 s56, s56, 6")
        e("  s_add_u32 s56, s56, 0x100000")
        e("  s_getreg_b32 s75, hwreg(HW_REG_XCC_ID)")
        e("  s_getreg_b32 s74, hwreg(HW_REG_HW_ID)")
        e("  v_mov_b32 v120, s56")
        for i in range(16):
            e(f"  v_mov_b32 v121, s{60+i}")
            e(f"  global_store_dword v120, v121, s[18:19] offset:{4*i}")
            e("  s_nop 1")
        e("  s_waitcnt vmcnt(0)")

def wave_max_u32(v, s):
    for d in ["quad_perm:[1,0,3,2] row_mask:0xf", "quad_perm:[2,3,0,1] row_mask:0xf", "row_half_mirror row_mask:0xf",
              "row_mirror row_mask:0xf", "row_bcast:15 row_mask:0xa", "row_bcast:31 row_mask:0xc"]:
        e("  s_nop 1")
        e(f"  v_max_u32_dpp v{v}, v{v}, v{v} {d} bank_mask:0xf")
    e("  s_nop 0")
    e(f"  v_readlane_b32 s{s}, v{v}, 63")

e(f"; @launch grid=({NR+NF},1,1) block=(640,1,1) lds=8192")
e('.amdgcn_target "amdgcn-amd-amdhsa--gfx950"')
e(".text")
e(f".globl {NAME}_kernel")
e(".p2align 8")
e(f".type {NAME}_kernel,@function")
e(f"{NAME}_kernel:")
e("  s_load_dwordx16 s[4:19], s[0:1], 0")
if STAMP:
    for i in range(16): e(f"  s_mov_b32 s{60+i}, 0")
    e("  s_memrealtime s[58:59]")
e(f"  s_cmp_ge_u32 s2, {NR+NF}")
e("  s_cbranch_scc1 L_end")
e("  v_lshrrev_b32 v1, 6, v0")
e("  v_and_b32 v0, 63, v0")
e("  v_readfirstlane_b32 s3, v1")
e(f"  s_cmp_lt_u32 s2, {NR}")
e("  s_cbranch_scc1 L_router")
e(f"  s_sub_u32 s20, s2, {NR}")
e("  s_and_b32 s21, s20, 7")
e("  s_lshr_b32 s20, s20, 3")
e("  s_mul_i32 s21, s21, 18")
e("  s_add_u32 s20, s20, s21             ; slice 0..143")
e("  s_cmp_eq_u32 s3, 9")
e("  s_cbranch_scc1 L_fpoll")
e("  v_lshrrev_b32 v2, 3, v0             ; g")
e("  v_and_b32 v3, 7, v0                 ; chi")
e("  s_mul_i32 s22, s3, 64*9216")
e("  s_lshl_b32 s23, s20, 6")
e("  s_add_u32 s22, s22, s23")
e("  v_mul_u32_u24 v4, 8*9216, v2")
e("  v_and_b32 v5, 3, v3")
e("  v_lshlrev_b32 v5, 4, v5")
e("  v_add3_u32 v4, v4, v5, s22")
e("  v_mov_b32 v5, 0")
e("  s_mul_i32 s24, s20, 32*1152")
e("  s_lshl_b32 s25, s3, 7")
e("  s_add_u32 s24, s24, s25")
e("  v_mul_u32_u24 v6, 4*1152, v2")
e("  v_lshlrev_b32 v7, 4, v3")
e("  v_add3_u32 v6, v6, v7, s24")
e("  v_cmp_gt_u32 vcc, 4, v3")
e("  s_mov_b32 s22, 9216")
e("  s_mov_b32 s23, 0")
e("  s_waitcnt lgkmcnt(0)")
if STAMP:
    e("  s_mov_b32 s60, s58")
stamp(1)
e("  v_mov_b32 v56, s8")
e("  v_mov_b32 v57, s9")
e("  v_mov_b32 v58, s10")
e("  v_mov_b32 v59, s11")
e("  v_cndmask_b32 v56, v58, v56, vcc")
e("  v_cndmask_b32 v57, v59, v57, vcc")
e("  v_lshl_add_u64 v[4:5], v[4:5], 0, v[56:57]")
for i in range(8):
    e(f"  global_load_dwordx4 v[{8+4*i}:{11+4*i}], v[4:5], off")
    if i < 7:
        e("  v_lshl_add_u64 v[4:5], v[4:5], 0, s[22:23]")
for i in range(4):
    e(f"  global_load_dwordx4 v[{40+4*i}:{43+4*i}], v6, s[12:13] offset:{1152*i}")
stamp(2)
e("  v_and_b32 v4, 1, v3")
e("  v_lshlrev_b32 v4, 4, v4")
e("  v_mov_b32 v5, 0xffff")
e("  v_lshlrev_b32 v4, v4, v5            ; m")
e("  v_lshrrev_b32 v5, 1, v3             ; j>>1")
for r in range(4):
    e(f"  v_cmp_eq_u32 vcc, {r}, v5")
    e("  s_nop 1")
    e(f"  v_cndmask_b32 v{56+r}, 0, v4, vcc")
e("  v_mov_b32 v4, 0x0c0c0c0c")
e("  s_mov_b32 s26, 0x01000100")
e("  s_mov_b32 s27, 0x03020302")
for r in range(4):
    e(f"  v_bfi_b32 v{60+r}, v{56+r}, s26, v4")
    e(f"  v_bfi_b32 v{64+r}, v{56+r}, s27, v4")
e("  v_lshlrev_b32 v4, 4, v2")
e("  s_lshl_b32 s25, s3, 7")
e("  v_add_u32 v4, s25, v4")
e("  v_and_b32 v5, 3, v0                 ; cc")
e("  v_lshlrev_b32 v5, 4, v5             ; 16cc")
e("  v_bfe_u32 v7, v0, 4, 1              ; qd'")
e("  v_lshl_add_u32 v5, v7, 3, v5")
e("  v_and_b32 v7, 4, v0                 ; 4mat")
e("  v_add_u32 v5, v5, v7")
e("  v_lshrrev_b32 v7, 5, v0             ; upper")
e("  v_lshl_add_u32 v5, v7, 1, v5        ; row")
e("  v_mul_u32_u24 v5, 48, v5")
e("  s_lshl_b32 s25, s3, 2")
e("  s_add_u32 s25, s25, 2048")
e("  v_add_u32 v5, s25, v5")
e("  v_mul_u32_u24 v7, 48, v0")
e("  v_add_u32 v7, 2048, v7")
e("  v_bfe_u32 v92, v0, 4, 1")
e("  v_bfe_u32 v93, v0, 2, 1")
e("  v_lshl_add_u32 v92, v92, 1, v93     ; qd*2+a")
e(f"  v_mul_u32_u24 v92, {NF*64}, v92")
e("  v_and_b32 v93, 3, v0")
e("  v_lshl_add_u32 v92, v93, 4, v92")
e(f"  s_mul_i32 s25, s3, {4*NF*64}")
e("  s_lshl_b32 s26, s20, 6")
e("  s_add_u32 s25, s25, s26")
e("  v_add_u32 v92, s25, v92")
e("  s_mov_b32 s28, 0x00ff00ff           ; lanes n<8")
e("  s_mov_b32 s29, 0x00ff00ff")
e("  s_mov_b32 s30, 0x00ff00ff           ; lanes n<8, l<32")
e("  s_mov_b32 s31, 0")
e("  s_mov_b32 s32, 0xbfb8aa3b           ; -log2e")
stamp(3)
e("  s_barrier")
stamp(4)
e("  ds_read_b128 v[68:71], v4")
e("  s_waitcnt lgkmcnt(0)")
def perms(i):
    base = 72 + 4*(i % 4)
    for r in range(4):
        e(f"  v_perm_b32 v{base+r}, v{68+(i>>1)}, v{68+(i>>1)}, v{60+4*(i&1)+r}")
perms(0)
for i in range(8):
    if i < 7: perms(i+1)
    else: e("  s_nop 1")
    e(f"  s_waitcnt vmcnt({11-i})")
    base = 72 + 4*(i % 4)
    c = "0" if i == 0 else "v[88:91]"
    e(f"  v_mfma_f32_16x16x32_bf16 v[88:91], v[{base}:{base+3}], v[{8+4*i}:{11+4*i}], {c}")
e("  s_nop 7")
e("  v_permlane32_swap_b32 v88, v90")
e("  v_permlane32_swap_b32 v89, v91")
e("  s_nop 1")
e("  v_add_f32_dpp v88, v90, v88 row_ror:8 row_mask:0xf bank_mask:0xf")
e("  v_add_f32_dpp v89, v91, v89 row_ror:8 row_mask:0xf bank_mask:0xf")
e("  s_mov_b64 exec, s[28:29]")
e("  ds_write2_b32 v5, v88, v89 offset0:0 offset1:12")
e("  s_mov_b64 exec, -1")
e("  s_waitcnt lgkmcnt(0)")
stamp(5)
e("  s_barrier")
e("  ds_read_b128 v[8:11], v7")
e("  ds_read_b128 v[12:15], v7 offset:16")
e("  ds_read_b32 v16, v7 offset:32")
e("  s_waitcnt lgkmcnt(1)")
e("  v_add_f32 v8, v8, v9")
e("  v_add_f32 v10, v10, v11")
e("  v_add_f32 v12, v12, v13")
e("  v_add_f32 v14, v14, v15")
e("  v_add_f32 v8, v8, v10")
e("  v_add_f32 v12, v12, v14")
e("  s_waitcnt lgkmcnt(0)")
e("  v_add_f32 v8, v8, v16")
e("  v_add_f32 v8, v8, v12")
e("  v_cvt_pk_bf16_f32 v8, v8, v8")
e("  v_lshlrev_b32 v8, 16, v8")
e("  v_mov_b32 v9, v8")
e("  s_nop 1")
e("  v_mov_b32_dpp v9, v8 row_shl:4 row_mask:0xf bank_mask:0x5   ; U")
e("  v_mov_b32_dpp v8, v8 row_shr:4 row_mask:0xf bank_mask:0xa   ; G")
e("  v_mul_f32 v10, s32, v8")
e("  v_exp_f32 v10, v10")
e("  s_nop 0")
e("  v_add_f32 v10, 1.0, v10")
e("  v_rcp_f32 v10, v10")
e("  s_nop 0")
e("  v_mul_f32 v10, v8, v10")
e("  v_cvt_pk_bf16_f32 v10, v10, v10")
e("  v_lshlrev_b32 v10, 16, v10")
e("  v_mul_f32 v10, v10, v9")
e("  v_cvt_pk_bf16_f32 v10, v10, v10     ; hdup")
e("  s_nop 1")
for i in range(4):
    for r in range(4):
        e(f"  v_and_b32_dpp v{72+4*i+r}, v10, v{56+r} quad_perm:[{i},{i},{i},{i}] row_mask:0xf bank_mask:0xf")
e("  s_nop 1")
for i in range(4):
    e(f"  s_waitcnt vmcnt({3-i})")
    c = "0" if i == 0 else "v[88:91]"
    e(f"  v_mfma_f32_16x16x32_bf16 v[88:91], v[{72+4*i}:{75+4*i}], v[{40+4*i}:{43+4*i}], {c}")
e("  s_nop 7")
for r in range(4):
    e(f"  v_permlane32_swap_b32 v{88+r}, v{12+r}")
e("  s_nop 1")
for r in range(4):
    e(f"  v_add_f32_dpp v{88+r}, v{12+r}, v{88+r} row_ror:8 row_mask:0xf bank_mask:0xf")
e("  s_mov_b64 exec, s[30:31]")
e("  global_store_dwordx4 v92, v[88:91], s[18:19] sc0 sc1")
stamp(6)
if STAMP:
    e("  s_waitcnt vmcnt(0)")
    stamp(7)
stamp_flush()
e("  s_endpgm")
e("L_fpoll:")
e("  v_lshlrev_b32 v2, 2, v0")
e("  v_lshlrev_b32 v3, 4, v0")
e("  s_waitcnt lgkmcnt(0)")
if STAMP:
    e("  s_mov_b32 s60, s58")
    e("  s_mov_b32 s72, 0")
stamp(1)
e("  s_mov_b32 s57, 0")
e("L_fpoll_loop:")
e("  s_add_u32 s57, s57, 1")
e("  s_cmp_gt_u32 s57, 0x40000")
e("  s_cbranch_scc1 L_fpoll_out")
e("  global_load_dword v4, v2, s[16:17] sc0 sc1")
if STAMP: e("  s_add_u32 s72, s72, 1")
e("  s_waitcnt vmcnt(0)")
e("  v_cmp_ne_u32 vcc, 0, v4")
e("  s_cmp_eq_u64 vcc, -1")
e("  s_cbranch_scc0 L_fpoll_loop")
e("L_fpoll_out:")
stamp(2)
wave_max_u32(4, 24)
e("  s_and_b32 s25, s24, 0x7ff")
e("  s_sub_u32 s25, 2047, s25            ; idx")
e("  s_mul_i32 s25, s25, 1152")
e("  v_add_u32 v5, s25, v3")
e("  global_load_dwordx4 v[8:11], v5, s[4:5]")
e("  s_mov_b64 exec, 0xff")
e("  global_load_dwordx4 v[12:15], v5, s[4:5] offset:1024")
e("  s_mov_b64 exec, -1")
e("  s_waitcnt vmcnt(1)")
e("  ds_write_b128 v3, v[8:11]")
e("  s_mov_b64 exec, 0xff")
e("  s_waitcnt vmcnt(0)")
e("  ds_write_b128 v3, v[12:15] offset:1024")
e("  s_waitcnt lgkmcnt(0)")
stamp(3)
e("  s_barrier")
stamp_flush()
e("  s_endpgm")
e("L_router:")
e("  v_mul_u32_u24 v7, 48, v0")
e("  s_cmp_eq_u32 s3, 9")
e("  s_cbranch_scc1 L_rbar")
e("  v_lshrrev_b32 v2, 4, v0             ; q")
e("  v_and_b32 v3, 15, v0                ; n")
e("  s_lshl_b32 s22, s3, 7")
e("  v_lshl_add_u32 v4, v2, 4, s22       ; w_r off = 128w+16q")
e("  s_mul_i32 s23, s2, 32*1152")
e("  v_mul_u32_u24 v5, 1152, v3")
e("  v_add3_u32 v5, v5, v4, s23")
e("  v_add_u32 v6, 16*1152, v5")
e(f"  s_mul_i32 s24, s2, {NF*64}")
e("  s_lshl_b32 s25, s3, 10")
e("  s_add_u32 s24, s24, s25")
e("  v_lshl_add_u32 v40, v0, 4, s24")
e(f"  v_mov_b32 v44, {SENT:#x}")
e("  v_mov_b32 v45, v44")
e("  v_mov_b32 v46, v44")
e("  v_mov_b32 v47, v44")
e("  s_waitcnt lgkmcnt(0)")
if STAMP:
    e("  s_mov_b32 s60, s58")
stamp(1)
e("  global_load_dwordx4 v[16:19], v5, s[4:5]")
e("  global_load_dwordx4 v[20:23], v5, s[4:5] offset:64")
e("  global_load_dwordx4 v[24:27], v6, s[4:5]")
e("  global_load_dwordx4 v[28:31], v6, s[4:5] offset:64")
e("  global_load_dwordx4 v[8:11], v4, s[6:7]")
e("  global_load_dwordx4 v[12:15], v4, s[6:7] offset:64")
e(f"  s_cmp_ge_u32 s2, {NRED}")
e("  s_cbranch_scc1 L_noclear")
e("  global_store_dwordx4 v40, v[44:47], s[18:19] sc0 sc1")
e("L_noclear:")
e("  s_lshl_b32 s25, s3, 2")
e("  v_add_u32 v41, s25, v7")
e("  v_cmp_eq_u32 vcc, 0, v2")
e("  s_waitcnt vmcnt(0)")
stamp(2)
e("  v_mfma_f32_16x16x32_bf16 v[32:35], v[8:11], v[16:19], 0")
e("  v_mfma_f32_16x16x32_bf16 v[36:39], v[8:11], v[24:27], 0")
e("  v_mfma_f32_16x16x32_bf16 v[32:35], v[12:15], v[20:23], v[32:35]")
e("  v_mfma_f32_16x16x32_bf16 v[36:39], v[12:15], v[28:31], v[36:39]")
e("  s_nop 7")
e("  v_cndmask_b32 v32, v36, v32, vcc")
e("  s_mov_b32 exec_hi, 0")
e("  ds_write_b32 v41, v32")
e("  s_mov_b64 exec, -1")
e("L_rbar:")
e("  s_waitcnt lgkmcnt(0)")
if STAMP:
    e("  s_cmp_eq_u32 s3, 9")
    e("  s_cselect_b32 s60, s58, s60")
e("  s_barrier")
stamp(3)
e("  v_and_b32 v42, 31, v0")
e("  v_mul_u32_u24 v43, 48, v42")
e("  ds_read_b128 v[32:35], v43")
e("  ds_read_b128 v[36:39], v43 offset:16")
e("  ds_read_b32 v48, v43 offset:32")
e("  s_lshl_b32 s22, s2, 5")
e("  s_sub_u32 s22, 0x8000+2047, s22")
e("  v_sub_u32 v42, s22, v42             ; 0x8000 | (2047-idx)")
e("  s_waitcnt lgkmcnt(1)")
e("  v_add_f32 v32, v32, v33")
e("  v_add_f32 v34, v34, v35")
e("  v_add_f32 v36, v36, v37")
e("  v_add_f32 v38, v38, v39")
e("  v_add_f32 v32, v32, v34")
e("  v_add_f32 v36, v36, v38")
e("  s_waitcnt lgkmcnt(0)")
e("  v_add_f32 v32, v32, v48")
e("  v_add_f32 v32, v32, v36")
e("  v_cmp_o_f32 vcc, v32, v32")
e("  v_cvt_pk_bf16_f32 v33, v32, v32")
e("  v_ashrrev_i32 v34, 31, v33")
e("  v_or_b32 v34, 0x80000000, v34")
e("  v_xor_b32 v33, v33, v34")
e("  v_cndmask_b32 v33, 0, v33, vcc")
e("  v_and_b32 v33, 0xffff0000, v33")
e("  v_or_b32 v33, v33, v42")
wave_max_u32(33, 24)
e("  s_cmp_eq_u32 s3, 9")
e("  s_cbranch_scc0 L_rcopy")
e("  s_lshl_b32 s22, s2, 2")
e("  v_mov_b32 v2, s22")
e("  v_mov_b32 v3, s24")
e("  s_mov_b64 exec, 1")
e("  global_store_dword v2, v3, s[16:17] sc0 sc1")
e("  s_mov_b64 exec, -1")
stamp(4)
e("  v_lshlrev_b32 v2, 2, v0")
e("  s_mov_b32 s57, 0")
e("L_rpoll_loop:")
e("  s_add_u32 s57, s57, 1")
e("  s_cmp_gt_u32 s57, 0x40000")
e("  s_cbranch_scc1 L_rpoll_out")
e("  global_load_dword v4, v2, s[16:17] sc0 sc1")
e("  s_waitcnt vmcnt(0)")
e("  v_cmp_ne_u32 vcc, 0, v4")
e("  s_cmp_eq_u64 vcc, -1")
e("  s_cbranch_scc0 L_rpoll_loop")
e("L_rpoll_out:")
stamp(5)
wave_max_u32(4, 26)
e("  s_nop 1")
e("  v_mov_b32 v4, s26")
e("  v_mov_b32 v5, 4096")
e("  ds_write_b32 v5, v4")
e("  s_waitcnt lgkmcnt(0)")
e("  s_barrier")
stamp_flush()
e("  s_endpgm")
e("L_rcopy:")
e("  s_mov_b32 s30, 0xffff0000")
e("  s_mov_b32 s31, 0x07060302")
for d in range(16, 32):
    e(f"  v_lshlrev_b32 v32, 16, v{d}")
    e(f"  v_and_b32 v33, s30, v{d}")
    e("  v_fma_f32 v32, v32, 0, v32")
    e("  v_fma_f32 v33, v33, 0, v33")
    e(f"  v_perm_b32 v{d}, v33, v32, s31")
e("  s_and_b32 s25, s24, 31")
e("  s_sub_u32 s25, 31, s25")
e("  s_sub_u32 s27, s25, 16")
e("  v_cmp_ne_u32 s[34:35], s25, v3")
e("  v_cmp_ne_u32 s[36:37], s27, v3")
e("  s_mov_b64 exec, s[34:35]")
e("  global_store_dwordx4 v5, v[16:19], s[14:15]")
e("  global_store_dwordx4 v5, v[20:23], s[14:15] offset:64")
e("  s_mov_b64 exec, s[36:37]")
e("  global_store_dwordx4 v6, v[24:27], s[14:15]")
e("  global_store_dwordx4 v6, v[28:31], s[14:15] offset:64")
e("  s_mov_b64 exec, -1")
stamp(4)
e("  s_barrier")
stamp(5)
e("  v_mov_b32 v32, 4096")
e("  ds_read_b32 v32, v32")
e("  s_waitcnt lgkmcnt(0)")
e("  v_readfirstlane_b32 s26, v32")
e("  s_cmp_eq_u32 s26, s24")
e("  s_cbranch_scc1 L_skipcand")
e("  s_not_b64 exec, s[34:35]")
e("  s_cbranch_execz L_c1")
e("  global_store_dwordx4 v5, v[16:19], s[14:15]")
e("  global_store_dwordx4 v5, v[20:23], s[14:15] offset:64")
e("L_c1:")
e("  s_not_b64 exec, s[36:37]")
e("  s_cbranch_execz L_c2")
e("  global_store_dwordx4 v6, v[24:27], s[14:15]")
e("  global_store_dwordx4 v6, v[28:31], s[14:15] offset:64")
e("L_c2:")
e("  s_mov_b64 exec, -1")
e("L_skipcand:")
e(f"  s_cmp_ge_u32 s2, {NRED}")
e("  s_cbranch_scc1 L_rend")
e("  s_and_b32 s25, s26, 0x7ff")
e("  s_sub_u32 s25, 2047, s25")
e("  s_mul_i32 s25, s25, 1152")
e("  s_lshr_b32 s27, s2, 2")
e("  s_lshl_b32 s27, s27, 7")
e("  s_add_u32 s25, s25, s27")
e("  s_and_b32 s27, s2, 1")
e("  s_lshl_b32 s27, s27, 6")
e("  s_add_u32 s25, s25, s27")
e("  s_and_b32 s27, s2, 2")
e("  s_lshl_b32 s27, s27, 2")
e("  s_add_u32 s25, s25, s27")
e("  v_lshrrev_b32 v50, 2, v3")
e("  v_and_b32 v51, 3, v3")
e("  v_lshlrev_b32 v51, 1, v51")
e("  v_lshl_add_u32 v50, v50, 4, v51")
e("  v_add_u32 v50, s25, v50")
e("  global_load_ushort v51, v50, s[4:5]")
e("  s_and_b32 s27, s26, 0xffff0000")
e("  s_ashr_i32 s28, s27, 31")
e("  s_not_b32 s28, s28")
e("  s_or_b32 s28, s28, 0x80000000")
e("  s_xor_b32 s27, s27, s28")
e("  s_and_b32 s27, s27, 0xffff0000      ; r as f32")
e("  v_mov_b32 v52, 0xbfb8aa3b")
e("  v_mul_f32 v52, s27, v52")
e("  v_exp_f32 v52, v52")
e("  s_nop 0")
e("  v_add_f32 v52, 1.0, v52")
e("  v_rcp_f32 v52, v52")
e("  s_nop 0")
e("  v_cvt_pk_bf16_f32 v52, v52, v52")
e("  v_lshlrev_b32 v52, 16, v52          ; r_sel")
e("  v_mul_u32_u24 v53, 4*48, v0")
e("  s_lshl_b32 s27, s3, 2")
e("  s_add_u32 s27, s27, 5120")
e("  v_add_u32 v53, s27, v53")
e("  v_mul_u32_u24 v54, 48, v3")
e("  v_add_u32 v54, 5120, v54")
stamp(6)
if STAMP: e("  s_mov_b32 s72, 0")
e("  s_mov_b32 s57, 0")
e("L_red_loop:")
e("  s_add_u32 s57, s57, 1")
e("  s_cmp_gt_u32 s57, 0x40000")
e("  s_cbranch_scc1 L_red_out")
e("  global_load_dwordx4 v[32:35], v40, s[18:19] sc0 sc1")
if STAMP: e("  s_add_u32 s72, s72, 1")
e("  s_waitcnt vmcnt(0)")
e("  v_cmp_ne_u32 s[28:29], v32, v44")
e("  v_cmp_ne_u32 s[30:31], v33, v44")
e("  v_cmp_ne_u32 s[32:33], v34, v44")
e("  v_cmp_ne_u32 vcc, v35, v44")
e("  s_and_b64 s[28:29], s[28:29], s[30:31]")
e("  s_and_b64 s[32:33], s[32:33], vcc")
e("  s_and_b64 s[28:29], s[28:29], s[32:33]")
e("  s_cmp_eq_u64 s[28:29], -1")
e("  s_cbranch_scc0 L_red_loop")
e("L_red_out:")
stamp(7)
for d in ["row_ror:4", "row_ror:8"]:
    for r in range(4):
        e(f"  v_add_f32_dpp v{32+r}, v{32+r}, v{32+r} {d} row_mask:0xf bank_mask:0xf")
for r in range(4):
    e(f"  v_mov_b32 v{36+r}, v{32+r}")
e("  s_nop 0")
for r in range(4):
    e(f"  v_permlane16_swap_b32 v{32+r}, v{36+r}")
for r in range(4):
    e(f"  v_add_f32 v{32+r}, v{32+r}, v{36+r}")
for r in range(4):
    e(f"  v_mov_b32 v{36+r}, v{32+r}")
e("  s_nop 0")
for r in range(4):
    e(f"  v_permlane32_swap_b32 v{32+r}, v{36+r}")
for r in range(4):
    e(f"  v_add_f32 v{32+r}, v{32+r}, v{36+r}")
e("  s_mov_b64 exec, 0xf")
e("  ds_write2_b32 v53, v32, v33 offset0:0 offset1:12")
e("  ds_write2_b32 v53, v34, v35 offset0:24 offset1:36")
e("  s_mov_b64 exec, -1")
e("  s_waitcnt lgkmcnt(0)")
e("  s_barrier")
e("  s_cmp_lg_u32 s3, 0")
e("  s_cbranch_scc1 L_rend")
e("  ds_read_b128 v[32:35], v54")
e("  ds_read_b128 v[36:39], v54 offset:16")
e("  ds_read_b32 v48, v54 offset:32")
e("  v_lshlrev_b32 v51, 16, v51")
e("  s_waitcnt lgkmcnt(1)")
e("  v_add_f32 v32, v32, v33")
e("  v_add_f32 v34, v34, v35")
e("  v_add_f32 v36, v36, v37")
e("  v_add_f32 v38, v38, v39")
e("  v_add_f32 v32, v32, v34")
e("  v_add_f32 v36, v36, v38")
e("  s_waitcnt lgkmcnt(0)")
e("  v_add_f32 v32, v32, v48")
e("  v_add_f32 v32, v32, v36")
e("  v_cvt_pk_bf16_f32 v32, v32, v32")
e("  v_lshlrev_b32 v32, 16, v32          ; y bf16")
e("  v_mul_f32 v32, v32, v52")
e("  v_cvt_pk_bf16_f32 v32, v32, v32")
e("  v_lshlrev_b32 v32, 16, v32")
e("  v_fma_f32 v32, v51, 0, v32          ; upd = x*0 + y")
e("  v_add_f32 v32, v51, v32")
e("  v_cvt_pk_bf16_f32 v32, v32, v32")
e("  s_mov_b64 exec, 0xffff")
e("  global_store_short v50, v32, s[14:15]")
stamp(8)
e("L_rend:")
stamp_flush()
e("L_end:")
e("  s_endpgm")
e('.section .rodata,"a"')
e(".p2align 6")
e(f".amdhsa_kernel {NAME}_kernel")
e(f"  .amdhsa_next_free_vgpr {128 if STAMP else 96}")
e("  .amdhsa_next_free_sgpr 80")
e(f"  .amdhsa_accum_offset {128 if STAMP else 96}")
e("  .amdhsa_group_segment_fixed_size 0")
e("  .amdhsa_kernarg_size 64")
e("  .amdhsa_user_sgpr_count 2")
e("  .amdhsa_user_sgpr_kernarg_segment_ptr 1")
e("  .amdhsa_system_sgpr_workgroup_id_x 1")
e("  .amdhsa_float_denorm_mode_32 3")
e(".end_amdhsa_kernel")
print("\n".join(out))
```

```python
import sys
opts = dict(stamp=0, xf="", guf="", dnf="", pff="", cpf="sc1", rev=1, pf=1, early_dn=0, setup_first=0)
for a in sys.argv[1:]:
    k, _, v = a.partition("=")
    if k not in opts: raise SystemExit("bad opt " + k)
    opts[k] = int(v) if isinstance(opts[k], int) else v.replace("+", " ")
STAMP = opts["stamp"]
NAME = "standalone__moe_arch_mod__prompt"
NR, NF, NH, NRED = 64, 144, 48, 36
NWG = NR + NF + NH
SENT = 0xFF800001
SPIN = 0x40000
out = []
e = out.append
def stamp(slot):
    if STAMP:
        e("  s_memrealtime s[58:59]")
        e("  s_waitcnt lgkmcnt(0)")
        e(f"  s_mov_b32 s{60+slot}, s58")
def fin():
    if STAMP: e("  s_branch L_flush")
    else: e("  s_endpgm")
def wave_max_u32(v, s):
    for d in ["quad_perm:[1,0,3,2] row_mask:0xf", "quad_perm:[2,3,0,1] row_mask:0xf", "row_half_mirror row_mask:0xf",
              "row_mirror row_mask:0xf", "row_bcast:15 row_mask:0xa", "row_bcast:31 row_mask:0xc"]:
        e("  s_nop 1")
        e(f"  v_max_u32_dpp v{v}, v{v}, v{v} {d} bank_mask:0xf")
    e("  s_nop 0")
    e(f"  v_readlane_b32 s{s}, v{v}, 63")
def poll_keys(tag, vaddr, vd, sdst):
    e("  s_mov_b32 s57, 0")
    e(f"L_{tag}_loop:")
    e(f"  global_load_dword v{vd}, v{vaddr}, s[16:17] sc1")
    e("  s_add_u32 s57, s57, 1")
    e(f"  s_cmp_gt_u32 s57, {SPIN}")
    e(f"  s_cbranch_scc1 L_{tag}_out")
    e("  s_waitcnt vmcnt(0)")
    e(f"  v_cmp_ne_u32 vcc, 0, v{vd}")
    e("  s_cmp_eq_u64 vcc, -1")
    e(f"  s_cbranch_scc0 L_{tag}_loop")
    e(f"L_{tag}_out:")
    e("  s_waitcnt vmcnt(0)")
    if STAMP: e("  s_mov_b32 s72, s57")

e(f"; @launch grid=({NWG},1,1) block=(640,1,1) lds=8192")
e('.amdgcn_target "amdgcn-amd-amdhsa--gfx950"')
e(".text")
e(f".globl {NAME}_kernel")
e(".p2align 8")
e(f".type {NAME}_kernel,@function")
e(f"{NAME}_kernel:")
e("  s_load_dwordx16 s[4:19], s[0:1], 0")
if STAMP:
    e("  s_memrealtime s[76:77]")
    for i in range(16): e(f"  s_mov_b32 s{60+i}, 0")
e("  v_lshrrev_b32 v1, 6, v0")
e("  v_and_b32 v0, 63, v0")
e("  v_readfirstlane_b32 s3, v1")
e("  v_lshrrev_b32 v2, 3, v0             ; g")
e("  v_and_b32 v3, 7, v0                 ; chi")
e("  s_and_b32 s21, s2, 7")
e(f"  s_cmp_ge_u32 s2, {NR}")
e("  s_cbranch_scc1 L_notrouter")
e("  s_lshl_b32 s22, s3, 7")
e("  v_lshl_add_u32 v4, v3, 4, s22")
e("  s_mul_i32 s23, s2, 32*1152")
e("  v_mul_u32_u24 v5, 4*1152, v2")
e("  v_add3_u32 v5, v5, v4, s23")
e(f"  s_mul_i32 s24, s2, {NF*64}")
e("  s_lshl_b32 s25, s3, 10")
e("  s_add_u32 s24, s24, s25")
e("  v_lshl_add_u32 v40, v0, 4, s24")
e(f"  v_mov_b32 v44, {SENT:#x}")
e("  v_mov_b32 v45, v44")
e("  v_mov_b32 v46, v44")
e("  v_mov_b32 v47, v44")
e("  s_cmp_eq_u32 s3, 9")
e("  s_cbranch_scc1 L_rw9")
e("  s_waitcnt lgkmcnt(0)")
stamp(1)
for i in range(4):
    e(f"  global_load_dwordx4 v[{16+4*i}:{19+4*i}], v5, s[4:5] offset:{1152*i} {opts['xf']}")
e("  global_load_dwordx4 v[8:11], v4, s[6:7]")
e(f"  s_cmp_ge_u32 s2, {NRED}")
e("  s_cbranch_scc1 L_noclear")
e("  global_store_dwordx4 v40, v[44:47], s[18:19] sc1")
e("L_noclear:")
e("  s_lshl_b32 s25, s3, 2")
e("  v_mul_u32_u24 v41, 4*48, v2")
e("  v_add_u32 v41, s25, v41")
e(f"  s_mul_i32 s26, s21, {576*1152}")
e("  s_lshr_b32 s27, s2, 3")
e("  s_mul_i32 s27, s27, 9")
e("  s_add_u32 s27, s27, s3")
e("  s_lshl_b32 s27, s27, 12")
e("  s_add_u32 s26, s26, s27")
e(f"  s_add_u32 s26, s26, {360*1024}")
e("  v_lshl_add_u32 v42, v0, 4, s26")
e("  v_lshlrev_b32 v43, 2, v0")
e("  s_mov_b32 s28, 0x01010101")
e("  s_mov_b32 s29, 0x01010101")
e("  s_waitcnt vmcnt(0)")
stamp(2)
for d in range(4):
    for i in range(4):
        c = "0" if d == 0 else f"v{32+i}"
        e(f"  v_dot2_f32_bf16 v{32+i}, v{16+4*i+d}, v{8+d}, {c}")
e("  s_nop 0")
for dp in ["quad_perm:[1,0,3,2]", "quad_perm:[2,3,0,1]", "row_half_mirror"]:
    for i in range(4):
        e(f"  v_add_f32_dpp v{32+i}, v{32+i}, v{32+i} {dp} row_mask:0xf bank_mask:0xf")
e("  s_mov_b64 exec, s[28:29]")
e("  ds_write2_b32 v41, v32, v33 offset0:0 offset1:12")
e("  ds_write2_b32 v41, v34, v35 offset0:24 offset1:36")
e("  s_mov_b64 exec, -1")
e("  s_waitcnt lgkmcnt(0)")
e("  s_barrier                           ; A")
stamp(3)
e("  s_mov_b32 s30, 0xffff0000")
e("  s_mov_b32 s31, 0x07060302")
for d in range(16, 32):
    e(f"  v_lshlrev_b32 v32, 16, v{d}")
    e(f"  v_and_b32 v33, s30, v{d}")
    e("  v_fma_f32 v32, v32, 0, v32")
    e("  v_fma_f32 v33, v33, 0, v33")
    e(f"  v_perm_b32 v{d}, v33, v32, s31")
e("  s_barrier")
if opts["pf"]:
    for i in range(4):
        e(f"  global_load_dwordx4 v[{48+4*i}:{51+4*i}], v42, s[12:13] offset:{1024*i} {opts['pff']}")
    e("  s_waitcnt vmcnt(0)")
stamp(4)
e("  s_barrier")
e("  s_barrier")
stamp(5)
e("  v_mov_b32 v32, 4096")
e("  ds_read_b32 v32, v32")
e("  v_lshlrev_b32 v33, 2, v2            ; 4g")
e("  s_waitcnt lgkmcnt(0)")
e("  v_sub_u32 v32, v32, v33")
for i in range(4):
    e(f"  v_cmp_ne_u32 vcc, {i}, v32")
    e("  s_mov_b64 exec, vcc")
    e(f"  global_store_dwordx4 v5, v[{16+4*i}:{19+4*i}], s[14:15] offset:{1152*i} {opts['cpf']}")
    e("  s_mov_b64 exec, -1")
stamp(6)
if STAMP:
    e("  s_waitcnt vmcnt(0)")
    stamp(7)
fin()
e("L_rw9:")
e("  v_and_b32 v42, 31, v0")
e("  v_mul_u32_u24 v43, 48, v42")
e("  s_lshl_b32 s22, s2, 5")
e("  s_sub_u32 s22, 0x8000+2047, s22")
e("  v_sub_u32 v42, s22, v42             ; 0x8000 | (2047-idx)")
e("  s_lshl_b32 s22, s2, 2")
e("  v_mov_b32 v6, s22")
e("  v_lshlrev_b32 v7, 2, v0")
e("  s_setprio 3")
e("  s_waitcnt lgkmcnt(0)")
e("  s_barrier                           ; A")
stamp(3)
e("  ds_read_b128 v[32:35], v43")
e("  ds_read_b128 v[36:39], v43 offset:16")
e("  ds_read_b32 v48, v43 offset:32")
e("  s_waitcnt lgkmcnt(1)")
e("  v_add_f32 v32, v32, v33")
e("  v_add_f32 v34, v34, v35")
e("  v_add_f32 v36, v36, v37")
e("  v_add_f32 v38, v38, v39")
e("  v_add_f32 v32, v32, v34")
e("  v_add_f32 v36, v36, v38")
e("  s_waitcnt lgkmcnt(0)")
e("  v_add_f32 v32, v32, v48")
e("  v_add_f32 v32, v32, v36")
e("  v_cmp_o_f32 vcc, v32, v32")
e("  v_cvt_pk_bf16_f32 v33, v32, v32")
e("  v_ashrrev_i32 v34, 31, v33")
e("  v_or_b32 v34, 0x80000000, v34")
e("  v_xor_b32 v33, v33, v34")
e("  v_cndmask_b32 v33, 0, v33, vcc")
e("  v_and_b32 v33, 0xffff0000, v33")
e("  v_or_b32 v33, v33, v42")
for d in ["quad_perm:[1,0,3,2] row_mask:0xf", "quad_perm:[2,3,0,1] row_mask:0xf", "row_half_mirror row_mask:0xf",
          "row_mirror row_mask:0xf", "row_bcast:15 row_mask:0xa"]:
    e("  s_nop 1")
    e(f"  v_max_u32_dpp v33, v33, v33 {d} bank_mask:0xf")
e("  s_mov_b32 exec_lo, 0x80000000")
e("  s_mov_b32 exec_hi, 0")
e("  global_store_dword v6, v33, s[16:17] sc1")
e("  s_mov_b64 exec, -1")
stamp(4)
e("  s_barrier                           ; B")
if STAMP:
    e("  s_waitcnt vmcnt(0)")
    stamp(5)
e("  s_barrier                           ; C")
poll_keys("rp", 7, 4, 26)
stamp(6)
wave_max_u32(4, 26)
e("  s_and_b32 s26, s26, 0x7ff")
e("  s_sub_u32 s26, 2047, s26")
e("  s_lshl_b32 s27, s2, 5")
e("  s_sub_u32 s26, s26, s27")
e("  v_mov_b32 v4, s26")
e("  v_mov_b32 v5, 4096")
e("  ds_write_b32 v5, v4")
e("  s_waitcnt lgkmcnt(0)")
e("  s_barrier                           ; D")
fin()
e("L_notrouter:")
e(f"  s_cmp_ge_u32 s2, {NR+NF}")
e("  s_cbranch_scc1 L_helper")
e(f"  s_sub_u32 s20, s2, {NR}")
e("  s_lshr_b32 s20, s20, 3")
e("  s_mul_i32 s22, s21, 18")
e("  s_add_u32 s20, s20, s22             ; slice 0..143")
e("  s_cmp_eq_u32 s3, 9")
e("  s_cbranch_scc1 L_fpoll")
def ffn_setup():
    e("  v_and_b32 v68, 1, v3")
    e("  v_lshlrev_b32 v68, 4, v68")
    e("  v_mov_b32 v69, 0xffff")
    e("  v_lshlrev_b32 v68, v68, v69         ; m")
    e("  v_lshrrev_b32 v69, 1, v3            ; j>>1")
    for r in range(4):
        e(f"  v_cmp_eq_u32 vcc, {r}, v69")
        e("  s_nop 1")
        e(f"  v_cndmask_b32 v{56+r}, 0, v68, vcc")
    e("  v_mov_b32 v68, 0x0c0c0c0c")
    e("  s_mov_b32 s26, 0x01000100")
    e("  s_mov_b32 s27, 0x03020302")
    for r in range(4):
        e(f"  v_bfi_b32 v{60+r}, v{56+r}, s26, v68")
        e(f"  v_bfi_b32 v{64+r}, v{56+r}, s27, v68")
    e("  v_lshlrev_b32 v94, 4, v2")
    e("  s_lshl_b32 s25, s33, 7")
    e("  s_lshl_b32 s26, s34, 1              ; B?8:0")
    e("  s_add_u32 s25, s25, s26")
    e("  v_add_u32 v94, s25, v94")
    e("  v_xor_b32 v95, 8, v94")
    e("  v_and_b32 v93, 3, v0                ; cc")
    e("  v_lshlrev_b32 v93, 4, v93")
    e("  v_bfe_u32 v7, v0, 4, 1              ; qd'")
    e("  v_lshl_add_u32 v93, v7, 3, v93")
    e("  v_and_b32 v7, 4, v0                 ; 4mat")
    e("  v_add_u32 v93, v93, v7")
    e("  v_lshrrev_b32 v7, 5, v0             ; upper")
    e("  v_lshl_add_u32 v93, v7, 1, v93      ; row")
    e("  v_mul_u32_u24 v93, 48, v93")
    e("  s_lshl_b32 s25, s33, 2")
    e("  s_add_u32 s25, s25, 2048")
    e("  v_add_u32 v93, s25, v93")
    e("  v_mul_u32_u24 v7, 48, v0")
    e("  v_add_u32 v7, 2048, v7")
    e("  v_bfe_u32 v92, v0, 4, 1")
    e("  v_bfe_u32 v68, v0, 2, 1")
    e("  v_lshl_add_u32 v92, v92, 1, v68     ; qd*2+a")
    e(f"  v_mul_u32_u24 v92, {NF*64}, v92")
    e("  v_and_b32 v68, 3, v0")
    e("  v_lshl_add_u32 v92, v68, 4, v92")
    e(f"  s_mul_i32 s25, s3, {4*NF*64}")
    e("  s_lshl_b32 s26, s20, 6")
    e("  s_add_u32 s25, s25, s26")
    e("  v_add_u32 v92, s25, v92")
    e("  s_mov_b32 s28, 0x00ff00ff           ; lanes n<8")
    e("  s_mov_b32 s29, 0x00ff00ff")
    e("  s_mov_b32 s30, 0x00ff00ff           ; lanes n<8, l<32")
    e("  s_mov_b32 s31, 0")
    e("  s_mov_b32 s32, 0xbfb8aa3b           ; -log2e")
if opts["rev"]:
    e("  s_sub_u32 s33, 8, s3")
    e("  s_bitcmp1_b32 s20, 0")
    e("  s_cselect_b32 s33, s33, s3          ; wk")
    e("  s_cselect_b32 s34, 4, 0             ; j0")
else:
    e("  s_mov_b32 s33, s3")
    e("  s_mov_b32 s34, 0")
if opts["setup_first"]: ffn_setup()
e("  s_lshl_b32 s22, s33, 6")
e("  s_add_u32 s22, s22, s34")
e("  s_mul_i32 s22, s22, 9216            ; (64wk+j0)*9216")
e("  s_lshl_b32 s23, s20, 6")
e("  s_add_u32 s22, s22, s23")
e("  v_mul_u32_u24 v4, 8*9216, v2")
e("  v_and_b32 v5, 3, v3")
e("  v_lshlrev_b32 v5, 4, v5")
e("  v_add3_u32 v4, v4, v5, s22")
e("  v_mov_b32 v5, 0")
e("  s_mul_i32 s24, s20, 32*1152")
e("  s_lshl_b32 s25, s3, 7")
e("  s_add_u32 s24, s24, s25")
e("  v_mul_u32_u24 v6, 4*1152, v2")
e("  v_lshlrev_b32 v88, 4, v3")
e("  v_add3_u32 v6, v6, v88, s24")
e("  v_cmp_gt_u32 vcc, 4, v3")
e("  s_mov_b32 s22, 9216")
e("  s_mov_b32 s23, 0")
e("  s_cmp_eq_u32 s34, 0")
e(f"  s_cselect_b32 s36, s22, {(-7*9216) & 0xffffffff:#x}")
e("  s_cselect_b32 s37, 0, -1")
e("  s_waitcnt lgkmcnt(0)")
stamp(1)
e("  v_mov_b32 v88, s8")
e("  v_mov_b32 v89, s9")
e("  v_mov_b32 v90, s10")
e("  v_mov_b32 v91, s11")
e("  v_cndmask_b32 v88, v90, v88, vcc")
e("  v_cndmask_b32 v89, v91, v89, vcc")
e("  v_lshl_add_u64 v[4:5], v[4:5], 0, v[88:89]")
for i in range(8):
    e(f"  global_load_dwordx4 v[{8+4*i}:{11+4*i}], v[4:5], off {opts['guf']}")
    if i == 3: e("  v_lshl_add_u64 v[4:5], v[4:5], 0, s[36:37]")
    elif i < 7: e("  v_lshl_add_u64 v[4:5], v[4:5], 0, s[22:23]")
def dnloads():
    for i in range(4):
        e(f"  global_load_dwordx4 v[{40+4*i}:{43+4*i}], v6, s[12:13] offset:{1152*i} {opts['dnf']}")
if opts["early_dn"]: dnloads()
stamp(2)
e("  s_barrier                           ; P0")
if not opts["setup_first"]: ffn_setup()
if STAMP:
    e(f"  s_waitcnt vmcnt({4 if opts['early_dn'] else 0})")
    stamp(3)
e("  s_barrier                           ; X1")
if not opts["early_dn"]: dnloads()
e("  s_barrier                           ; X2")
stamp(4)
e("  ds_read_b64 v[68:69], v94")
e("  ds_read_b64 v[70:71], v95")
e("  s_waitcnt lgkmcnt(0)")
def perms(i):
    base = 72 + 4*(i % 4)
    for r in range(4):
        e(f"  v_perm_b32 v{base+r}, v{68+(i>>1)}, v{68+(i>>1)}, v{60+4*(i&1)+r}")
perms(0)
for i in range(8):
    if i < 7: perms(i+1)
    else: e("  s_nop 1")
    e(f"  s_waitcnt vmcnt({11-i})")
    base = 72 + 4*(i % 4)
    c = "0" if i == 0 else "v[88:91]"
    e(f"  v_mfma_f32_16x16x32_bf16 v[88:91], v[{base}:{base+3}], v[{8+4*i}:{11+4*i}], {c}")
e("  s_nop 7")
e("  v_permlane32_swap_b32 v88, v90")
e("  v_permlane32_swap_b32 v89, v91")
e("  s_nop 1")
e("  v_add_f32_dpp v88, v90, v88 row_ror:8 row_mask:0xf bank_mask:0xf")
e("  v_add_f32_dpp v89, v91, v89 row_ror:8 row_mask:0xf bank_mask:0xf")
e("  s_mov_b64 exec, s[28:29]")
e("  ds_write2_b32 v93, v88, v89 offset0:0 offset1:12")
e("  s_mov_b64 exec, -1")
e("  s_waitcnt lgkmcnt(0)")
e("  s_barrier                           ; H")
stamp(5)
e("  ds_read_b128 v[8:11], v7")
e("  ds_read_b128 v[12:15], v7 offset:16")
e("  ds_read_b32 v16, v7 offset:32")
e("  s_waitcnt lgkmcnt(1)")
e("  v_add_f32 v8, v8, v9")
e("  v_add_f32 v10, v10, v11")
e("  v_add_f32 v12, v12, v13")
e("  v_add_f32 v14, v14, v15")
e("  v_add_f32 v8, v8, v10")
e("  v_add_f32 v12, v12, v14")
e("  s_waitcnt lgkmcnt(0)")
e("  v_add_f32 v8, v8, v16")
e("  v_add_f32 v8, v8, v12")
e("  v_cvt_pk_bf16_f32 v8, v8, v8")
e("  v_lshlrev_b32 v8, 16, v8")
e("  v_mov_b32 v9, v8")
e("  s_nop 1")
e("  v_mov_b32_dpp v9, v8 row_shl:4 row_mask:0xf bank_mask:0x5   ; U")
e("  v_mov_b32_dpp v8, v8 row_shr:4 row_mask:0xf bank_mask:0xa   ; G")
e("  v_mul_f32 v10, s32, v8")
e("  v_exp_f32 v10, v10")
e("  s_nop 0")
e("  v_add_f32 v10, 1.0, v10")
e("  v_rcp_f32 v10, v10")
e("  s_nop 0")
e("  v_mul_f32 v10, v8, v10")
e("  v_cvt_pk_bf16_f32 v10, v10, v10")
e("  v_lshlrev_b32 v10, 16, v10")
e("  v_mul_f32 v10, v10, v9")
e("  v_cvt_pk_bf16_f32 v10, v10, v10     ; hdup")
e("  s_nop 1")
for i in range(4):
    for r in range(4):
        e(f"  v_and_b32_dpp v{72+4*i+r}, v10, v{56+r} quad_perm:[{i},{i},{i},{i}] row_mask:0xf bank_mask:0xf")
stamp(6)
e("  s_nop 1")
for i in range(4):
    e(f"  s_waitcnt vmcnt({3-i})")
    c = "0" if i == 0 else "v[88:91]"
    e(f"  v_mfma_f32_16x16x32_bf16 v[88:91], v[{72+4*i}:{75+4*i}], v[{40+4*i}:{43+4*i}], {c}")
e("  s_nop 7")
for r in range(4):
    e(f"  v_permlane32_swap_b32 v{88+r}, v{12+r}")
e("  s_nop 1")
for r in range(4):
    e(f"  v_add_f32_dpp v{88+r}, v{12+r}, v{88+r} row_ror:8 row_mask:0xf bank_mask:0xf")
e("  s_mov_b64 exec, s[30:31]")
e("  global_store_dwordx4 v92, v[88:91], s[18:19] sc1")
stamp(7)
if STAMP:
    e("  s_waitcnt vmcnt(0)")
    stamp(8)
fin()
e("L_fpoll:")
e("  v_lshlrev_b32 v6, 2, v0")
e("  v_lshlrev_b32 v7, 4, v0")
e("  s_setprio 3")
e("  s_waitcnt lgkmcnt(0)")
e("  s_barrier                           ; P0")
stamp(1)
poll_keys("fp", 6, 4, 24)
stamp(2)
wave_max_u32(4, 24)
e("  s_and_b32 s25, s24, 0x7ff")
e("  s_sub_u32 s25, 2047, s25            ; idx")
e("  s_mul_i32 s25, s25, 1152")
e("  v_add_u32 v5, s25, v7")
e("  global_load_dwordx4 v[8:11], v5, s[4:5]")
e("  s_mov_b64 exec, 0xff")
e("  global_load_dwordx4 v[12:15], v5, s[4:5] offset:1024")
e("  s_mov_b64 exec, -1")
e("  s_barrier                           ; X1")
e("  s_waitcnt vmcnt(1)")
e("  ds_write_b128 v7, v[8:11]")
e("  s_mov_b64 exec, 0xff")
e("  s_waitcnt vmcnt(0)")
e("  ds_write_b128 v7, v[12:15] offset:1024")
e("  s_waitcnt lgkmcnt(0)")
stamp(3)
e("  s_barrier                           ; X2")
fin()
e("L_helper:")
e(f"  s_cmp_ge_u32 s2, {NWG}")
e("  s_cbranch_scc1 L_end")
e(f"  s_sub_u32 s20, s2, {NR+NF}")
e(f"  s_mul_i32 s26, s21, {576*1152}")
e("  s_lshr_b32 s27, s20, 3")
e("  s_mul_i32 s27, s27, 10")
e("  s_add_u32 s27, s27, s3")
e("  s_mul_i32 s27, s27, 6144")
e("  s_add_u32 s26, s26, s27")
e("  v_lshl_add_u32 v42, v0, 4, s26")
e("  v_add_u32 v43, 4096, v42")
e(f"  s_mul_i32 s24, s20, {NF*64}")
e("  s_lshl_b32 s25, s3, 10")
e("  s_add_u32 s24, s24, s25")
e("  v_lshl_add_u32 v40, v0, 4, s24")
e(f"  v_mov_b32 v44, {SENT:#x}")
e("  v_lshlrev_b32 v7, 2, v0")
e("  s_waitcnt lgkmcnt(0)")
stamp(1)
if opts["pf"]:
    for i in range(6):
        e(f"  global_load_dwordx4 v[{8+4*i}:{11+4*i}], v{42+i//4}, s[12:13] offset:{1024*(i%4)} {opts['pff']}")
    e("  s_waitcnt vmcnt(0)")
stamp(2)
e(f"  s_cmp_ge_u32 s20, {NRED}")
e("  s_cbranch_scc1 L_hend")
e("  s_barrier")
e("  s_cmp_eq_u32 s3, 9")
e("  s_cbranch_scc0 L_red")
poll_keys("hp", 7, 4, 26)
stamp(3)
e("  s_barrier")
wave_max_u32(4, 26)
e("  s_and_b32 s25, s26, 0x7ff")
e("  s_sub_u32 s25, 2047, s25")
e("  s_mul_i32 s25, s25, 1152")
e("  s_lshr_b32 s27, s20, 2")
e("  s_lshl_b32 s27, s27, 7")
e("  s_add_u32 s25, s25, s27")
e("  s_and_b32 s27, s20, 1")
e("  s_lshl_b32 s27, s27, 6")
e("  s_add_u32 s25, s25, s27")
e("  s_and_b32 s27, s20, 2")
e("  s_lshl_b32 s27, s27, 2")
e("  s_add_u32 s25, s25, s27")
e("  v_and_b32 v49, 15, v0")
e("  v_lshrrev_b32 v50, 2, v49")
e("  v_and_b32 v51, 3, v49")
e("  v_lshlrev_b32 v51, 1, v51")
e("  v_lshl_add_u32 v50, v50, 4, v51")
e("  v_add_u32 v50, s25, v50")
e("  global_load_ushort v51, v50, s[4:5]")
e("  s_and_b32 s27, s26, 0xffff0000")
e("  s_ashr_i32 s28, s27, 31")
e("  s_not_b32 s28, s28")
e("  s_or_b32 s28, s28, 0x80000000")
e("  s_xor_b32 s27, s27, s28")
e("  s_and_b32 s27, s27, 0xffff0000      ; r as f32")
e("  v_mov_b32 v52, 0xbfb8aa3b")
e("  v_mul_f32 v52, s27, v52")
e("  v_exp_f32 v52, v52")
e("  s_nop 0")
e("  v_add_f32 v52, 1.0, v52")
e("  v_rcp_f32 v52, v52")
e("  s_nop 0")
e("  v_cvt_pk_bf16_f32 v52, v52, v52")
e("  v_lshlrev_b32 v52, 16, v52          ; r_sel")
e("  v_mul_u32_u24 v54, 48, v49")
e("  s_waitcnt vmcnt(0)")
e("  v_lshlrev_b32 v51, 16, v51")
e("  s_mov_b64 exec, 0xffff")
e("  s_barrier")
stamp(4)
e("  ds_read_b128 v[32:35], v54")
e("  ds_read_b128 v[36:39], v54 offset:16")
e("  ds_read_b32 v48, v54 offset:32")
e("  s_waitcnt lgkmcnt(1)")
e("  v_add_f32 v32, v32, v33")
e("  v_add_f32 v34, v34, v35")
e("  v_add_f32 v36, v36, v37")
e("  v_add_f32 v38, v38, v39")
e("  v_add_f32 v32, v32, v34")
e("  v_add_f32 v36, v36, v38")
e("  s_waitcnt lgkmcnt(0)")
e("  v_add_f32 v32, v32, v48")
e("  v_add_f32 v32, v32, v36")
e("  v_cvt_pk_bf16_f32 v32, v32, v32")
e("  v_lshlrev_b32 v32, 16, v32          ; y bf16")
e("  v_mul_f32 v32, v32, v52")
e("  v_cvt_pk_bf16_f32 v32, v32, v32")
e("  v_lshlrev_b32 v32, 16, v32")
e("  v_fma_f32 v32, v51, 0, v32          ; upd = x*0 + y")
e("  v_add_f32 v32, v51, v32")
e("  v_cvt_pk_bf16_f32 v32, v32, v32")
e("  global_store_short v50, v32, s[14:15]")
stamp(5)
if STAMP:
    e("  s_waitcnt vmcnt(0)")
    stamp(6)
fin()
e("L_red:")
e("  v_mul_u32_u24 v53, 4*48, v0")
e("  s_lshl_b32 s27, s3, 2")
e("  v_add_u32 v53, s27, v53")
e("  s_mov_b32 s57, 0")
e("  s_barrier")
stamp(3)
e("L_red_loop:")
e("  global_load_dwordx4 v[32:35], v40, s[18:19] sc1")
e("  s_add_u32 s57, s57, 1")
e(f"  s_cmp_gt_u32 s57, {SPIN}")
e("  s_cbranch_scc1 L_red_out")
e("  s_waitcnt vmcnt(0)")
e("  v_cmp_ne_u32 s[28:29], v32, v44")
e("  v_cmp_ne_u32 s[30:31], v33, v44")
e("  v_cmp_ne_u32 s[32:33], v34, v44")
e("  v_cmp_ne_u32 vcc, v35, v44")
e("  s_and_b64 s[28:29], s[28:29], s[30:31]")
e("  s_and_b64 s[32:33], s[32:33], vcc")
e("  s_and_b64 s[28:29], s[28:29], s[32:33]")
e("  s_cmp_eq_u64 s[28:29], -1")
e("  s_cbranch_scc0 L_red_loop")
e("L_red_out:")
e("  s_waitcnt vmcnt(0)")
if STAMP: e("  s_mov_b32 s72, s57")
stamp(4)
for d in ["row_ror:4", "row_ror:8"]:
    for r in range(4):
        e(f"  v_add_f32_dpp v{32+r}, v{32+r}, v{32+r} {d} row_mask:0xf bank_mask:0xf")
for r in range(4):
    e(f"  v_mov_b32 v{36+r}, v{32+r}")
e("  s_nop 0")
for r in range(4):
    e(f"  v_permlane16_swap_b32 v{32+r}, v{36+r}")
for r in range(4):
    e(f"  v_add_f32 v{32+r}, v{32+r}, v{36+r}")
for r in range(4):
    e(f"  v_mov_b32 v{36+r}, v{32+r}")
e("  s_nop 0")
for r in range(4):
    e(f"  v_permlane32_swap_b32 v{32+r}, v{36+r}")
for r in range(4):
    e(f"  v_add_f32 v{32+r}, v{32+r}, v{36+r}")
e("  s_mov_b64 exec, 0xf")
e("  ds_write2_b32 v53, v32, v33 offset0:0 offset1:12")
e("  ds_write2_b32 v53, v34, v35 offset0:24 offset1:36")
e("  s_waitcnt lgkmcnt(0)")
e("  s_barrier")
e("L_hend:")
if STAMP:
    e("L_flush:")
    e("  s_mov_b64 exec, -1")
    e("  s_mov_b32 s60, s76")
    e("  s_mul_i32 s56, s2, 10")
    e("  s_add_u32 s56, s56, s3")
    e("  s_lshl_b32 s56, s56, 6")
    e("  s_add_u32 s56, s56, 0x100000")
    e("  s_getreg_b32 s75, hwreg(HW_REG_XCC_ID)")
    e("  s_getreg_b32 s74, hwreg(HW_REG_HW_ID)")
    e("  v_mov_b32 v120, s56")
    for i in range(16):
        e(f"  v_mov_b32 v{100+i}, s{60+i}")
    e("  s_mov_b64 exec, 1")
    for i in range(4):
        e(f"  global_store_dwordx4 v120, v[{100+4*i}:{103+4*i}], s[18:19] offset:{16*i}")
e("L_end:")
e("  s_endpgm")
e('.section .rodata,"a"')
e(".p2align 6")
e(f".amdhsa_kernel {NAME}_kernel")
e(f"  .amdhsa_next_free_vgpr {128 if STAMP else 96}")
e("  .amdhsa_next_free_sgpr 80")
e(f"  .amdhsa_accum_offset {128 if STAMP else 96}")
e("  .amdhsa_group_segment_fixed_size 0")
e("  .amdhsa_kernarg_size 64")
e("  .amdhsa_user_sgpr_count 2")
e("  .amdhsa_user_sgpr_kernarg_segment_ptr 1")
e("  .amdhsa_system_sgpr_workgroup_id_x 1")
e("  .amdhsa_float_denorm_mode_32 3")
e(".end_amdhsa_kernel")
print("\n".join(out))
```

```python
import sys
opts = dict(stamp=0, enc="", encwg=-1, xf="", guf="", dnf="", pff="", cpf="sc1",
            A=4, WL=6, r1=0, p0=5, pfr=1, pf3=1, pfd=3, dpre=4, dma=1, dsplit=4, cpw=0)
for a in sys.argv[1:]:
    k, _, v = a.partition("=")
    if k not in opts: raise SystemExit("bad opt " + k)
    opts[k] = int(v) if isinstance(opts[k], int) else v.replace("+", " ")
STAMP = opts["stamp"]; ENC = opts["enc"]
NAME = "standalone__moe_arch_mod__prompt"
NR, NF, NRED = 112, 144, 36
NWG = NR + NF
SENT = 0xFF800001
SPIN = 0x40000
KOFF = 0x80000
EOFF = KOFF + 0x4000
LCG_A, LCG_C = 1664525, 1013904223
A = opts["A"]; WL = opts["WL"]; R1 = opts["r1"]
out = []
e = out.append
role = ["none"]
def stamp(slot):
    if ENC:
        if ENC == f"{role[0]}:{slot}":
            e("  s_memrealtime s[58:59]")
            e("  s_waitcnt lgkmcnt(0)")
            e("  s_mov_b32 s78, s58")
        return
    if STAMP:
        e("  s_memrealtime s[58:59]")
        e("  s_waitcnt lgkmcnt(0)")
        e(f"  s_mov_b32 s{60+slot}, s58")
def want(slot):
    return STAMP or ENC == f"{role[0]}:{slot}"
def fin():
    if STAMP or ENC: e("  s_branch L_flush")
    else: e("  s_endpgm")
def bar(c):
    e(f"  s_barrier                           ; {c}")
DPPX = "row_mask:0xf bank_mask:0xf"
def wave_max_u32(v, s):
    for d in ["quad_perm:[1,0,3,2] row_mask:0xf", "quad_perm:[2,3,0,1] row_mask:0xf", "row_half_mirror row_mask:0xf",
              "row_mirror row_mask:0xf", "row_bcast:15 row_mask:0xa", "row_bcast:31 row_mask:0xc"]:
        e("  s_nop 1")
        e(f"  v_max_u32_dpp v{v}, v{v}, v{v} {d} bank_mask:0xf")
    e("  s_nop 0")
    e(f"  v_readlane_b32 s{s}, v{v}, 63")
def poll_keys(tag):
    e("  s_mov_b32 s57, 0")
    e(f"L_{tag}_loop:")
    e("  global_load_dwordx2 v[24:25], v21, s[18:19] sc1")
    e("  global_load_dwordx2 v[26:27], v22, s[18:19] sc1")
    e("  s_add_u32 s57, s57, 1")
    e(f"  s_cmp_gt_u32 s57, {SPIN}")
    e(f"  s_cbranch_scc1 L_{tag}_out")
    e("  s_waitcnt vmcnt(0)")
    e("  v_cmp_eq_u32 vcc, v25, v20")
    e("  v_cmp_eq_u32 s[42:43], v27, v20")
    e("  v_max_u32 v24, v24, v26")
    e("  s_and_b64 vcc, vcc, s[42:43]")
    e("  s_cmp_eq_u64 vcc, -1")
    e(f"  s_cbranch_scc0 L_{tag}_loop")
    e(f"L_{tag}_out:")
    e("  s_waitcnt vmcnt(0)")
    if STAMP: e("  s_mov_b32 s72, s57")

e(f"; @launch grid=({NWG},1,1) block=(640,1,1) lds=8192")
e('.amdgcn_target "amdgcn-amd-amdhsa--gfx950"')
e(".text")
e(f".globl {NAME}_kernel")
e(".p2align 8")
e(f".type {NAME}_kernel,@function")
e(f"{NAME}_kernel:")
e("  s_load_dwordx16 s[4:19], s[0:1], 0")
if ENC:
    e("  s_mov_b32 s78, 0")
    if ENC == "start":
        e("  s_memrealtime s[58:59]")
        e("  s_waitcnt lgkmcnt(0)")
        e("  s_mov_b32 s78, s58")
if STAMP:
    e("  s_memrealtime s[76:77]")
    for i in range(0, 16, 2): e(f"  s_mov_b64 s[{60+i}:{61+i}], 0")
e("  v_lshrrev_b32 v1, 6, v0")
e("  v_and_b32 v0, 63, v0")
e("  v_readfirstlane_b32 s3, v1")
e("  v_and_b32 v3, 7, v0")
e("  s_and_b32 s21, s2, 7                ; L2 group")
e("  s_cmp_eq_u32 s3, 9")
e("  s_cbranch_scc0 L_notw9")
e("  s_getpc_b64 s[44:45]")
e("L_pc:")
e("  v_min_u32 v28, (L_codeend-L_pc-4)/128, v0")
e("  v_lshlrev_b32 v28, 7, v28")
e("  global_load_dword v29, v28, s[44:45]")
e("  s_branch L_w9")
e("L_notw9:")
e(f"  s_cmp_ge_u32 s2, {NR}")
e("  s_cbranch_scc1 L_ffn")
role[0] = "rt"
e("  v_lshrrev_b32 v2, 3, v0             ; g")
e("  s_lshl_b32 s22, s3, 7")
e("  v_lshl_add_u32 v4, v3, 4, s22")
e("  s_min_u32 s20, s2, 31")
e("  s_mul_i32 s23, s2, 18")
e("  s_add_u32 s20, s20, s23")
e("  s_mul_i32 s23, s20, 1152")
e("  v_mul_u32_u24 v5, 3*1152, v2")
e("  v_add3_u32 v5, v5, v4, s23")
e(f"  s_mul_i32 s24, s2, {NF*64}")
e("  s_lshl_b32 s25, s3, 10")
e("  s_add_u32 s24, s24, s25")
e("  v_lshl_add_u32 v40, v0, 4, s24")
e(f"  v_mov_b32 v44, {SENT:#x}")
e("  v_mov_b32 v45, v44")
e("  v_mov_b64 v[46:47], v[44:45]")
e(f"  s_cmp_ge_u32 s2, {NRED}")
e("  s_waitcnt lgkmcnt(0)")
stamp(1)
e("  global_load_dwordx4 v[8:11], v4, s[6:7]")
e("  s_mov_b32 exec_hi, 0x00ffffff")
e(f"  global_load_dwordx4 v[16:19], v5, s[4:5] {opts['xf']}")
e("  s_mov_b32 exec_hi, 0x0000ffff")
e(f"  global_load_dwordx4 v[20:23], v5, s[4:5] offset:1152 {opts['xf']}")
e(f"  global_load_dwordx4 v[24:27], v5, s[4:5] offset:2304 {opts['xf']}")
e("  s_mov_b32 exec_hi, -1")
e("  s_cbranch_scc1 L_rt2")
e("  global_store_dwordx4 v40, v[44:47], s[18:19] sc1")
e("  s_branch L_rt2")
role[0] = "ffn"
e("L_ffn:")
e(f"  s_cmp_ge_u32 s2, {NWG}")
e("  s_cbranch_scc1 L_end")
e(f"  s_sub_u32 s20, s2, {NR}")
e("  s_lshr_b32 s20, s20, 3")
e("  s_mul_i32 s22, s21, 18")
e("  s_add_u32 s20, s20, s22             ; slice 0..143")
e("  s_cmp_ge_u32 s3, 4")
e("  s_cbranch_scc1 L_dn")
e("  v_lshrrev_b32 v2, 3, v0             ; g")
e("  s_movk_i32 s22, 9216")
e("  s_mov_b32 s23, 0")
e(f"  s_mov_b32 s24, {15*9216}")
e("  s_mov_b32 s25, 0")
e("  s_mov_b32 s29, 0")
e("  s_bitcmp1_b32 s20, 0")
e(f"  s_cselect_b32 s33, {16*A}, 0")
e(f"  s_cselect_b32 s26, {(-(16*(2*A-1)+1)*9216) & 0xffffffff:#x}, s24")
e("  s_cselect_b32 s27, -1, 0")
e(f"  s_cselect_b32 s28, {(16*(A+1)-1)*9216}, s24")
e("  s_mul_i32 s34, s3, 144")
e("  s_add_u32 s35, s34, s33")
e("  s_mul_i32 s36, s35, s22")
e("  s_lshl_b32 s37, s20, 6")
e("  s_add_u32 s36, s36, s37")
e("  v_mul_u32_u24 v4, 2*9216, v2")
e("  v_and_b32 v5, 3, v0")
e("  v_lshlrev_b32 v5, 4, v5")
e("  v_add3_u32 v4, v4, v5, s36")
e("  v_mov_b32 v5, 0")
e("  v_cmp_gt_u32 vcc, 4, v3")
e("  s_waitcnt lgkmcnt(0)")
stamp(1)
e("  v_mov_b32 v8, s8")
e("  v_mov_b32 v9, s9")
e("  v_mov_b32 v10, s10")
e("  v_mov_b32 v11, s11")
e("  v_cndmask_b32 v8, v10, v8, vcc")
e("  v_cndmask_b32 v9, v11, v9, vcc")
e("  v_lshl_add_u64 v[4:5], v[4:5], 0, v[8:9]")
RB = 100; NS = WL + 2
NVG = max(132, RB + 4*NS)
def ring(i): return RB + 4*(i % NS)
def guload(i):
    e(f"  global_load_dwordx4 v[{ring(i)}:{ring(i)+3}], v[4:5], off {opts['guf']}")
    if i == 17: return
    if i % 2 == 0: st = 22
    elif (i+1)//2 == A: st = 26
    elif (i+1)//2 == 2*A: st = 28
    else: st = 24
    e(f"  v_lshl_add_u64 v[4:5], v[4:5], 0, s[{st}:{st+1}]")
def gsetup():
    e("  s_mov_b32 s30, 0x05040100")
    e("  s_mov_b32 s31, 0x07060302")
    e("  v_lshlrev_b32 v7, 2, v2             ; 4g")
    e("  s_lshl_b32 s35, s35, 1")
    e("  s_lshl_b32 s34, s34, 1")
    e(f"  s_sub_u32 s33, {16*A}, s33")
    e("  s_lshl_b32 s33, s33, 1")
    e("  s_add_u32 s33, s33, s34")
    e(f"  s_add_u32 s34, s34, {64*A}")
    e("  v_add_u32 v2, s35, v7               ; group 1")
    e("  v_add_u32 v1, s33, v7               ; group 2")
    e("  v_add_u32 v6, s34, v7               ; group 3")
    e("  v_and_b32 v7, 3, v0")
    e("  v_bfe_u32 v72, v0, 2, 1")
    e("  v_lshl_add_u32 v7, v7, 1, v72       ; slot>>3")
    e("  v_mul_u32_u24 v7, 272, v7")
    e("  v_bfe_u32 v72, v0, 3, 1")
    e("  v_lshl_add_u32 v7, v72, 2, v7")
    e("  s_lshl_b32 s33, s3, 3")
    e("  s_add_u32 s33, s33, 2048")
    e("  v_add_u32 v7, s33, v7")
    for r in range(88, 98, 2):
        e(f"  v_mov_b64 v[{r}:{r+1}], 0")
    e("  s_movk_i32 s38, 0xff")
    e("  s_mov_b32 s39, 0xff00")
if R1:
    for i in range(R1): guload(i)
    gsetup()
    e("  s_waitcnt vmcnt(0)")
    stamp(9)
    bar("R1")
    for i in range(R1, WL): guload(i)
else:
    for i in range(WL): guload(i)
    gsetup()
if opts["p0"] == 0: bar("P0")
x1done = False
for k in range(9):
    outst = min(18, WL + 2*k) - 2*k
    e(f"  s_waitcnt vmcnt({outst-2})")
    for i in (WL + 2*k, WL + 2*k + 1):
        if i < 18: guload(i)
    if k + 1 == opts["p0"]: bar("P0")
    if WL + 2*k + 2 >= 18 and not x1done:
        x1done = True
        stamp(2)
        assert opts["p0"] <= k + 1
        bar("X1")
    for c in range(8):
        d = 8 + 32*(k >> 2) + 4*c + (k & 3) if k < 8 else 72 + c
        e(f"  v_perm_b32 v{d}, v{ring(2*k+1)+(c>>1)}, v{ring(2*k)+(c>>1)}, s{30+(c&1)}")
stamp(3)
bar("X2")
stamp(4)
def xaddr(k):
    if k < A: return 2, 32*k
    if k < 2*A: return 1, 32*(k-A)
    return 6, 32*(k-2*A)
nrd = 0; need = {}
k = 0
while k < 8:
    r, o = xaddr(k); r2, o2 = xaddr(k+1)
    if r == r2:
        e(f"  ds_read2_b32 v[{80+k}:{81+k}], v{r} offset0:{o//4} offset1:{o2//4}"); nrd += 1
    else:
        e(f"  ds_read_b32 v{80+k}, v{r} offset:{o}"); e(f"  ds_read_b32 v{81+k}, v{r2} offset:{o2}"); nrd += 2
    k += 2
    if k % 4 == 0: need[k//4 - 1] = nrd
r, o = xaddr(8)
e(f"  ds_read_b32 v90, v{r} offset:{o}")
e(f"  ds_read_b32 v95, v{r} offset:{o}")
nrd += 2
for s_ in range(2):
    e(f"  s_waitcnt lgkmcnt({nrd - need[s_]})")
    for c in range(8):
        cc = "0" if s_ == 0 else f"v[{100+4*c}:{103+4*c}]"
        e(f"  v_mfma_f32_16x16x32_bf16 v[{100+4*c}:{103+4*c}], v[{80+4*s_}:{83+4*s_}], v[{8+32*s_+4*c}:{11+32*s_+4*c}], {cc}")
e("  s_waitcnt lgkmcnt(0)")
XW = {0: 90, 1: 94, 2: 88, 3: 92}
for c in range(8):
    a0 = XW[c & 3]; b0 = 72 + (c & 4)
    e(f"  v_mfma_f32_16x16x32_bf16 v[{100+4*c}:{103+4*c}], v[{a0}:{a0+3}], v[{b0}:{b0+3}], v[{100+4*c}:{103+4*c}]")
e("  s_mov_b64 exec, s[38:39]")
e("  s_nop 0")
for c in range(0, 8, 2):
    e(f"  ds_write2_b32 v7, v{100+4*c}, v{104+4*c} offset0:{8*c} offset1:{8*c+8}")
    if c < 6: e("  s_nop 0")
e("  s_waitcnt lgkmcnt(0)")
bar("H")
stamp(5)
fin()
role[0] = "dn"
e("L_dn:")
e("  s_cmp_eq_u32 s3, 8")
e("  s_cbranch_scc1 L_end")
e("  s_sub_u32 s33, s3, 4                ; w'")
e("  v_lshrrev_b32 v2, 4, v0             ; q")
e("  v_and_b32 v1, 15, v0                ; n")
e("  s_mul_i32 s24, s20, 32*1152")
e("  s_add_u32 s24, s24, 4032")
e("  v_mul_u32_u24 v4, 8*1152, v2")
e("  v_add_u32 v4, s24, v4")
e("  v_lshlrev_b32 v5, 3, v1")
e("  v_add_u32 v5, 1024, v5")
e("  v_add_u32 v5, v5, v4")
e("  s_lshl_b32 s25, s33, 8")
e("  v_lshl_add_u32 v6, v1, 4, s25")
e("  v_add_u32 v4, v6, v4")
e("  s_mov_b32 s30, 0x05040100")
e("  s_mov_b32 s31, 0x07060302")
e("  s_mov_b32 s32, 0xbfb8aa3b           ; -log2e")
e("  v_and_b32 v6, 3, v0")
for r in range(4):
    e(f"  v_cmp_eq_u32 vcc, {r}, v6")
    e("  s_nop 1")
    e(f"  v_cndmask_b32 v{132+r}, 0, -1, vcc")
e("  v_lshrrev_b32 v7, 3, v0")
e("  v_lshl_add_u32 v7, v0, 1, v7")
e("  v_lshlrev_b32 v7, 4, v7")
e("  v_add_u32 v7, 2048, v7")
e("  v_lshrrev_b32 v136, 2, v1")
e(f"  v_mul_u32_u24 v136, {NF*64}, v136")
e("  v_lshl_add_u32 v136, v6, 4, v136")
e("  s_lshl_b32 s26, s20, 6")
e(f"  s_add_u32 s27, s26, {32*NF*64}")
e("  v_add_u32 v138, s27, v136           ; D2 offset")
e(f"  s_mul_i32 s25, s33, {8*NF*64}")
e("  s_add_u32 s25, s25, s26")
e("  v_add_u32 v136, s25, v136           ; D0 offset")
e(f"  v_add_u32 v137, {4*NF*64}, v136      ; D1 offset")
e("  s_waitcnt lgkmcnt(0)")
if R1: bar("R1")
bar("P0")
def dload(j):
    e(f"  global_load_dwordx4 v[{8+4*j}:{11+4*j}], v4, s[12:13] offset:{1152*j-4032} {opts['dnf']}")
def dperm(a, nout):
    e(f"  s_waitcnt vmcnt({nout})")
    for c in range(8):
        e(f"  v_perm_b32 v{56+4*c+a}, v{8+4*(2*a+1)+(c>>1)}, v{8+4*(2*a)+(c>>1)}, s{30+(c&1)}")
def hchain():
    e("  ds_read_b128 v[140:143], v7")
    e("  ds_read_b128 v[144:147], v7 offset:16")
    e("  s_waitcnt lgkmcnt(1)")
    e("  v_add_f32 v140, v140, v141")
    e("  v_add_f32 v142, v142, v143")
    e("  s_waitcnt lgkmcnt(0)")
    e("  v_add_f32 v144, v144, v145")
    e("  v_add_f32 v146, v146, v147")
    e("  v_add_f32 v140, v140, v142")
    e("  v_add_f32 v144, v144, v146")
    e("  v_add_f32 v140, v140, v144")
    e("  v_cvt_pk_bf16_f32 v140, v140, v140")
    e("  v_lshlrev_b32 v140, 16, v140")
    e("  v_mul_f32 v141, s32, v140")
    e("  v_exp_f32 v141, v141")
    e("  s_nop 0")
    e("  v_add_f32 v141, 1.0, v141")
    e("  v_rcp_f32 v141, v141")
    e("  s_nop 0")
    e("  v_mul_f32 v141, v140, v141")
    e("  v_cvt_pk_bf16_f32 v141, v141, v141")
    e("  v_lshlrev_b32 v141, 16, v141")
    e(f"  v_mul_f32_dpp v141, v140, v141 row_ror:8 {DPPX}   ; h")
    e("  s_nop 1")
    e(f"  v_mov_b32_dpp v142, v141 quad_perm:[1,1,3,3] {DPPX}")
    e("  v_cvt_pk_bf16_f32 v141, v141, v142  ; (h[n],h[n+1])")
    e("  s_nop 1")
def avar(r):
    for a in range(4):
        e(f"  v_and_b32_dpp v{104+4*r+a}, v141, v{132+r} row_newbcast:{2*a} {DPPX}")
def dm(t):
    u = t >> 2; r = t & 3
    cc = "0" if r == 0 else f"v[{120+4*u}:{123+4*u}]"
    e(f"  v_mfma_f32_16x16x32_bf16 v[{120+4*u}:{123+4*u}], v[{104+4*r}:{107+4*r}], v[{56+4*t}:{59+4*t}], {cc}")
def down_body(tail):
    DS = opts["dsplit"]; DP = opts["dpre"]
    bar("X1")
    if tail:
        for j in range(8):
            e(f"  global_load_dwordx2 v[{40+2*j}:{41+2*j}], v5, s[12:13] offset:{1152*j-4032} {opts['dnf']}")
            if j + 1 == DS:
                bar("X2"); stamp(4)
        for j in range(8): dload(j)
        e("  s_waitcnt vmcnt(8)")
        for a in range(4):
            for c in range(4):
                e(f"  v_perm_b32 v{88+4*c+a}, v{40+2*(2*a+1)+(c>>1)}, v{40+2*(2*a)+(c>>1)}, s{30+(c&1)}")
    else:
        for j in range(8):
            dload(j)
            if j + 1 == DS:
                bar("X2"); stamp(4)
    for a in range(DP): dperm(a, 6-2*a)
    stamp(3)
    bar("H")
    stamp(5)
    hchain()
    if DP < 4:
        for r in range(4): avar(r)
        if tail:
            for r in range(4): dm(8+r)
        for a in range(DP, 4): dperm(a, 6-2*a)
        stamp(6)
        e("  s_nop 1")
        for r in range(4):
            dm(r); dm(4+r)
    else:
        avar(0); avar(1)
        if tail: dm(8)
        dm(0); dm(4)
        avar(2)
        if tail: dm(9)
        dm(1); dm(5)
        avar(3)
        if tail: dm(10)
        dm(2); dm(6)
        if tail: dm(11)
        dm(3); dm(7)
    e("  s_mov_b64 exec, 0xffff")
    if tail:
        e("  s_nop 4")
        e("  global_store_dwordx4 v138, v[128:131], s[18:19] sc1")
    else:
        e("  s_nop 5")
    e("  global_store_dwordx4 v136, v[120:123], s[18:19] sc1")
    e("  global_store_dwordx4 v137, v[124:127], s[18:19] sc1")
    stamp(7)
    if want(8):
        e("  s_waitcnt vmcnt(0)")
        stamp(8)
    fin()
e("  s_cmp_eq_u32 s3, 7")
e("  s_cbranch_scc1 L_dnt")
down_body(False)
e("L_dnt:")
down_body(True)
NVG = max(NVG, 148)
role[0] = "rt"
e("L_rt2:")
e("  s_lshl_b32 s25, s3, 2")
e("  v_mul_u32_u24 v41, 3*48, v2")
e("  v_add_u32 v41, s25, v41")
e("  s_lshr_b32 s33, s2, 3               ; ridx")
e("  s_mul_i32 s27, s33, 9")
e("  s_add_u32 s27, s27, s3")
e(f"  s_mul_i32 s26, s21, {576*1152}")
e("  s_mul_i32 s34, s27, 45")
e("  v_min_u32 v42, 44, v0")
e("  v_add_u32 v42, s34, v42")
e("  v_min_u32 v42, 5183, v42")
e("  v_lshl_add_u32 v42, v42, 7, s26")
NU = 9 - 2*A; N4 = NU*64*9; PER = -(-N4//126)
assert PER <= 16
e(f"  s_mul_i32 s38, s27, {PER}")
e("  v_add_u32 v49, s38, v0")
e(f"  v_min_u32 v49, {N4-1}, v49")
e("  v_mul_u32_u24 v50, 7282, v49")
e("  v_lshrrev_b32 v50, 16, v50")
e("  v_mul_u32_u24 v51, 9, v50")
e("  v_sub_u32 v51, v49, v51             ; line = item%9")
M = -(-65536//(16*NU))
e(f"  v_mul_u32_u24 v52, {M}, v50")
e("  v_lshrrev_b32 v52, 16, v52")
for ri in range(64*NU): assert (ri*M) >> 16 == ri//(16*NU)
e(f"  v_mul_u32_u24 v52, {144-16*NU}, v52")
e(f"  v_add3_u32 v50, v50, v52, {32*A} " if 32*A <= 64 else f"  v_add_u32 v50, v50, v52\n  v_add_u32 v50, {32*A}, v50")
e("  v_mul_u32_u24 v50, 9216, v50")
e("  v_lshl_add_u32 v50, v51, 7, v50")
e("  s_mul_i32 s39, s21, 1152")
e("  v_add_u32 v50, s39, v50")
e("  s_mul_i32 s38, s27, 3")
e("  v_add_u32 v49, s38, v3")
e("  v_min_u32 v49, 255, v49")
e("  v_lshrrev_b32 v51, 6, v49           ; w")
e("  v_mul_u32_u24 v51, 144, v51")
e("  v_bfe_u32 v52, v49, 5, 1")
e(f"  v_mul_u32_u24 v52, {16*A}, v52")
e("  v_and_b32 v49, 31, v49")
e("  v_add3_u32 v51, v51, v52, v49")
e(f"  v_add_u32 v51, {16*(A-2)}, v51       ; row")
e("  v_mul_u32_u24 v51, 9216, v51")
e("  s_sub_u32 s38, 3, s21")
e("  s_and_b32 s38, s38, 7")
e("  s_lshl_b32 s41, s38, 7")
e("  s_add_u32 s41, s41, s39")
e("  v_add_u32 v51, s41, v51")
e("  s_cmp_eq_u32 s38, 0")
e("  s_cselect_b32 s41, 1024, 0")
e("  v_add_u32 v52, s41, v51")
e("  v_cmp_eq_u32 vcc, 2, v2")
e("  s_mov_b32 s28, 0x01010101")
e("  s_mov_b32 s29, 0x01010101")
e("  v_cndmask_b32 v50, v50, v51, vcc")
e("  v_cmp_eq_u32 vcc, 3, v2")
e("  s_nop 1")
e("  v_cndmask_b32 v50, v50, v52, vcc")
e("  s_waitcnt vmcnt(0)")
stamp(2)
m = (((1 << PER) - 1) if opts["pfr"] else 0) | (0x07070000 if opts["pf3"] else 0)
if m:
    e(f"  s_mov_b64 exec, {m:#x}")
    e("  global_load_dword v49, v50, s[8:9]")
    e("  global_load_dword v51, v50, s[10:11]")
    e("  s_mov_b64 exec, -1")
for d in range(4):
    for i in range(3):
        c = "0" if d == 0 else f"v{32+i}"
        e(f"  v_dot2_f32_bf16 v{32+i}, v{16+4*i+d}, v{8+d}, {c}")
e("  s_nop 1")
for dp in ["quad_perm:[1,0,3,2]", "quad_perm:[2,3,0,1]", "row_half_mirror"]:
    for i in range(3):
        e(f"  v_add_f32_dpp v{32+i}, v{32+i}, v{32+i} {dp} {DPPX}")
e("  s_mov_b64 exec, s[28:29]")
e("  ds_write2_b32 v41, v32, v33 offset0:0 offset1:12")
e("  ds_write_b32 v41, v34 offset:96")
e("  s_mov_b64 exec, -1")
e("  s_waitcnt lgkmcnt(0)")
bar("A")
stamp(3)
bar("B: key store issued")
def pfdown(tag):
    e("  s_cmp_eq_u32 s33, 13")
    e(f"  s_cbranch_scc1 L_nopfd{tag}")
    e(f"  global_load_dword v48, v42, s[12:13] {opts['pff']}")
    e(f"L_nopfd{tag}:")
if opts["pfd"] == 2:
    pfdown("a")
e("  s_mov_b32 s30, 0xffff0000")
e("  s_mov_b32 s31, 0x07060302")
for d in range(16, 28):
    e(f"  v_lshlrev_b32 v32, 16, v{d}")
    e(f"  v_and_b32 v33, s30, v{d}")
    e("  v_fma_f32 v32, v32, 0, v32")
    e("  v_fma_f32 v33, v33, 0, v33")
    e(f"  v_perm_b32 v{d}, v33, v32, s31")
if opts["pfd"] == 3:
    e("  s_waitcnt vmcnt(0)")
    stamp(9)
    pfdown("a")
e("  v_mul_u32_u24 v33, 3, v2            ; 3g")
e("  v_and_b32 v53, 3, v0")
e("  v_lshrrev_b32 v54, 4, v0")
e("  v_lshl_add_u32 v53, v53, 2, v54")
e("  v_mul_u32_u24 v53, 48, v53")
e("  s_lshl_b32 s27, s3, 2")
e("  s_add_u32 s27, s27, 5120")
e("  v_add_u32 v53, s27, v53")
e("  v_mov_b32 v32, 4096")
e("  s_mov_b32 s34, 0x000f000f")
e("  s_mov_b32 s35, 0x000f000f")
bar("D: winner in LDS")
stamp(4)
if opts["pfd"] == 1:
    pfdown("a")
if want(5) or opts["cpw"]:
    e("  s_waitcnt vmcnt(0)")
    stamp(5)
e("  ds_read_b32 v32, v32")
e("  s_waitcnt lgkmcnt(0)")
e("  v_sub_u32 v32, v32, v33")
for i in range(3):
    e(f"  v_cmp_ne_u32 vcc, {i}, v32")
    e(f"  s_and_b32 vcc_hi, vcc_hi, {0x00ffffff if i == 0 else 0x0000ffff:#x}")
    e("  s_mov_b64 exec, vcc")
    e(f"  global_store_dwordx4 v5, v[{16+4*i}:{19+4*i}], s[14:15] offset:{1152*i} {opts['cpf']}")
    e("  s_mov_b64 exec, -1")
stamp(6)
e(f"  s_cmp_ge_u32 s2, {NRED}")
e("  s_cbranch_scc1 L_rend")
e("  s_mov_b32 s57, 0")
e("L_red_loop:")
e("  global_load_dwordx4 v[32:35], v40, s[18:19] sc1")
e("  s_add_u32 s57, s57, 1")
e(f"  s_cmp_gt_u32 s57, {SPIN}")
e("  s_cbranch_scc1 L_red_out")
e("  s_waitcnt vmcnt(0)")
e("  v_cmp_ne_u32 s[28:29], v32, v44")
e("  v_cmp_ne_u32 s[30:31], v33, v44")
e("  v_cmp_ne_u32 s[32:33], v34, v44")
e("  v_cmp_ne_u32 vcc, v35, v44")
e("  s_and_b64 s[28:29], s[28:29], s[30:31]")
e("  s_and_b64 s[32:33], s[32:33], vcc")
e("  s_and_b64 s[28:29], s[28:29], s[32:33]")
e("  s_cmp_eq_u64 s[28:29], -1")
e("  s_cbranch_scc0 L_red_loop")
e("L_red_out:")
e("  s_waitcnt vmcnt(0)")
if STAMP: e("  s_mov_b32 s72, s57")
stamp(7)
e("  v_permlane32_swap_b32 v32, v34")
e("  v_permlane32_swap_b32 v33, v35")
e("  v_add_f32 v32, v32, v34")
e("  v_add_f32 v33, v33, v35")
e("  s_nop 1")
e("  v_permlane16_swap_b32 v32, v33")
e("  v_add_f32 v32, v32, v33")
e("  s_nop 1")
e(f"  v_add_f32_dpp v32, v32, v32 row_ror:4 {DPPX}")
e("  s_nop 1")
e(f"  v_add_f32_dpp v32, v32, v32 row_ror:8 {DPPX}")
e("  s_mov_b64 exec, s[34:35]")
e("  ds_write_b32 v53, v32")
e("  s_waitcnt lgkmcnt(0)")
bar("E")
e("L_rend:")
fin()
e("L_w9:")
e(f"  s_cmp_ge_u32 s2, {NWG}")
e("  s_cbranch_scc1 L_end")
e(f"  v_mov_b32 v20, {EOFF:#x}")
e("  v_lshlrev_b32 v21, 6, v0")
e(f"  v_add_u32 v21, {KOFF:#x}, v21")
e(f"  v_min_u32 v22, {NR-65}, v0")
e("  v_lshlrev_b32 v22, 6, v22")
e(f"  v_add_u32 v22, {KOFF+4096:#x}, v22")
e("  s_setprio 3")
e(f"  s_mov_b32 s40, {LCG_A}")
e("  s_waitcnt lgkmcnt(0)")
e("  global_load_dword v20, v20, s[18:19] sc1   ; epoch")
e(f"  s_cmp_ge_u32 s2, {NR}")
e("  s_cbranch_scc1 L_fpoll")
role[0] = "rw9"
e("  s_min_u32 s20, s2, 31")
e("  s_mul_i32 s23, s2, 18")
e("  s_add_u32 s20, s20, s23")
e("  v_and_b32 v42, 31, v0")
e("  v_mul_u32_u24 v43, 48, v42")
e("  v_cmp_gt_u32 s[46:47], 19, v42")
e("  s_sub_u32 s22, 2047, s20")
e("  v_sub_u32 v42, s22, v42             ; 2047-idx")
e("  s_lshl_b32 s22, s2, 6")
e(f"  s_add_u32 s22, s22, {KOFF:#x}")
e("  v_mov_b32 v6, s22")
e("  s_waitcnt vmcnt(0)")
e("  v_mul_lo_u32 v20, v20, s40")
e(f"  v_add_u32 v20, {LCG_C}, v20        ; tag")
e("  v_mov_b32 v35, v20")
bar("A")
stamp(3)
e("  ds_read_b128 v[36:39], v43")
e("  ds_read_b128 v[48:51], v43 offset:16")
e("  ds_read_b32 v52, v43 offset:32")
e("  s_waitcnt lgkmcnt(1)")
e("  v_add_f32 v36, v36, v37")
e("  v_add_f32 v38, v38, v39")
e("  v_add_f32 v48, v48, v49")
e("  v_add_f32 v50, v50, v51")
e("  v_add_f32 v36, v36, v38")
e("  v_add_f32 v48, v48, v50")
e("  s_waitcnt lgkmcnt(0)")
e("  v_add_f32 v36, v36, v52")
e("  v_add_f32 v36, v36, v48")
e("  v_cmp_o_f32 vcc, v36, v36")
e("  v_cvt_pk_bf16_f32 v34, v36, v36")
e("  v_ashrrev_i32 v37, 31, v34")
e("  v_or_b32 v37, 0x80000000, v37")
e("  v_xor_b32 v34, v34, v37")
e("  v_cndmask_b32 v34, 0, v34, vcc")
e("  v_and_b32 v34, 0xffff0000, v34")
e("  v_or_b32 v34, v34, v42")
e("  v_cndmask_b32 v34, 0, v34, s[46:47]")
for d in ["quad_perm:[1,0,3,2] row_mask:0xf", "quad_perm:[2,3,0,1] row_mask:0xf", "row_half_mirror row_mask:0xf",
          "row_mirror row_mask:0xf", "row_bcast:15 row_mask:0xa"]:
    e("  s_nop 1")
    e(f"  v_max_u32_dpp v34, v34, v34 {d} bank_mask:0xf")
e("  s_mov_b32 exec_lo, 0x80000000")
e("  s_mov_b32 exec_hi, 0")
e("  global_store_dwordx2 v6, v[34:35], s[18:19] sc1")
e("  s_mov_b64 exec, -1")
bar("B")
stamp(4)
if want(5):
    e("  s_waitcnt vmcnt(0)")
    stamp(5)
poll_keys("rp")
stamp(6)
wave_max_u32(24, 26)
e("  s_and_b32 s25, s26, 0x7ff")
e("  s_sub_u32 s25, 2047, s25            ; idx")
e("  s_mul_i32 s27, s25, 1152")
e("  v_min_u32 v4, 8, v0")
e("  v_lshl_add_u32 v4, v4, 7, s27")
e("  global_load_dword v4, v4, s[4:5]")
e("  s_sub_u32 s28, s25, s20")
e("  v_mov_b32 v7, s28")
e("  v_mov_b32 v5, 4096")
e("  ds_write_b32 v5, v7")
e("  s_waitcnt lgkmcnt(0)")
bar("D")
e(f"  s_cmp_ge_u32 s2, {NRED}")
e("  s_cbranch_scc1 L_w9end")
e("  s_lshr_b32 s28, s2, 3")
e("  s_lshl_b32 s28, s28, 8              ; 256(j>>3)  (=1024 for j>=32)")
e("  s_and_b32 s29, s2, 3")
e("  s_and_b32 s30, s2, 4")
e("  s_lshl_b32 s30, s30, 1              ; 8u")
e("  s_cmp_lt_u32 s2, 32")
e("  s_cselect_b32 s31, 6, 5")
e("  s_cselect_b32 s32, 4, 3")
e("  s_lshl_b32 s29, s29, s31")
e("  s_add_u32 s27, s27, s28")
e("  s_add_u32 s27, s27, s29")
e("  s_add_u32 s27, s27, s30")
e("  v_and_b32 v49, 15, v0")
e("  v_lshrrev_b32 v50, 2, v49")
e("  v_lshlrev_b32 v50, s32, v50")
e("  v_and_b32 v51, 3, v49")
e("  v_lshl_add_u32 v50, v51, 1, v50")
e("  v_add_u32 v50, s27, v50")
e("  global_load_ushort v51, v50, s[4:5]")
e("  s_and_b32 s27, s26, 0xffff0000")
e("  s_ashr_i32 s28, s27, 31")
e("  s_not_b32 s28, s28")
e("  s_or_b32 s28, s28, 0x80000000")
e("  s_xor_b32 s27, s27, s28")
e("  s_and_b32 s27, s27, 0xffff0000      ; r as f32")
e("  v_mov_b32 v52, 0xbfb8aa3b")
e("  v_mul_f32 v52, s27, v52")
e("  v_exp_f32 v52, v52")
e("  s_nop 0")
e("  v_add_f32 v52, 1.0, v52")
e("  v_rcp_f32 v52, v52")
e("  s_nop 0")
e("  v_cvt_pk_bf16_f32 v52, v52, v52")
e("  v_lshlrev_b32 v52, 16, v52          ; r_sel")
e("  v_mul_u32_u24 v54, 48, v49")
e("  v_add_u32 v54, 5120, v54")
e(f"  v_mov_b32 v55, {EOFF:#x}")
e("  s_waitcnt vmcnt(0)")
e("  v_lshlrev_b32 v51, 16, v51")
e("  v_fma_f32 v51, v51, 0, v51          ; x + x*0")
e("  s_mov_b64 exec, 0xffff")
bar("E: partial sums in LDS")
stamp(7)
e("  ds_read_b128 v[32:35], v54")
e("  ds_read_b128 v[36:39], v54 offset:16")
e("  ds_read_b32 v48, v54 offset:32")
e("  s_waitcnt lgkmcnt(1)")
e("  v_add_f32 v32, v32, v33")
e("  v_add_f32 v34, v34, v35")
e("  v_add_f32 v36, v36, v37")
e("  v_add_f32 v38, v38, v39")
e("  v_add_f32 v32, v32, v34")
e("  v_add_f32 v36, v36, v38")
e("  s_waitcnt lgkmcnt(0)")
e("  v_add_f32 v32, v32, v48")
e("  v_add_f32 v32, v32, v36")
e("  v_cvt_pk_bf16_f32 v32, v32, v32")
e("  v_lshlrev_b32 v32, 16, v32          ; y bf16")
e("  v_mul_f32 v32, v32, v52")
e("  v_cvt_pk_bf16_f32 v32, v32, v32")
e("  v_lshlrev_b32 v32, 16, v32")
e("  v_add_f32 v32, v51, v32")
e("  v_cvt_pk_bf16_f32 v32, v32, v32")
e("  global_store_short v50, v32, s[14:15]")
stamp(8)
e("  s_cmp_lg_u32 s2, 0")
e("  s_cbranch_scc1 L_w9end")
e("  s_mov_b64 exec, 1")
e("  global_store_dword v55, v20, s[18:19] sc1")
e("L_w9end:")
fin()
role[0] = "fp"
e("L_fpoll:")
e("  v_lshlrev_b32 v7, 4, v0")
e("  s_mov_b32 m0, 0")
if R1: bar("R1")
e("  s_waitcnt vmcnt(0)")
e("  v_mul_lo_u32 v20, v20, s40")
e(f"  v_add_u32 v20, {LCG_C}, v20        ; tag")
bar("P0")
stamp(1)
poll_keys("fp")
stamp(2)
wave_max_u32(24, 24)
e("  s_and_b32 s25, s24, 0x7ff")
e("  s_sub_u32 s25, 2047, s25            ; idx")
e("  s_mul_i32 s25, s25, 1152")
e("  v_add_u32 v5, s25, v7")
if opts["dma"]:
    e("  global_load_lds_dwordx4 v5, s[4:5]")
    e("  s_mov_b64 exec, 0xff")
    e("  global_load_lds_dwordx4 v5, s[4:5] offset:1024")
    bar("X1")
    e("  s_waitcnt vmcnt(0)")
else:
    e("  global_load_dwordx4 v[8:11], v5, s[4:5]")
    e("  s_mov_b64 exec, 0xff")
    e("  global_load_dwordx4 v[12:15], v5, s[4:5] offset:1024")
    e("  s_mov_b64 exec, -1")
    bar("X1")
    e("  s_waitcnt vmcnt(1)")
    e("  ds_write_b128 v7, v[8:11]")
    e("  s_mov_b64 exec, 0xff")
    e("  s_waitcnt vmcnt(0)")
    e("  ds_write_b128 v7, v[12:15] offset:1024")
    e("  s_waitcnt lgkmcnt(0)")
stamp(3)
bar("X2")
if STAMP or ENC.startswith("fp:"): bar("H (diagnostic)")
if ENC:
    e("L_flush:")
    e("  s_cmp_eq_u32 s78, 0")
    e("  s_cbranch_scc1 L_end")
    if opts["encwg"] >= 0:
        e(f"  s_cmp_lg_u32 s2, {opts['encwg']}")
        e("  s_cbranch_scc1 L_end")
    e("  s_add_u32 s78, s78, 3000")
    e("L_spin:")
    e("  s_memrealtime s[58:59]")
    e("  s_waitcnt lgkmcnt(0)")
    e("  s_sub_u32 s58, s58, s78")
    e("  s_cmp_lt_i32 s58, 0")
    e("  s_cbranch_scc1 L_spin")
if STAMP:
    e("L_flush:")
    e("  s_mov_b64 exec, -1")
    e("  s_sleep 40")
    e("  s_mov_b32 s60, s76")
    e("  s_mul_i32 s56, s2, 10")
    e("  s_add_u32 s56, s56, s3")
    e("  s_lshl_b32 s56, s56, 6")
    e("  s_add_u32 s56, s56, 0x100000")
    e("  s_getreg_b32 s75, hwreg(HW_REG_XCC_ID)")
    e("  s_getreg_b32 s74, hwreg(HW_REG_HW_ID)")
    e("  s_waitcnt vmcnt(0)")
    e("  v_mov_b32 v120, s56")
    for i in range(16):
        e(f"  v_mov_b32 v{100+i}, s{60+i}")
    e("  s_mov_b64 exec, 1")
    for i in range(4):
        e(f"  global_store_dwordx4 v120, v[{100+4*i}:{103+4*i}], s[18:19] offset:{16*i}")
e("L_end:")
e("  s_endpgm")
e("L_codeend:")
e('.section .rodata,"a"')
e(".p2align 6")
e(f".amdhsa_kernel {NAME}_kernel")
e(f"  .amdhsa_next_free_vgpr {NVG}")
e("  .amdhsa_next_free_sgpr 80")
e(f"  .amdhsa_accum_offset {(NVG+3)//4*4}")
e("  .amdhsa_group_segment_fixed_size 0")
e("  .amdhsa_kernarg_size 64")
e("  .amdhsa_user_sgpr_count 2")
e("  .amdhsa_user_sgpr_kernarg_segment_ptr 1")
e("  .amdhsa_system_sgpr_workgroup_id_x 1")
e("  .amdhsa_float_denorm_mode_32 3")
e(".end_amdhsa_kernel")
print("\n".join(out))
```

```python
import sys
opts = dict(stamp=0, enc="", encwg=-1, xf="", guf="", dnf="", pff="", cpf="sc1",
            A=2, W1=4, W2=6, p0=14, pf3=1, dpre=2, dsplit=4, ss=1, nearly=8, touch=1, qack=1, qsl=0, b2=1, pfw=0, cpw=1, W0=2, n0=0, ackb=0, nodep=0, nocopy=0, nopfd=0, pmap=0)
for a in sys.argv[1:]:
    k, _, v = a.partition("=")
    if k not in opts: raise SystemExit("bad opt " + k)
    opts[k] = int(v) if isinstance(opts[k], int) else v.replace("+", " ")
STAMP = opts["stamp"]; ENC = opts["enc"]
NAME = "standalone__moe_arch_mod__prompt"
NR, NF, NRED = 112, 144, 36
NWG = NR + NF
SENT = 0xFF800001
SPIN = 0x40000
KOFF = 0x80000
EOFF = KOFF + 0x4000
LCG_A, LCG_C = 1664525, 1013904223
A = opts["A"]; R1 = 0; WL = max(opts["W1"], opts["W2"]); GATE = 1
out = []
e = out.append
role = ["none"]
def stamp(slot):
    if ENC:
        if ENC == f"{role[0]}:{slot}":
            e("  s_memrealtime s[58:59]")
            e("  s_waitcnt lgkmcnt(0)")
            e("  s_mov_b32 s78, s58")
        return
    if STAMP:
        e("  s_memrealtime s[58:59]")
        e("  s_waitcnt lgkmcnt(0)")
        e(f"  s_mov_b32 s{60+slot}, s58")
def want(slot):
    return STAMP or ENC == f"{role[0]}:{slot}"
def fin():
    if STAMP or ENC: e("  s_branch L_flush")
    else: e("  s_endpgm")
def bar(c):
    e(f"  s_barrier                           ; {c}")
DPPX = "row_mask:0xf bank_mask:0xf"
def wave_max_u32(v, s):
    for d in ["quad_perm:[1,0,3,2] row_mask:0xf", "quad_perm:[2,3,0,1] row_mask:0xf", "row_half_mirror row_mask:0xf",
              "row_mirror row_mask:0xf", "row_bcast:15 row_mask:0xa", "row_bcast:31 row_mask:0xc"]:
        e("  s_nop 1")
        e(f"  v_max_u32_dpp v{v}, v{v}, v{v} {d} bank_mask:0xf")
    e("  s_nop 0")
    e(f"  v_readlane_b32 s{s}, v{v}, 63")
def poll_keys(tag):
    e("  s_mov_b32 s57, 0")
    e(f"L_{tag}_loop:")
    e("  global_load_dwordx2 v[24:25], v21, s[18:19] sc1")
    e("  global_load_dwordx2 v[26:27], v22, s[18:19] sc1")
    e("  s_add_u32 s57, s57, 1")
    e(f"  s_cmp_gt_u32 s57, {SPIN}")
    e(f"  s_cbranch_scc1 L_{tag}_out")
    e("  s_waitcnt vmcnt(0)")
    e("  v_cmp_eq_u32 vcc, v25, v20")
    e("  v_cmp_eq_u32 s[42:43], v27, v20")
    e("  v_max_u32 v24, v24, v26")
    e("  s_and_b64 vcc, vcc, s[42:43]")
    e("  s_cmp_eq_u64 vcc, -1")
    e(f"  s_cbranch_scc0 L_{tag}_loop")
    e(f"L_{tag}_out:")
    e("  s_waitcnt vmcnt(0)")
    if STAMP: e("  s_mov_b32 s72, s57")

e(f"; @launch grid=({NWG},1,1) block=(640,1,1) lds=8192")
e('.amdgcn_target "amdgcn-amd-amdhsa--gfx950"')
e(".text")
e(f".globl {NAME}_kernel")
e(".p2align 8")
e(f".type {NAME}_kernel,@function")
e(f"{NAME}_kernel:")
e("  s_load_dwordx16 s[4:19], s[0:1], 0")
if ENC:
    e("  s_mov_b32 s78, 0")
    if ENC == "start":
        e("  s_memrealtime s[58:59]")
        e("  s_waitcnt lgkmcnt(0)")
        e("  s_mov_b32 s78, s58")
if STAMP:
    e("  s_memrealtime s[76:77]")
    for i in range(0, 16, 2): e(f"  s_mov_b64 s[{60+i}:{61+i}], 0")
e("  v_lshrrev_b32 v1, 6, v0")
e("  v_and_b32 v0, 63, v0")
e("  v_readfirstlane_b32 s3, v1")
e("  v_and_b32 v3, 7, v0")
e("  s_and_b32 s21, s2, 7                ; L2 group")
e("  s_cmp_eq_u32 s3, 9")
e("  s_cbranch_scc0 L_notw9")
e("  s_getpc_b64 s[44:45]")
e("L_pc:")
e("  v_min_u32 v28, (L_codeend-L_pc-4)/128, v0")
e("  v_lshlrev_b32 v28, 7, v28")
e("  global_load_dword v29, v28, s[44:45]")
e("  s_branch L_w9")
e("L_notw9:")
e(f"  s_cmp_ge_u32 s2, {NR}")
e("  s_cbranch_scc1 L_ffn")
role[0] = "rt"
e("  v_lshrrev_b32 v2, 3, v0             ; g")
e("  s_lshl_b32 s22, s3, 7")
e("  v_lshl_add_u32 v4, v3, 4, s22")
e("  s_min_u32 s20, s2, 31")
e("  s_mul_i32 s23, s2, 18")
e("  s_add_u32 s20, s20, s23")
e("  s_mul_i32 s23, s20, 1152")
e("  v_mul_u32_u24 v5, 3*1152, v2")
e("  v_add3_u32 v5, v5, v4, s23")
e("  s_mul_i32 s24, s2, 3")
e("  s_add_u32 s24, s24, s3")
e("  s_lshl_b32 s25, s24, 10")
e("  v_lshl_add_u32 v40, v0, 4, s25")
e(f"  v_mov_b32 v44, {SENT:#x}")
e("  v_mov_b32 v45, v44")
e("  v_mov_b64 v[46:47], v[44:45]")
e("  s_cmp_ge_u32 s3, 3")
e("  s_cselect_b32 s24, 999, s24")
e(f"  s_cmp_ge_u32 s24, {NRED*9}")
e("  s_waitcnt lgkmcnt(0)")
stamp(1)
e("  global_load_dwordx4 v[8:11], v4, s[6:7]")
e("  s_mov_b32 exec_hi, 0x00ffffff")
e(f"  global_load_dwordx4 v[16:19], v5, s[4:5] {opts['xf']}")
e("  s_mov_b32 exec_hi, 0x0000ffff")
e(f"  global_load_dwordx4 v[20:23], v5, s[4:5] offset:1152 {opts['xf']}")
e(f"  global_load_dwordx4 v[24:27], v5, s[4:5] offset:2304 {opts['xf']}")
e("  s_mov_b32 exec_hi, -1")
e("  s_cbranch_scc1 L_rt2")
e("  global_store_dwordx4 v40, v[44:47], s[18:19] sc1")
e("  s_branch L_rt2")
role[0] = "ffn"
e("L_ffn:")
e(f"  s_cmp_ge_u32 s2, {NWG}")
e("  s_cbranch_scc1 L_end")
e(f"  s_sub_u32 s20, s2, {NR}")
e("  s_lshr_b32 s20, s20, 3")
e("  s_mul_i32 s22, s21, 18")
e("  s_add_u32 s20, s20, s22             ; slice 0..143")
e("  s_cmp_ge_u32 s3, 4")
e("  s_cbranch_scc1 L_dn")
e("  v_lshrrev_b32 v2, 3, v0             ; g")
e("  s_movk_i32 s22, 9216")
e("  s_mov_b32 s23, 0")
e(f"  s_mov_b32 s24, {15*9216}")
e("  s_mov_b32 s25, 0")
e("  s_mov_b32 s29, 0")
e("  s_bitcmp1_b32 s20, 0")
e(f"  s_cselect_b32 s33, {16*A}, 0")
e(f"  s_cselect_b32 s26, {(-(16*(2*A-1)+1)*9216) & 0xffffffff:#x}, s24")
e("  s_cselect_b32 s27, -1, 0")
e(f"  s_cselect_b32 s28, {(16*(A+1)-1)*9216}, s24")
e("  s_mul_i32 s34, s3, 144")
e("  s_add_u32 s35, s34, s33")
e("  s_mul_i32 s36, s35, s22")
e("  s_lshl_b32 s37, s20, 6")
e("  s_add_u32 s36, s36, s37")
e("  v_mul_u32_u24 v4, 2*9216, v2")
e("  v_and_b32 v5, 3, v0")
e("  v_lshlrev_b32 v5, 4, v5")
e("  v_add3_u32 v4, v4, v5, s36")
e("  v_mov_b32 v5, 0")
e("  v_cmp_gt_u32 vcc, 4, v3")
e("  s_waitcnt lgkmcnt(0)")
stamp(1)
e("  v_mov_b32 v8, s8")
e("  v_mov_b32 v9, s9")
e("  v_mov_b32 v10, s10")
e("  v_mov_b32 v11, s11")
e("  v_cndmask_b32 v8, v10, v8, vcc")
e("  v_cndmask_b32 v9, v11, v9, vcc")
e("  v_lshl_add_u64 v[4:5], v[4:5], 0, v[8:9]")
RB = 100; NS = WL + 2
NVG = max(132, RB + 4*NS)
def ring(i): return RB + 4*(i % NS)
def guload(i):
    e(f"  global_load_dwordx4 v[{ring(i)}:{ring(i)+3}], v[4:5], off {opts['guf']}")
    if i == 17: return
    if i % 2 == 0: st = 22
    elif (i+1)//2 == A: st = 26
    elif (i+1)//2 == 2*A: st = 28
    else: st = 24
    e(f"  v_lshl_add_u64 v[4:5], v[4:5], 0, s[{st}:{st+1}]")
def gsetup():
    e("  s_mov_b32 s30, 0x05040100")
    e("  s_mov_b32 s31, 0x07060302")
    e("  v_lshlrev_b32 v7, 2, v2             ; 4g")
    e("  s_lshl_b32 s35, s35, 1")
    e("  s_lshl_b32 s34, s34, 1")
    e(f"  s_sub_u32 s33, {16*A}, s33")
    e("  s_lshl_b32 s33, s33, 1")
    e("  s_add_u32 s33, s33, s34")
    e(f"  s_add_u32 s34, s34, {64*A}")
    e("  v_add_u32 v2, s35, v7               ; group 1")
    e("  v_add_u32 v1, s33, v7               ; group 2")
    e("  v_add_u32 v6, s34, v7               ; group 3")
    e("  v_and_b32 v7, 3, v0")
    e("  v_bfe_u32 v72, v0, 2, 1")
    e("  v_lshl_add_u32 v7, v7, 1, v72       ; slot>>3")
    e("  v_mul_u32_u24 v7, 272, v7")
    e("  v_bfe_u32 v72, v0, 3, 1")
    e("  v_lshl_add_u32 v7, v72, 2, v7")
    e("  s_lshl_b32 s33, s3, 3")
    e("  s_add_u32 s33, s33, 2048")
    e("  v_add_u32 v7, s33, v7")
    for r in range(88, 98, 2):
        e(f"  v_mov_b64 v[{r}:{r+1}], 0")
    e("  s_movk_i32 s38, 0xff")
    e("  s_mov_b32 s39, 0xff00")
def gperm(k):
    for c in range(8):
        d = 8 + 32*(k >> 2) + 4*c + (k & 3) if k < 8 else 72 + c
        e(f"  v_perm_b32 v{d}, v{ring(2*k+1)+(c>>1)}, v{ring(2*k)+(c>>1)}, s{30+(c&1)}")
def wof(i):
    if i < opts["n0"]: return opts["W0"]
    return opts["W1"] if i < 2*A else opts["W2"]
done = 0; permd = 0; setup = False
for i in range(18):
    w = wof(i)
    lim = w - 1
    if 1 <= i <= opts['ss']: lim = 0
    if i - done > lim:
        if not setup: gsetup(); setup = True
        e(f"  s_waitcnt vmcnt({lim})")
        done = i - lim
        if i == max(opts['ss'], opts['n0']-1): stamp(9)
    while i - NS >= 2*permd:
        assert 2*permd + 2 <= done
        gperm(permd); permd += 1
    guload(i)
    if i + 1 == opts["p0"]: bar("P0")
    if i == 17:
        stamp(2)
        if GATE: bar("X1")
        else: e("  ds_write_b32 v98, v98                ; flag: stream issued")
    nxt = wof(i + 1) - 1
    if i == 17 or i + 1 - done > nxt:
        while 2*permd + 2 <= done:
            gperm(permd); permd += 1
while permd < 9:
    e(f"  s_waitcnt vmcnt({18 - 2*permd - 2})")
    gperm(permd); permd += 1
stamp(3)
bar("X2")
stamp(4)
def xaddr(k):
    if k < A: return 2, 32*k
    if k < 2*A: return 1, 32*(k-A)
    return 6, 32*(k-2*A)
nrd = 0; need = {}
k = 0
while k < 8:
    r, o = xaddr(k); r2, o2 = xaddr(k+1)
    if r == r2:
        e(f"  ds_read2_b32 v[{80+k}:{81+k}], v{r} offset0:{o//4} offset1:{o2//4}"); nrd += 1
    else:
        e(f"  ds_read_b32 v{80+k}, v{r} offset:{o}"); e(f"  ds_read_b32 v{81+k}, v{r2} offset:{o2}"); nrd += 2
    k += 2
    if k % 4 == 0: need[k//4 - 1] = nrd
r, o = xaddr(8)
e(f"  ds_read_b32 v90, v{r} offset:{o}")
e(f"  ds_read_b32 v95, v{r} offset:{o}")
nrd += 2
for s_ in range(2):
    e(f"  s_waitcnt lgkmcnt({nrd - need[s_]})")
    for c in range(8):
        cc = "0" if s_ == 0 else f"v[{100+4*c}:{103+4*c}]"
        e(f"  v_mfma_f32_16x16x32_bf16 v[{100+4*c}:{103+4*c}], v[{80+4*s_}:{83+4*s_}], v[{8+32*s_+4*c}:{11+32*s_+4*c}], {cc}")
e("  s_waitcnt lgkmcnt(0)")
XW = {0: 90, 1: 94, 2: 88, 3: 92}
for c in range(8):
    a0 = XW[c & 3]; b0 = 72 + (c & 4)
    e(f"  v_mfma_f32_16x16x32_bf16 v[{100+4*c}:{103+4*c}], v[{a0}:{a0+3}], v[{b0}:{b0+3}], v[{100+4*c}:{103+4*c}]")
e("  s_mov_b64 exec, s[38:39]")
e("  s_nop 0")
for c in range(0, 8, 2):
    e(f"  ds_write2_b32 v7, v{100+4*c}, v{104+4*c} offset0:{8*c} offset1:{8*c+8}")
    if c < 6: e("  s_nop 0")
e("  s_waitcnt lgkmcnt(0)")
bar("H")
stamp(5)
e(f"  s_cmp_lt_u32 s2, {NR+NRED}")
e("  s_cbranch_scc1 L_red")
fin()
role[0] = "dn"
e("L_dn:")
e("  s_cmp_eq_u32 s3, 8")
e("  s_cbranch_scc1 L_w8")
e("  s_sub_u32 s33, s3, 4                ; w'")
e("  v_lshrrev_b32 v2, 4, v0             ; q")
e("  v_and_b32 v1, 15, v0                ; n")
e("  s_mul_i32 s24, s20, 32*1152")
e("  s_add_u32 s24, s24, 4032")
e("  v_mul_u32_u24 v4, 8*1152, v2")
e("  v_add_u32 v4, s24, v4")
e("  v_lshlrev_b32 v5, 3, v1")
e("  v_add_u32 v5, 1024, v5")
e("  v_add_u32 v5, v5, v4")
e("  s_lshl_b32 s25, s33, 8")
e("  v_lshl_add_u32 v6, v1, 4, s25")
e("  v_add_u32 v4, v6, v4")
e("  s_mov_b32 s30, 0x05040100")
e("  s_mov_b32 s31, 0x07060302")
e("  s_mov_b32 s32, 0xbfb8aa3b           ; -log2e")
e("  v_and_b32 v6, 3, v0")
for r in range(4):
    e(f"  v_cmp_eq_u32 vcc, {r}, v6")
    e("  s_nop 1")
    e(f"  v_cndmask_b32 v{132+r}, 0, -1, vcc")
e("  v_lshrrev_b32 v7, 3, v0")
e("  v_lshl_add_u32 v7, v0, 1, v7")
e("  v_lshlrev_b32 v7, 4, v7")
e("  v_add_u32 v7, 2048, v7")
e("  v_lshrrev_b32 v136, 2, v1")
e(f"  v_mul_u32_u24 v136, {NF*64}, v136")
e("  v_lshl_add_u32 v136, v6, 4, v136")
e("  s_lshl_b32 s26, s20, 6")
e(f"  s_add_u32 s27, s26, {32*NF*64}")
e("  v_add_u32 v138, s27, v136           ; D2 offset")
e(f"  s_mul_i32 s25, s33, {8*NF*64}")
e("  s_add_u32 s25, s25, s26")
e("  v_add_u32 v136, s25, v136           ; D0 offset")
e(f"  v_add_u32 v137, {4*NF*64}, v136      ; D1 offset")
e("  s_waitcnt lgkmcnt(0)")
bar("P0")
def dload(j):
    e(f"  global_load_dwordx4 v[{8+4*j}:{11+4*j}], v4, s[12:13] offset:{1152*j-4032} {opts['dnf']}")
def dperm(a, nout):
    e(f"  s_waitcnt vmcnt({nout})")
    for c in range(8):
        e(f"  v_perm_b32 v{56+4*c+a}, v{8+4*(2*a+1)+(c>>1)}, v{8+4*(2*a)+(c>>1)}, s{30+(c&1)}")
def hchain():
    e("  ds_read_b128 v[140:143], v7")
    e("  ds_read_b128 v[144:147], v7 offset:16")
    e("  s_waitcnt lgkmcnt(1)")
    e("  v_add_f32 v140, v140, v141")
    e("  v_add_f32 v142, v142, v143")
    e("  s_waitcnt lgkmcnt(0)")
    e("  v_add_f32 v144, v144, v145")
    e("  v_add_f32 v146, v146, v147")
    e("  v_add_f32 v140, v140, v142")
    e("  v_add_f32 v144, v144, v146")
    e("  v_add_f32 v140, v140, v144")
    e("  v_cvt_pk_bf16_f32 v140, v140, v140")
    e("  v_lshlrev_b32 v140, 16, v140")
    e("  v_mul_f32 v141, s32, v140")
    e("  v_exp_f32 v141, v141")
    e("  s_nop 0")
    e("  v_add_f32 v141, 1.0, v141")
    e("  v_rcp_f32 v141, v141")
    e("  s_nop 0")
    e("  v_mul_f32 v141, v140, v141")
    e("  v_cvt_pk_bf16_f32 v141, v141, v141")
    e("  v_lshlrev_b32 v141, 16, v141")
    e(f"  v_mul_f32_dpp v141, v140, v141 row_ror:8 {DPPX}   ; h")
    e("  s_nop 1")
    e(f"  v_mov_b32_dpp v142, v141 quad_perm:[1,1,3,3] {DPPX}")
    e("  v_cvt_pk_bf16_f32 v141, v141, v142  ; (h[n],h[n+1])")
    e("  s_nop 1")
def avar(r):
    for a in range(4):
        e(f"  v_and_b32_dpp v{104+4*r+a}, v141, v{132+r} row_newbcast:{2*a} {DPPX}")
def dm(t):
    u = t >> 2; r = t & 3
    cc = "0" if r == 0 else f"v[{120+4*u}:{123+4*u}]"
    e(f"  v_mfma_f32_16x16x32_bf16 v[{120+4*u}:{123+4*u}], v[{104+4*r}:{107+4*r}], v[{56+4*t}:{59+4*t}], {cc}")
def down_body(tail):
    DS = opts["dsplit"]; DP = opts["dpre"]
    if GATE: bar("X1")
    stamp(2)
    if tail:
        for j in range(8):
            e(f"  global_load_dwordx2 v[{40+2*j}:{41+2*j}], v5, s[12:13] offset:{1152*j-4032} {opts['dnf']}")
            if j + 1 == DS and DS < 8:
                bar("X2"); stamp(4)
        for j in range(8): dload(j)
        if DS == 8:
            bar("X2"); stamp(4)
        e("  s_waitcnt vmcnt(8)")
        for a in range(4):
            for c in range(4):
                e(f"  v_perm_b32 v{88+4*c+a}, v{40+2*(2*a+1)+(c>>1)}, v{40+2*(2*a)+(c>>1)}, s{30+(c&1)}")
    else:
        for j in range(8):
            dload(j)
            if j + 1 == DS:
                bar("X2"); stamp(4)
    for a in range(DP): dperm(a, 6-2*a)
    stamp(3)
    bar("H")
    stamp(5)
    hchain()
    if DP < 4:
        for r in range(4): avar(r)
        if tail:
            for r in range(4): dm(8+r)
        for a in range(DP, 4): dperm(a, 6-2*a)
        stamp(6)
        e("  s_nop 1")
        for r in range(4):
            dm(r); dm(4+r)
    else:
        avar(0); avar(1)
        if tail: dm(8)
        dm(0); dm(4)
        avar(2)
        if tail: dm(9)
        dm(1); dm(5)
        avar(3)
        if tail: dm(10)
        dm(2); dm(6)
        if tail: dm(11)
        dm(3); dm(7)
    e("  s_mov_b64 exec, 0xffff")
    if tail:
        e("  s_nop 4")
        e("  global_store_dwordx4 v138, v[128:131], s[18:19] sc1")
    else:
        e("  s_nop 5")
    e("  global_store_dwordx4 v136, v[120:123], s[18:19] sc1")
    e("  global_store_dwordx4 v137, v[124:127], s[18:19] sc1")
    stamp(7)
    e(f"  s_cmp_lt_u32 s2, {NR+NRED}")
    e("  s_cbranch_scc1 L_red")
    if want(8):
        e("  s_waitcnt vmcnt(0)")
        stamp(8)
    fin()
e("  s_cmp_eq_u32 s3, 7")
e("  s_cbranch_scc1 L_dnt")
down_body(False)
e("L_dnt:")
down_body(True)
NVG = max(NVG, 148)
role[0] = "red"
e("L_w8:")
e(f"  s_cmp_ge_u32 s2, {NR+NRED}")
e("  s_cbranch_scc1 L_end")
e("  s_waitcnt lgkmcnt(0)")
bar("P0"); bar("X1"); bar("X2"); bar("H")
e("L_red:")
e("  s_mov_b64 exec, -1")
e(f"  s_sub_u32 s24, s2, {NR}")
e("  s_mul_i32 s24, s24, 9")
e("  s_add_u32 s24, s24, s3")
e("  s_lshl_b32 s24, s24, 10")
e("  v_lshl_add_u32 v8, v0, 4, s24")
e(f"  v_mov_b32 v9, {SENT:#x}")
e("  v_and_b32 v10, 3, v0")
e("  v_lshrrev_b32 v11, 4, v0")
e("  v_lshl_add_u32 v10, v10, 2, v11     ; slot=4c+r")
e("  v_mul_u32_u24 v10, 48, v10")
e("  s_lshl_b32 s27, s3, 2")
e("  s_add_u32 s27, s27, 5120")
e("  v_add_u32 v10, s27, v10")
e("  s_mov_b32 s34, 0x000f000f")
e("  s_mov_b32 s35, 0x000f000f")
e("  s_mov_b32 s57, 0")
if opts["qack"]: e("  s_waitcnt vmcnt(0)")
bar("Q")
stamp(10)
e("L_red_loop:")
e("  global_load_dwordx4 v[12:15], v8, s[18:19] sc1")
e("  s_add_u32 s57, s57, 1")
e(f"  s_cmp_gt_u32 s57, {SPIN}")
e("  s_cbranch_scc1 L_red_out")
e("  s_waitcnt vmcnt(0)")
e("  v_cmp_ne_u32 s[28:29], v12, v9")
e("  v_cmp_ne_u32 s[30:31], v13, v9")
e("  v_cmp_ne_u32 s[32:33], v14, v9")
e("  v_cmp_ne_u32 vcc, v15, v9")
e("  s_and_b64 s[28:29], s[28:29], s[30:31]")
e("  s_and_b64 s[32:33], s[32:33], vcc")
e("  s_and_b64 s[28:29], s[28:29], s[32:33]")
e("  s_cmp_eq_u64 s[28:29], -1")
if opts["qsl"]:
    e("  s_cbranch_scc1 L_red_out")
    e(f"  s_sleep {opts['qsl']}")
    e("  s_branch L_red_loop")
else:
    e("  s_cbranch_scc0 L_red_loop")
e("L_red_out:")
e("  s_waitcnt vmcnt(0)")
if STAMP: e("  s_mov_b32 s72, s57")
stamp(11)
e("  v_permlane32_swap_b32 v12, v14")
e("  v_permlane32_swap_b32 v13, v15")
e("  v_add_f32 v12, v12, v14")
e("  v_add_f32 v13, v13, v15")
e("  s_nop 1")
e("  v_permlane16_swap_b32 v12, v13")
e("  v_add_f32 v12, v12, v13")
e("  s_nop 1")
e(f"  v_add_f32_dpp v12, v12, v12 row_ror:4 {DPPX}")
e("  s_nop 1")
e(f"  v_add_f32_dpp v12, v12, v12 row_ror:8 {DPPX}")
e("  s_mov_b64 exec, s[34:35]")
e("  ds_write_b32 v10, v12")
e("  s_waitcnt lgkmcnt(0)")
bar("E")
fin()
role[0] = "rt"
NPF = 14 - opts["nearly"]//8
e("L_rt2:")
e("  s_lshl_b32 s25, s3, 2")
e("  v_mul_u32_u24 v41, 3*48, v2")
e("  v_add_u32 v41, s25, v41")
e("  s_mov_b32 s28, 0x01010101")
e("  s_mov_b32 s29, 0x01010101")
e("  s_lshr_b32 s33, s2, 3               ; ridx")
e(f"  s_mul_i32 s27, s3, {NPF}")
e("  s_add_u32 s27, s27, s33")
PD = -(-5184//(9*NPF))
e(f"  s_mul_i32 s26, s21, {576*1152}")
if opts["pmap"]:
    e("  s_mul_i32 s34, s33, 9")
    e("  s_add_u32 s34, s34, s3")
    e(f"  s_mul_i32 s34, s34, {PD}")
else:
    e(f"  s_mul_i32 s34, s27, {PD}")
e("  v_add_u32 v42, s34, v0")
e("  v_min_u32 v42, 5183, v42")
e("  v_lshl_add_u32 v42, v42, 7, s26")
NU = 9 - 2*A; N4 = NU*64*9; PER = -(-N4//(9*NPF))
assert PER <= 32
e(f"  s_mul_i32 s38, s27, {PER}")
e("  v_add_u32 v49, s38, v0")
e(f"  v_min_u32 v49, {N4-1}, v49")
e("  v_mul_u32_u24 v50, 7282, v49")
e("  v_lshrrev_b32 v50, 16, v50")
for it_ in range(N4): assert (it_*7282) >> 16 == it_//9
e("  v_mul_u32_u24 v51, 9, v50")
e("  v_sub_u32 v51, v49, v51             ; line = item%9")
e("  v_bfe_u32 v52, v50, 4, 2            ; wv")
e("  v_mul_u32_u24 v52, 144, v52")
e("  v_lshrrev_b32 v49, 6, v50           ; u")
e("  v_lshl_add_u32 v52, v49, 4, v52")
e("  v_and_b32 v50, 15, v50")
e("  v_add_u32 v50, v50, v52")
e(f"  v_add_u32 v50, {32*A}, v50            ; row")
e("  v_mul_u32_u24 v50, 9216, v50")
e("  v_lshl_add_u32 v50, v51, 7, v50")
e("  s_mul_i32 s39, s21, 1152")
e("  v_add_u32 v50, s39, v50")
C3 = opts["pf3"]
if C3:
    n3 = 4*2*16*C3; P3 = -(-n3//(9*NPF))
    sh = {1: 4, 2: 5}[C3]
    e(f"  s_mul_i32 s38, s27, {P3}")
    e("  v_add_u32 v49, s38, v3")
    e(f"  v_min_u32 v49, {n3-1}, v49")
    e(f"  v_lshrrev_b32 v51, {sh+1}, v49        ; wv")
    e("  v_mul_u32_u24 v51, 144, v51")
    e(f"  v_bfe_u32 v52, v49, {sh}, 1")
    e(f"  v_mul_u32_u24 v52, {16*A}, v52")
    e(f"  v_and_b32 v49, {(1<<sh)-1}, v49")
    e("  v_add3_u32 v51, v51, v52, v49")
    e(f"  v_add_u32 v51, {16*(A-C3)}, v51       ; row")
    e("  v_mul_u32_u24 v51, 9216, v51")
    e("  s_sub_u32 s38, 3, s21")
    e("  s_and_b32 s38, s38, 7")
    e("  s_lshl_b32 s41, s38, 7")
    e("  s_add_u32 s41, s41, s39")
    e("  v_add_u32 v51, s41, v51             ; class3 offset (first pair)")
    e("  s_cmp_eq_u32 s38, 0")
    e("  s_cselect_b32 s41, 1024, 0")
    e(f"  s_cselect_b32 s37, {(((1<<P3)-1)*0x101):#x}, {(1<<P3)-1}")
    e("  v_add_u32 v52, s41, v51")
    e("  v_cmp_eq_u32 vcc, 4, v2")
    e("  s_nop 1")
    e("  v_cndmask_b32 v50, v50, v51, vcc")
    e("  v_cmp_eq_u32 vcc, 5, v2")
    e("  s_nop 1")
    e("  v_cndmask_b32 v50, v50, v52, vcc")
else:
    e("  s_mov_b32 s37, 0")
e(f"  s_mov_b32 s36, {(1<<PER)-1:#x}")
e("  s_waitcnt vmcnt(0)")
stamp(2)
for d in range(4):
    for i in range(3):
        c = "0" if d == 0 else f"v{32+i}"
        e(f"  v_dot2_f32_bf16 v{32+i}, v{16+4*i+d}, v{8+d}, {c}")
e("  s_nop 1")
for dp in ["quad_perm:[1,0,3,2]", "quad_perm:[2,3,0,1]", "row_half_mirror"]:
    for i in range(3):
        e(f"  v_add_f32_dpp v{32+i}, v{32+i}, v{32+i} {dp} {DPPX}")
e("  s_mov_b64 exec, s[28:29]")
e("  ds_write2_b32 v41, v32, v33 offset0:0 offset1:12")
e("  ds_write_b32 v41, v34 offset:96")
e("  s_mov_b64 exec, s[36:37]")
e("  s_waitcnt lgkmcnt(0)")
bar("A")
stamp(3)
bar("B: key store issued")
e(f"  s_cmp_ge_u32 s33, {NPF}")
e("  s_cbranch_scc1 L_nopf")
e(f"  global_load_dword v49, v50, s[8:9] {opts['pff']}")
e(f"  global_load_dword v51, v50, s[10:11] {opts['pff']}")
mm = (1 << PD) - 1
e(f"  s_mov_b32 exec_lo, {mm & 0xffffffff:#x}")
e(f"  s_mov_b32 exec_hi, {mm >> 32:#x}")
if opts["pfw"]: e(f"  s_waitcnt vmcnt({2-opts['pfw']})")
if opts["b2"]: bar("B2")
stamp(9)
if not opts["nopfd"]: e(f"  global_load_dword v48, v42, s[12:13] {opts['pff']}")
bar("C: late pollers may start")
e("L_nopf:")
e("  s_mov_b64 exec, -1")
e("  s_mov_b32 s30, 0xffff0000")
e("  s_mov_b32 s31, 0x07060302")
for d in range(16, 28):
    e(f"  v_lshlrev_b32 v32, 16, v{d}")
    e(f"  v_and_b32 v33, s30, v{d}")
    e("  v_fma_f32 v32, v32, 0, v32")
    e("  v_fma_f32 v33, v33, 0, v33")
    e(f"  v_perm_b32 v{d}, v33, v32, s31")
e("  v_mul_u32_u24 v33, 3, v2            ; 3g")
e("  v_mov_b32 v32, 4096")
if want(8):
    e("  s_waitcnt vmcnt(0)")
    stamp(8)
bar("D: winner in LDS")
stamp(4)
e("  ds_read_b32 v32, v32")
e("  s_waitcnt lgkmcnt(0)")
e("  v_sub_u32 v32, v32, v33")
for i in range(3):
    e(f"  v_cmp_ne_u32 vcc, {i}, v32")
    e(f"  s_and_b32 vcc_hi, vcc_hi, {0x00ffffff if i == 0 else 0x0000ffff:#x}")
    e("  s_mov_b64 exec, vcc")
    if not opts["nocopy"]: e(f"  global_store_dwordx4 v5, v[{16+4*i}:{19+4*i}], s[14:15] offset:{1152*i} {opts['cpf']}")
    e("  s_mov_b64 exec, -1")
stamp(6)
if want(7):
    e("  s_waitcnt vmcnt(0)")
    stamp(7)
fin()
e("L_w9:")
e(f"  s_cmp_ge_u32 s2, {NWG}")
e("  s_cbranch_scc1 L_end")
e(f"  v_mov_b32 v20, {EOFF:#x}")
e("  v_lshlrev_b32 v21, 6, v0")
e(f"  v_add_u32 v21, {KOFF:#x}, v21")
e(f"  v_min_u32 v22, {NR-65}, v0")
e("  v_lshlrev_b32 v22, 6, v22")
e(f"  v_add_u32 v22, {KOFF+4096:#x}, v22")
e("  s_setprio 3")
e(f"  s_mov_b32 s40, {LCG_A}")
e("  s_waitcnt lgkmcnt(0)")
e("  global_load_dword v20, v20, s[18:19] sc1   ; epoch")
e(f"  s_cmp_ge_u32 s2, {NR}")
e("  s_cbranch_scc1 L_fpoll")
role[0] = "rw9"
e("  s_lshr_b32 s33, s2, 3               ; ridx")
e("  s_mul_i32 s22, s21, 14")
e("  s_add_u32 s22, s22, s33             ; slot")
e("  s_lshl_b32 s22, s22, 6")
e(f"  s_add_u32 s22, s22, {KOFF:#x}")
e("  v_mov_b32 v6, s22")
if opts["touch"]: e("  global_load_dword v30, v6, s[18:19] sc1")
e("  s_min_u32 s20, s2, 31")
e("  s_mul_i32 s23, s2, 18")
e("  s_add_u32 s20, s20, s23")
e("  v_and_b32 v42, 31, v0")
e("  v_mul_u32_u24 v43, 48, v42")
e("  v_cmp_gt_u32 s[46:47], 19, v42")
e("  s_sub_u32 s22, 2047, s20")
e("  v_sub_u32 v42, s22, v42             ; 2047-idx")
e(f"  s_waitcnt vmcnt({1 if opts['touch'] else 0})")
e("  v_mul_lo_u32 v20, v20, s40")
e(f"  v_add_u32 v20, {LCG_C}, v20        ; tag")
e("  v_mov_b32 v35, v20")
bar("A")
stamp(3)
e("  ds_read_b128 v[36:39], v43")
e("  ds_read_b128 v[48:51], v43 offset:16")
e("  ds_read_b32 v52, v43 offset:32")
e("  s_waitcnt lgkmcnt(1)")
e("  v_add_f32 v36, v36, v37")
e("  v_add_f32 v38, v38, v39")
e("  v_add_f32 v48, v48, v49")
e("  v_add_f32 v50, v50, v51")
e("  v_add_f32 v36, v36, v38")
e("  v_add_f32 v48, v48, v50")
e("  s_waitcnt lgkmcnt(0)")
e("  v_add_f32 v36, v36, v52")
e("  v_add_f32 v36, v36, v48")
e("  v_cmp_o_f32 vcc, v36, v36")
e("  v_cvt_pk_bf16_f32 v34, v36, v36")
e("  v_ashrrev_i32 v37, 31, v34")
e("  v_or_b32 v37, 0x80000000, v37")
e("  v_xor_b32 v34, v34, v37")
e("  v_cndmask_b32 v34, 0, v34, vcc")
e("  v_and_b32 v34, 0xffff0000, v34")
e("  v_or_b32 v34, v34, v42")
e("  v_cndmask_b32 v34, 0, v34, s[46:47]")
for d in ["quad_perm:[1,0,3,2] row_mask:0xf", "quad_perm:[2,3,0,1] row_mask:0xf", "row_half_mirror row_mask:0xf",
          "row_mirror row_mask:0xf", "row_bcast:15 row_mask:0xa"]:
    e("  s_nop 1")
    e(f"  v_max_u32_dpp v34, v34, v34 {d} bank_mask:0xf")
e("  s_mov_b32 exec_lo, 0x80000000")
e("  s_mov_b32 exec_hi, 0")
e("  global_store_dwordx2 v6, v[34:35], s[18:19] sc1")
e("  s_mov_b64 exec, -1")
stamp(4)
if opts["ackb"]: e("  s_waitcnt vmcnt(0)")
bar("B")
e(f"  s_cmp_ge_u32 s33, {NPF}")
e("  s_cbranch_scc1 L_early")
if opts["b2"]: bar("B2")
bar("C")
e("L_early:")
e("  s_waitcnt vmcnt(0)")
stamp(5)
if opts["nodep"]: e("  v_mov_b32 v24, 0")
else: poll_keys("rp")
stamp(6)
wave_max_u32(24, 26)
e("  s_and_b32 s25, s26, 0x7ff")
e("  s_sub_u32 s25, 2047, s25            ; idx")
e("  s_mul_i32 s27, s25, 1152")
e("  v_min_u32 v4, 8, v0")
e("  v_lshl_add_u32 v4, v4, 7, s27")
e("  global_load_dword v4, v4, s[4:5]")
e("  s_sub_u32 s28, s25, s20")
e("  v_mov_b32 v7, s28")
e("  v_mov_b32 v5, 4096")
e("  ds_write_b32 v5, v7")
e("  s_waitcnt lgkmcnt(0)")
bar("D")
fin()
role[0] = "fp"
e("L_fpoll:")
e("  v_lshlrev_b32 v7, 4, v0")
e("  s_mov_b32 m0, 0")
e(f"  s_sub_u32 s33, s2, {NR}              ; reducer j")
e("  s_lshr_b32 s28, s33, 3")
e("  s_lshl_b32 s28, s28, 8              ; 256(j>>3)  (=1024 for j>=32)")
e("  s_and_b32 s29, s33, 3")
e("  s_and_b32 s30, s33, 4")
e("  s_lshl_b32 s30, s30, 1              ; 8u")
e("  s_cmp_lt_u32 s33, 32")
e("  s_cselect_b32 s31, 6, 5")
e("  s_cselect_b32 s32, 4, 3")
e("  s_lshl_b32 s29, s29, s31")
e("  s_add_u32 s27, s28, s29")
e("  s_add_u32 s27, s27, s30")
e("  v_and_b32 v49, 15, v0")
e("  v_lshrrev_b32 v50, 2, v49")
e("  v_lshlrev_b32 v50, s32, v50")
e("  v_and_b32 v51, 3, v49")
e("  v_lshl_add_u32 v50, v51, 1, v50")
e("  v_add_u32 v50, s27, v50")
e("  v_mul_u32_u24 v54, 48, v49")
e("  v_add_u32 v54, 5120, v54")
e(f"  v_mov_b32 v55, {EOFF:#x}")
e("  s_waitcnt vmcnt(0)")
e("  v_mul_lo_u32 v20, v20, s40")
e(f"  v_add_u32 v20, {LCG_C}, v20        ; tag")
bar("P0")
stamp(1)
if opts["nodep"]: e("  v_mov_b32 v24, 0")
else: poll_keys("fp")
stamp(2)
wave_max_u32(24, 26)
e("  s_and_b32 s25, s26, 0x7ff")
e("  s_sub_u32 s25, 2047, s25            ; idx")
e("  s_mul_i32 s25, s25, 1152")
e("  v_add_u32 v5, s25, v7")
e("  global_load_lds_dwordx4 v5, s[4:5]")
e("  s_mov_b64 exec, 0xff")
e("  global_load_lds_dwordx4 v5, s[4:5] offset:1024")
bar("X1")
e("  s_waitcnt vmcnt(0)")
stamp(3)
bar("X2")
e(f"  s_cmp_lt_u32 s33, {NRED}")
e("  s_cbranch_scc1 L_fin")
if STAMP or ENC.startswith("fp:"): bar("H (diagnostic)")
fin()
e("L_fin:")
e("  s_setprio 0")
bar("H")
e("  s_mov_b64 exec, 0xffff")
e("  ds_read_u16 v51, v50")
e("  v_add_u32 v50, s25, v50")
e("  s_and_b32 s27, s26, 0xffff0000")
e("  s_ashr_i32 s28, s27, 31")
e("  s_not_b32 s28, s28")
e("  s_or_b32 s28, s28, 0x80000000")
e("  s_xor_b32 s27, s27, s28")
e("  s_and_b32 s27, s27, 0xffff0000      ; r as f32")
bar("Q")
e("  v_mov_b32 v52, 0xbfb8aa3b")
e("  v_mul_f32 v52, s27, v52")
e("  v_exp_f32 v52, v52")
e("  s_nop 0")
e("  v_add_f32 v52, 1.0, v52")
e("  v_rcp_f32 v52, v52")
e("  s_nop 0")
e("  v_cvt_pk_bf16_f32 v52, v52, v52")
e("  v_lshlrev_b32 v52, 16, v52          ; r_sel")
e("  s_waitcnt lgkmcnt(0)")
e("  v_lshlrev_b32 v51, 16, v51")
e("  v_fma_f32 v51, v51, 0, v51          ; x + x*0")
bar("E: partial sums in LDS")
stamp(7)
e("  ds_read_b128 v[32:35], v54")
e("  ds_read_b128 v[36:39], v54 offset:16")
e("  ds_read_b32 v48, v54 offset:32")
e("  s_waitcnt lgkmcnt(1)")
e("  v_add_f32 v32, v32, v33")
e("  v_add_f32 v34, v34, v35")
e("  v_add_f32 v36, v36, v37")
e("  v_add_f32 v38, v38, v39")
e("  v_add_f32 v32, v32, v34")
e("  v_add_f32 v36, v36, v38")
e("  s_waitcnt lgkmcnt(0)")
e("  v_add_f32 v32, v32, v48")
e("  v_add_f32 v32, v32, v36")
e("  v_cvt_pk_bf16_f32 v32, v32, v32")
e("  v_lshlrev_b32 v32, 16, v32          ; y bf16")
e("  v_mul_f32 v32, v32, v52")
e("  v_cvt_pk_bf16_f32 v32, v32, v32")
e("  v_lshlrev_b32 v32, 16, v32")
e("  v_add_f32 v32, v51, v32")
e("  v_cvt_pk_bf16_f32 v32, v32, v32")
e("  global_store_short v50, v32, s[14:15]")
stamp(8)
e("  s_cmp_lg_u32 s33, 0")
e("  s_cbranch_scc1 L_finend")
e("  s_mov_b64 exec, 1")
e("  global_store_dword v55, v20, s[18:19] sc1")
e("L_finend:")
if ENC:
    e("L_flush:")
    e("  s_cmp_eq_u32 s78, 0")
    e("  s_cbranch_scc1 L_end")
    if opts["encwg"] >= 0:
        e(f"  s_cmp_lg_u32 s2, {opts['encwg']}")
        e("  s_cbranch_scc1 L_end")
    e("  s_add_u32 s78, s78, 3000")
    e("L_spin:")
    e("  s_memrealtime s[58:59]")
    e("  s_waitcnt lgkmcnt(0)")
    e("  s_sub_u32 s58, s58, s78")
    e("  s_cmp_lt_i32 s58, 0")
    e("  s_cbranch_scc1 L_spin")
if STAMP:
    e("L_flush:")
    e("  s_mov_b64 exec, -1")
    e("  s_sleep 40")
    e("  s_mov_b32 s60, s76")
    e("  s_mul_i32 s56, s2, 10")
    e("  s_add_u32 s56, s56, s3")
    e("  s_lshl_b32 s56, s56, 6")
    e("  s_add_u32 s56, s56, 0x100000")
    e("  s_getreg_b32 s75, hwreg(HW_REG_XCC_ID)")
    e("  s_getreg_b32 s74, hwreg(HW_REG_HW_ID)")
    e("  s_waitcnt vmcnt(0)")
    e("  v_mov_b32 v120, s56")
    for i in range(16):
        e(f"  v_mov_b32 v{100+i}, s{60+i}")
    e("  s_mov_b64 exec, 1")
    for i in range(4):
        e(f"  global_store_dwordx4 v120, v[{100+4*i}:{103+4*i}], s[18:19] offset:{16*i}")
e("L_end:")
e("  s_endpgm")
e("L_codeend:")
e('.section .rodata,"a"')
e(".p2align 6")
e(f".amdhsa_kernel {NAME}_kernel")
e(f"  .amdhsa_next_free_vgpr {NVG}")
e("  .amdhsa_next_free_sgpr 80")
e(f"  .amdhsa_accum_offset {(NVG+3)//4*4}")
e("  .amdhsa_group_segment_fixed_size 0")
e("  .amdhsa_kernarg_size 64")
e("  .amdhsa_user_sgpr_count 2")
e("  .amdhsa_user_sgpr_kernarg_segment_ptr 1")
e("  .amdhsa_system_sgpr_workgroup_id_x 1")
e("  .amdhsa_float_denorm_mode_32 3")
e(".end_amdhsa_kernel")
print("\n".join(out))
```

```python
import sys
opts = dict(stamp=0, enc="", encwg=-1, xf="", guf="", dnf="", pff="", cpf="sc1",
            A=4, W1=4, W2=6, p0=14, pf3=2, dpre=4, dsplit=4, ss=0, nearly=0, touch=1, qack=1, qsl=0, b2=0, pfw=2, cpw=1,
            W0=2, n0=4, ackb=0, nodep=0, nocopy=0, nopfd=0, pmap=1, ff="", ef="", cack=0, dprio=0, fill=1, pk=1, gs=6, nvg=160, de=0, det=0)
for a in sys.argv[1:]:
    k, _, v = a.partition("=")
    if k not in opts: raise SystemExit("bad opt " + k)
    opts[k] = int(v) if isinstance(opts[k], int) else v.replace("+", " ")
STAMP = opts["stamp"]; ENC = opts["enc"]
NAME = "standalone__moe_arch_mod__prompt"
NR, NF, NRED = 112, 144, 36
NWG = NR + NF
SENT = 0xFF800001
SPIN = 0x40000
KOFF = 0x80000
EOFF = KOFF + 0x4000
LCG_A, LCG_C = 1664525, 1013904223
A = opts["A"]; R1 = 0; WL = max(opts["W1"], opts["W2"]); GATE = 1
out = []
e = out.append
role = ["none"]
def stamp(slot):
    if ENC:
        if ENC == f"{role[0]}:{slot}":
            e("  s_memrealtime s[58:59]")
            e("  s_waitcnt lgkmcnt(0)")
            e("  s_mov_b32 s78, s58")
        return
    if STAMP:
        e("  s_memrealtime s[58:59]")
        e("  s_waitcnt lgkmcnt(0)")
        e(f"  s_mov_b32 s{60+slot}, s58")
def want(slot):
    return STAMP or ENC == f"{role[0]}:{slot}"
def fin():
    if STAMP or ENC: e("  s_branch L_flush")
    else: e("  s_endpgm")
def bar(c):
    e(f"  s_barrier                           ; {c}")
DPPX = "row_mask:0xf bank_mask:0xf"
def wave_max_u32(v, s):
    for d in ["quad_perm:[1,0,3,2] row_mask:0xf", "quad_perm:[2,3,0,1] row_mask:0xf", "row_half_mirror row_mask:0xf",
              "row_mirror row_mask:0xf", "row_bcast:15 row_mask:0xa", "row_bcast:31 row_mask:0xc"]:
        e("  s_nop 1")
        e(f"  v_max_u32_dpp v{v}, v{v}, v{v} {d} bank_mask:0xf")
    e("  s_nop 0")
    e(f"  v_readlane_b32 s{s}, v{v}, 63")
def poll_keys(tag):
    e("  s_mov_b32 s57, 0")
    e(f"L_{tag}_loop:")
    e("  global_load_dwordx2 v[24:25], v21, s[18:19] sc1")
    e("  global_load_dwordx2 v[26:27], v22, s[18:19] sc1")
    e("  s_add_u32 s57, s57, 1")
    e(f"  s_cmp_gt_u32 s57, {SPIN}")
    e(f"  s_cbranch_scc1 L_{tag}_out")
    e("  s_waitcnt vmcnt(0)")
    e("  v_cmp_eq_u32 vcc, v25, v20")
    e("  v_cmp_eq_u32 s[42:43], v27, v20")
    e("  v_max_u32 v24, v24, v26")
    e("  s_and_b64 vcc, vcc, s[42:43]")
    e("  s_cmp_eq_u64 vcc, -1")
    e(f"  s_cbranch_scc0 L_{tag}_loop")
    e(f"L_{tag}_out:")
    e("  s_waitcnt vmcnt(0)")
    if STAMP: e("  s_mov_b32 s72, s57")

e(f"; @launch grid=({NWG},1,1) block=(640,1,1) lds=8192")
e('.amdgcn_target "amdgcn-amd-amdhsa--gfx950"')
e(".text")
e(f".globl {NAME}_kernel")
e(".p2align 8")
e(f".type {NAME}_kernel,@function")
e(f"{NAME}_kernel:")
e("  s_load_dwordx16 s[4:19], s[0:1], 0")
if ENC:
    e("  s_mov_b32 s78, 0")
    if ENC == "start":
        e("  s_memrealtime s[58:59]")
        e("  s_waitcnt lgkmcnt(0)")
        e("  s_mov_b32 s78, s58")
if STAMP:
    e("  s_memrealtime s[76:77]")
    for i in range(0, 16, 2): e(f"  s_mov_b64 s[{60+i}:{61+i}], 0")
e("  v_lshrrev_b32 v1, 6, v0")
e("  v_and_b32 v0, 63, v0")
e("  v_readfirstlane_b32 s3, v1")
e("  v_and_b32 v3, 7, v0")
e("  s_and_b32 s21, s2, 7                ; L2 group")
e("  s_cmp_eq_u32 s3, 9")
e("  s_cbranch_scc0 L_notw9")
e("  s_getpc_b64 s[44:45]")
e("L_pc:")
e("  v_min_u32 v28, (L_codeend-L_pc-4)/128, v0")
e("  v_lshlrev_b32 v28, 7, v28")
e("  global_load_dword v29, v28, s[44:45]")
e("  s_branch L_w9")
e("L_notw9:")
e(f"  s_cmp_ge_u32 s2, {NR}")
e("  s_cbranch_scc1 L_ffn")
role[0] = "rt"
e("  v_lshrrev_b32 v2, 3, v0             ; g")
e("  s_lshl_b32 s22, s3, 7")
e("  v_lshl_add_u32 v4, v3, 4, s22")
e("  s_lshr_b32 s33, s2, 3               ; ridx")
e("  s_mul_i32 s20, s33, 4668")
e("  s_lshr_b32 s20, s20, 8")
e("  s_lshl_b32 s23, s21, 8")
e("  s_add_u32 s20, s20, s23")
e("  s_mul_i32 s23, s20, 1152")
e("  v_mul_u32_u24 v5, 3*1152, v2")
e("  v_add3_u32 v5, v5, v4, s23")
e("  s_mul_i32 s24, s2, 3")
e("  s_add_u32 s24, s24, s3")
e("  s_lshl_b32 s25, s24, 10")
e("  v_lshl_add_u32 v40, v0, 4, s25")
e(f"  v_mov_b32 v44, {SENT:#x}")
e("  v_mov_b32 v45, v44")
e("  v_mov_b64 v[46:47], v[44:45]")
e("  s_cmp_ge_u32 s3, 3")
e("  s_cselect_b32 s24, 999, s24")
e(f"  s_cmp_ge_u32 s24, {NRED*9}")
e("  s_waitcnt lgkmcnt(0)")
stamp(1)
e("  global_load_dwordx4 v[8:11], v4, s[6:7]")
e("  s_mov_b32 exec_hi, 0x00ffffff")
e(f"  global_load_dwordx4 v[16:19], v5, s[4:5] {opts['xf']}")
e("  s_mov_b32 exec_hi, 0x0000ffff")
e(f"  global_load_dwordx4 v[20:23], v5, s[4:5] offset:1152 {opts['xf']}")
e(f"  global_load_dwordx4 v[24:27], v5, s[4:5] offset:2304 {opts['xf']}")
e("  s_mov_b32 exec_hi, -1")
e("  s_cbranch_scc1 L_rt2")
e("  global_store_dwordx4 v40, v[44:47], s[18:19] sc1")
e("  s_branch L_rt2")
role[0] = "ffn"
e("L_ffn:")
e(f"  s_cmp_ge_u32 s2, {NWG}")
e("  s_cbranch_scc1 L_end")
e(f"  s_sub_u32 s20, s2, {NR}")
e("  s_lshr_b32 s20, s20, 3")
e("  s_mul_i32 s22, s21, 18")
e("  s_add_u32 s20, s20, s22             ; slice 0..143")
e("  s_cmp_ge_u32 s3, 4")
e("  s_cbranch_scc1 L_dn")
e("  v_lshrrev_b32 v2, 3, v0             ; g")
e("  s_movk_i32 s22, 9216")
e("  s_mov_b32 s23, 0")
e(f"  s_mov_b32 s24, {15*9216}")
e("  s_mov_b32 s25, 0")
e("  s_mov_b32 s29, 0")
e("  s_bitcmp1_b32 s20, 0")
e(f"  s_cselect_b32 s33, {16*A}, 0")
e(f"  s_cselect_b32 s26, {(-(16*(2*A-1)+1)*9216) & 0xffffffff:#x}, s24")
e("  s_cselect_b32 s27, -1, 0")
e(f"  s_cselect_b32 s28, {(16*(A+1)-1)*9216}, s24")
e("  s_mul_i32 s34, s3, 144")
e("  s_add_u32 s35, s34, s33")
e("  s_mul_i32 s36, s35, s22")
e("  s_lshl_b32 s37, s20, 6")
e("  s_add_u32 s36, s36, s37")
e("  v_mul_u32_u24 v4, 2*9216, v2")
e("  v_and_b32 v5, 3, v0")
e("  v_lshlrev_b32 v5, 4, v5")
e("  v_add3_u32 v4, v4, v5, s36")
e("  v_mov_b32 v5, 0")
e("  v_cmp_gt_u32 vcc, 4, v3")
e("  s_waitcnt lgkmcnt(0)")
stamp(1)
e("  v_mov_b32 v8, s8")
e("  v_mov_b32 v9, s9")
e("  v_mov_b32 v10, s10")
e("  v_mov_b32 v11, s11")
e("  v_cndmask_b32 v8, v10, v8, vcc")
e("  v_cndmask_b32 v9, v11, v9, vcc")
e("  v_lshl_add_u64 v[4:5], v[4:5], 0, v[8:9]")
assert A == 4
RB = 100; NS = WL + 2
assert RB + 4*NS <= 132
NVG = opts['nvg']
def ring(i): return RB + 4*(i % NS)
def guload(i):
    e(f"  global_load_dwordx4 v[{ring(i)}:{ring(i)+3}], v[4:5], off {opts['guf']}")
    if i == 17: return
    if i % 2 == 0: st = 22
    elif (i+1)//2 == A: st = 26
    elif (i+1)//2 == 2*A: st = 28
    else: st = 24
    e(f"  v_lshl_add_u64 v[4:5], v[4:5], 0, s[{st}:{st+1}]")
def gsetup():
    e("  s_mov_b32 s30, 0x05040100")
    e("  s_mov_b32 s31, 0x07060302")
    e("  v_and_b32 v6, 16, v0                ; 16(qa&1)")
    e("  v_bfe_u32 v7, v0, 3, 1              ; b")
    e("  v_lshl_add_u32 v6, v7, 2, v6")
    e("  s_lshl_b32 s34, s34, 1              ; 2*144w")
    e("  v_add_u32 v6, s34, v6")
    e("  v_lshrrev_b32 v1, 5, v0             ; qa>>1")
    e("  v_lshlrev_b32 v1, 7, v1")
    e("  s_lshl_b32 s33, s33, 1")
    e("  v_xor_b32 v1, s33, v1")
    e("  v_and_b32 v2, 1, v0                 ; par")
    e("  v_mul_u32_u24 v92, 0xaaaa, v2")
    e("  v_add_u32 v92, 0x4444, v92")
    e("  v_lshl_add_u32 v2, v2, 5, v1")
    e("  v_add_u32 v2, v2, v6")
    e("  v_add_u32 v6, 256, v6")
    e("  v_and_b32 v1, 3, v0")
    e("  v_bfe_u32 v72, v0, 4, 1             ; v")
    e("  v_lshl_add_u32 v1, v1, 1, v72       ; slot>>3")
    e("  v_mul_u32_u24 v1, 272, v1")
    e("  v_lshl_add_u32 v7, v7, 2, v1")
    e("  v_bfe_u32 v72, v0, 2, 1             ; mat")
    e("  v_lshl_add_u32 v7, v72, 7, v7")
    e("  s_lshl_b32 s33, s3, 3")
    e("  s_add_u32 s33, s33, 2048")
    e("  v_add_u32 v7, s33, v7")
    for r in list(range(80, 92, 2)) + list(range(132, 152, 2)):
        e(f"  v_mov_b64 v[{r}:{r+1}], 0")
    e("  v_mov_b32 v1, 4352")
    e("  s_mov_b32 s38, 0x00ff00ff")
    e("  s_mov_b32 s39, 0xff00ff00")
    e("  s_mov_b32 s32, 0x0f0f0f0f")
    e("  s_mov_b32 s33, 0x0f0f0f0f")
    e("  s_mov_b32 s34, 0x03030303")
    e("  s_mov_b32 s35, 0x30303030")
    e("  s_mov_b32 s36, 0x0c0c0c0c")
    e("  s_mov_b32 s37, 0xc0c0c0c0")
    e(f"  s_max_u32 s52, s2, {NR+40}")
    e(f"  s_sub_u32 s52, s52, {NR+40}")
    e("  s_lshr_b32 s52, s52, 3")
    e("  s_mul_i32 s52, s52, 23040")
    e("  s_mul_i32 s53, s3, 5760")
    e("  s_add_u32 s52, s52, s53")
    e(f"  s_mul_i32 s54, s21, {256*1152}")
    e("  s_add_u32 s53, s52, 5760")
    e(f"  s_min_u32 s53, s53, {256*1152}")
    e("  s_sub_u32 s55, s53, 16")
    e("  v_lshl_add_u32 v94, v0, 4, s52")
    if not opts["fill"]: cpaddr()
def cpaddr():
    for t in range(6):
        e(f"  v_add_u32 v{152+t}, {1024*t}, v94")
        e(f"  v_cmp_gt_u32 s[{40+2*t}:{41+2*t}], s53, v{152+t}")
        e(f"  v_min_u32 v{152+t}, s55, v{152+t}")
        e(f"  v_add_u32 v{152+t}, s54, v{152+t}")
def gperm(k):
    for c in range(8):
        d = 8 + 8*c + k if k < 8 else 72 + c
        e(f"  v_perm_b32 v{d}, v{ring(2*k+1)+(c>>1)}, v{ring(2*k)+(c>>1)}, s{30+(c&1)}")
def wof(i):
    if i < opts["n0"]: return opts["W0"]
    return opts["W1"] if i < 2*A else opts["W2"]
done = 0; permd = 0; setup = False
for i in range(18):
    w = wof(i)
    lim = w - 1
    if 1 <= i <= opts['ss']: lim = 0
    if i - done > lim:
        if not setup and i == 2:
            e("  s_mov_b32 s30, 0x05040100")
            e("  s_mov_b32 s31, 0x07060302")
        if not setup and i >= opts["gs"]: gsetup(); setup = True
        e(f"  s_waitcnt vmcnt({lim})")
        done = i - lim
        if i == max(opts['ss'], opts['n0']-1): stamp(9)
    while i - NS >= 2*permd:
        assert 2*permd + 2 <= done
        gperm(permd); permd += 1
    guload(i)
    if i + 1 == opts["p0"]: bar("P0")
    if i == 17:
        stamp(2)
        if GATE: bar("X1")
        else: e("  ds_write_b32 v98, v98                ; flag: stream issued")
    nxt = wof(i + 1) - 1
    if i == 17 or i + 1 - done > nxt:
        while 2*permd + 2 <= done:
            gperm(permd); permd += 1
while permd < 9:
    e(f"  s_waitcnt vmcnt({18 - 2*permd - 2})")
    gperm(permd); permd += 1
e("  s_mov_b64 exec, s[32:33]")
stamp(3)
bar("X2")
stamp(4)
e("  ds_read2_b32 v[80:81], v2 offset0:0 offset1:16")
e("  ds_read2_b32 v[82:83], v2 offset0:2 offset1:18")
e("  s_mov_b64 exec, s[34:35]")
e("  ds_read_b32 v88, v6")
e("  ds_read_b32 v90, v6 offset:8")
e("  s_mov_b64 exec, s[36:37]")
e("  ds_read_b32 v89, v6")
e("  ds_read_b32 v91, v6 offset:8")
e("  s_not_b64 exec, s[32:33]")
e("  ds_read2_b32 v[84:85], v2 offset0:0 offset1:16")
e("  ds_read2_b32 v[86:87], v2 offset0:2 offset1:18")
e("  s_mov_b64 exec, -1")
e("  ds_read_b32 v93, v1")
e("  s_waitcnt lgkmcnt(7)")
for i_ in range(4):
    e(f"  v_smfmac_f32_16x16x64_bf16 v[{132+4*i_}:{135+4*i_}], v[80:83], v[{8+8*i_}:{15+8*i_}], v92")
e("  s_waitcnt lgkmcnt(3)")
e("  v_smfmac_f32_16x16x64_bf16 v[148:151], v[88:91], v[72:79], v92")
e("  s_waitcnt lgkmcnt(1)")
for i_ in range(4):
    e(f"  v_smfmac_f32_16x16x64_bf16 v[{132+4*i_}:{135+4*i_}], v[84:87], v[{40+8*i_}:{47+8*i_}], v92")
e("  s_mov_b64 exec, s[38:39]")
e("  s_nop 3")
for i_ in range(4):
    e(f"  v_add_f32 v{96+i_}, v{132+4*i_}, v{133+4*i_}")
    e(f"  v_add_f32 v{96+i_}, v{96+i_}, v{148+i_}")
    if i_ == 1: e("  ds_write2_b32 v7, v96, v97 offset0:0 offset1:8")
e("  ds_write2_b32 v7, v98, v99 offset0:16 offset1:24")
e("  s_mov_b64 exec, -1")
if opts["fill"]: cpaddr()
e("  s_movk_i32 s26, 1152")
e("  s_waitcnt lgkmcnt(0)")
bar("H")
stamp(5)
for t in range(6):
    e(f"  v_sub_u32 v95, v{152+t}, v93")
    e("  v_cmp_le_u32 vcc, s26, v95")
    e(f"  s_and_b64 s[{40+2*t}:{41+2*t}], s[{40+2*t}:{41+2*t}], vcc")
e("  v_mov_b32 v18, 0")
e("  v_mov_b32 v19, 0")
e(f"  s_cmp_lt_u32 s2, {NR+NRED}")
e("  s_cbranch_scc1 L_red")
e(f"  s_cmp_lt_u32 s2, {NR+40}")
e("  s_cbranch_scc1 L_gend")
for t in range(6):
    e(f"  global_load_dwordx4 v[{20+4*t}:{23+4*t}], v{152+t}, s[4:5]")
for t in range(6):
    e(f"  s_waitcnt vmcnt({5-t})")
    for d in range(4):
        e(f"  v_dot2_f32_bf16 v18, v{20+4*t+d}, v19, v18")
e("  s_nop 2")
e("  v_cmp_u_f32 vcc, v18, v18")
e("  s_cbranch_vccnz L_cpfix")
e("L_cpst:")
stamp(8)
bar("Q")
stamp(6)
for t in range(6):
    e(f"  s_mov_b64 exec, s[{40+2*t}:{41+2*t}]")
    e(f"  s_cbranch_execz L_cs{t}")
    if not opts["nocopy"]: e(f"  global_store_dwordx4 v{152+t}, v[{20+4*t}:{23+4*t}], s[14:15] {opts['cpf']}")
    e(f"L_cs{t}:")
if want(7):
    e("  s_waitcnt vmcnt(0)")
    stamp(7)
e("L_gend:")
fin()
role[0] = "dn"
e("L_dn:")
e("  s_cmp_eq_u32 s3, 8")
e("  s_cbranch_scc1 L_w8")
e("  s_sub_u32 s33, s3, 4                ; w'")
e("  v_lshrrev_b32 v1, 5, v0")
e("  v_bfe_u32 v2, v0, 3, 1")
e("  v_lshl_add_u32 v1, v1, 1, v2")
e("  v_bfe_u32 v2, v0, 4, 1")
e("  v_lshl_add_u32 v1, v1, 2, v2")
e("  v_mul_u32_u24 v4, 1152, v1")
e("  v_lshl_add_u32 v4, v3, 4, v4")
e("  s_mul_i32 s24, s20, 32*1152")
e("  s_lshl_b32 s25, s33, 8")
e("  s_add_u32 s24, s24, s25")
e("  v_add_u32 v4, s24, v4")
e("  v_add_u32 v5, 16*1152, v4")
e("  s_mov_b32 s32, 0xbfb8aa3b           ; -log2e")
e("  v_and_b32 v6, 1, v0")
e("  v_lshlrev_b32 v6, 4, v6")
e("  v_mov_b32 v7, 0xffff")
e("  v_lshlrev_b32 v6, v6, v7")
e("  v_cmp_gt_u32 vcc, 4, v3")
e("  v_bfe_u32 v62, v0, 1, 1")
e("  v_mul_u32_u24 v62, 0xaaaa, v62")
e("  v_cndmask_b32 v60, 0, v6, vcc")
e("  v_xor_b32 v61, v60, v6")
e("  v_add_u32 v62, 0x4444, v62")
e("  v_lshrrev_b32 v7, 3, v0")
e("  v_lshl_add_u32 v7, v0, 1, v7")
e("  v_lshlrev_b32 v7, 4, v7")
e("  v_add_u32 v7, 2048, v7")
e("  v_lshrrev_b32 v63, 4, v0            ; 2*upper+v")
e("  v_bfe_u32 v6, v0, 2, 1")
e("  v_lshl_add_u32 v63, v63, 1, v6")
e(f"  v_mul_u32_u24 v63, {NF*64}, v63")
e("  v_and_b32 v6, 3, v0")
e("  v_lshl_add_u32 v63, v6, 4, v63")
e("  s_lshl_b32 s26, s20, 6")
e(f"  s_mul_i32 s25, s33, {8*NF*64}")
e("  s_add_u32 s25, s25, s26")
e("  v_add_u32 v63, s25, v63")
e(f"  v_add_u32 v64, {8*NF*64}, v63")
for r in range(80, 92, 2):
    e(f"  v_mov_b64 v[{r}:{r+1}], 0")
e("  s_mov_b32 s34, 0x00ff00ff")
e("  s_mov_b32 s35, 0x00ff00ff")
e("  s_waitcnt lgkmcnt(0)")
bar("P0")
def dload(blk, V, hi):
    r = 8 + 16*blk + 8*V + 4*hi
    e(f"  global_load_dwordx4 v[{r}:{r+3}], v{4+hi}, s[12:13] offset:{2304*V+128*blk} {opts['dnf']}")
def hchain():
    e("  ds_read_b128 v[92:95], v7")
    e("  ds_read_b128 v[96:99], v7 offset:16")
    e("  s_waitcnt lgkmcnt(1)")
    e("  v_pk_add_f32 v[92:93], v[92:93], v[94:95]")
    e("  s_waitcnt lgkmcnt(0)")
    e("  v_pk_add_f32 v[96:97], v[96:97], v[98:99]")
    e("  v_pk_add_f32 v[92:93], v[92:93], v[96:97]")
    e("  v_add_f32 v92, v92, v93")
    e("  v_cvt_pk_bf16_f32 v92, v92, v92")
    e("  v_lshlrev_b32 v92, 16, v92")
    e("  v_mul_f32 v93, s32, v92")
    e("  v_exp_f32 v93, v93")
    e("  s_nop 0")
    e("  v_add_f32 v93, 1.0, v93")
    e("  v_rcp_f32 v93, v93")
    e("  s_nop 0")
    e("  v_mul_f32 v93, v92, v93")
    e("  v_cvt_pk_bf16_f32 v93, v93, v93")
    e("  v_lshlrev_b32 v93, 16, v93")
    e("  v_mul_f32_dpp v94, v92, v93 row_shl:4 row_mask:0xf bank_mask:0x5")
    e("  s_nop 1")
    e("  v_mul_f32_dpp v94, v93, v92 row_shr:4 row_mask:0xf bank_mask:0xa")
    e("  v_cvt_pk_bf16_f32 v94, v94, v94")
    e("  s_nop 1")
def avar(V, ps):
    for p in ps:
        i_ = 2*V + (p >> 1)
        e(f"  v_and_b32_dpp v{68+4*V+p}, v94, v{60+(p&1)} quad_perm:[{i_},{i_},{i_},{i_}] {DPPX}")
def dm(blk, V):
    r = 8 + 16*blk + 8*V
    e(f"  v_smfmac_f32_16x16x64_bf16 v[{80+4*blk}:{83+4*blk}], v[{68+4*V}:{71+4*V}], v[{r}:{r+7}], v62")
def down_body(tail):
    blks = [2, 0, 1] if tail else [0, 1]
    seq = [(b, V) for V in range(2) for b in blks]
    DS = opts["dsplit"]
    bar("X1")
    stamp(2)
    n = 0
    for b, V in seq:
        for hi in range(2):
            dload(b, V, hi); n += 1
            if n == DS:
                bar("X2"); stamp(4)
    if n < DS:
        bar("X2"); stamp(4)
    if opts["dprio"]: e("  s_setprio 2")
    bar("H")
    stamp(5)
    hchain()
    avar(0, range(4)); avar(1, range(2))
    for k, (b, V) in enumerate(seq):
        e(f"  s_waitcnt vmcnt({2*(len(seq)-1-k)})")
        if k == len(seq)-1: stamp(6)
        dm(b, V)
        if k == 0: avar(1, range(2, 4))
    if tail:
        e("  s_nop 3")
        for r in range(4):
            e(f"  v_permlane32_swap_b32 v{88+r}, v{92+r}")
        for r in range(4):
            e(f"  v_permlane32_swap_b32 v{80+r}, v{84+r}")
        for r in range(4):
            e(f"  v_add_f32_dpp v{88+r}, v{92+r}, v{88+r} row_ror:8 {DPPX}")
    else:
        e("  s_nop 7")
        for r in range(4):
            e(f"  v_permlane32_swap_b32 v{80+r}, v{84+r}")
    for r in range(4):
        e(f"  v_add_f32_dpp v{80+r}, v{84+r}, v{80+r} row_ror:8 {DPPX}")
    e("  s_mov_b64 exec, s[34:35]")
    e("  global_store_dwordx4 v63, v[80:83], s[18:19] sc1")
    if tail:
        e("  s_mov_b32 exec_hi, 0")
        e("  global_store_dwordx4 v64, v[88:91], s[18:19] sc1")
    stamp(7)
    e(f"  s_cmp_lt_u32 s2, {NR+NRED}")
    e("  s_cbranch_scc1 L_red")
    e(f"  s_cmp_lt_u32 s2, {NR+40}")
    e(f"  s_cbranch_scc1 L_dq{int(tail)}")
    if opts["cack"]: e("  s_waitcnt vmcnt(0)")
    bar("Q (copy may start)")
    e(f"L_dq{int(tail)}:")
    if want(8):
        e("  s_waitcnt vmcnt(0)")
        stamp(8)
    fin()
e("  s_cmp_eq_u32 s3, 7")
e("  s_cbranch_scc1 L_dnt")
down_body(False)
e("L_dnt:")
down_body(True)
role[0] = "red"
e("L_w8:")
e(f"  s_cmp_ge_u32 s2, {NR+NRED}")
e("  s_cbranch_scc1 L_end")
e("  s_waitcnt lgkmcnt(0)")
bar("P0"); bar("X1"); bar("X2"); bar("H")
e("L_red:")
e("  s_mov_b64 exec, -1")
e(f"  s_sub_u32 s24, s2, {NR}")
e("  s_mul_i32 s24, s24, 9")
e("  s_add_u32 s24, s24, s3")
e("  s_lshl_b32 s24, s24, 10")
e("  v_lshl_add_u32 v8, v0, 4, s24")
e(f"  v_mov_b32 v9, {SENT:#x}")
e("  v_and_b32 v10, 3, v0")
e("  v_lshrrev_b32 v11, 4, v0")
e("  v_lshl_add_u32 v10, v10, 2, v11     ; slot=4c+r")
e("  v_mul_u32_u24 v10, 48, v10")
e("  s_lshl_b32 s27, s3, 2")
e("  s_add_u32 s27, s27, 5120")
e("  v_add_u32 v10, s27, v10")
e("  s_mov_b32 s34, 0x000f000f")
e("  s_mov_b32 s35, 0x000f000f")
e("  s_mov_b32 s57, 0")
if opts["qack"]: e("  s_waitcnt vmcnt(0)")
bar("Q")
stamp(10)
e("L_red_loop:")
e("  global_load_dwordx4 v[12:15], v8, s[18:19] sc1")
e("  s_add_u32 s57, s57, 1")
e(f"  s_cmp_gt_u32 s57, {SPIN}")
e("  s_cbranch_scc1 L_red_out")
e("  s_waitcnt vmcnt(0)")
e("  v_cmp_ne_u32 s[28:29], v12, v9")
e("  v_cmp_ne_u32 s[30:31], v13, v9")
e("  v_cmp_ne_u32 s[32:33], v14, v9")
e("  v_cmp_ne_u32 vcc, v15, v9")
e("  s_and_b64 s[28:29], s[28:29], s[30:31]")
e("  s_and_b64 s[32:33], s[32:33], vcc")
e("  s_and_b64 s[28:29], s[28:29], s[32:33]")
e("  s_cmp_eq_u64 s[28:29], -1")
if opts["qsl"]:
    e("  s_cbranch_scc1 L_red_out")
    e(f"  s_sleep {opts['qsl']}")
    e("  s_branch L_red_loop")
else:
    e("  s_cbranch_scc0 L_red_loop")
e("L_red_out:")
e("  s_waitcnt vmcnt(0)")
if STAMP: e("  s_mov_b32 s72, s57")
stamp(11)
e("  v_permlane32_swap_b32 v12, v14")
e("  v_permlane32_swap_b32 v13, v15")
e("  v_add_f32 v12, v12, v14")
e("  v_add_f32 v13, v13, v15")
e("  s_nop 1")
e("  v_permlane16_swap_b32 v12, v13")
e("  v_add_f32 v12, v12, v13")
e("  s_nop 1")
e(f"  v_add_f32_dpp v12, v12, v12 row_ror:4 {DPPX}")
e("  s_nop 1")
e(f"  v_add_f32_dpp v12, v12, v12 row_ror:8 {DPPX}")
e("  s_mov_b64 exec, s[34:35]")
e("  ds_write_b32 v10, v12")
e("  s_waitcnt lgkmcnt(0)")
bar("E")
fin()
role[0] = "rt"
NPF = 14 - opts["nearly"]//8
e("L_rt2:")
e("  s_lshl_b32 s25, s3, 2")
e("  v_mul_u32_u24 v41, 3*48, v2")
e("  v_add_u32 v41, s25, v41")
e("  s_mov_b32 s28, 0x01010101")
e("  s_mov_b32 s29, 0x01010101")
e("  s_lshr_b32 s33, s2, 3               ; ridx")
e(f"  s_mul_i32 s27, s3, {NPF}")
e("  s_add_u32 s27, s27, s33")
PD = -(-5184//(9*NPF))
e(f"  s_mul_i32 s26, s21, {576*1152}")
if opts["pmap"]:
    e("  s_mul_i32 s34, s33, 9")
    e("  s_add_u32 s34, s34, s3")
    e(f"  s_mul_i32 s34, s34, {PD}")
else:
    e(f"  s_mul_i32 s34, s27, {PD}")
e("  v_add_u32 v42, s34, v0")
e("  v_min_u32 v42, 5183, v42")
e("  v_lshl_add_u32 v42, v42, 7, s26")
NU = 9 - 2*A; N4 = NU*64*9; PER = -(-N4//(9*NPF))
assert PER <= 32
e(f"  s_mul_i32 s38, s27, {PER}")
e("  v_add_u32 v49, s38, v0")
e(f"  v_min_u32 v49, {N4-1}, v49")
e("  v_mul_u32_u24 v50, 7282, v49")
e("  v_lshrrev_b32 v50, 16, v50")
for it_ in range(N4): assert (it_*7282) >> 16 == it_//9
e("  v_mul_u32_u24 v51, 9, v50")
e("  v_sub_u32 v51, v49, v51             ; line = item%9")
e("  v_bfe_u32 v52, v50, 4, 2            ; wv")
e("  v_mul_u32_u24 v52, 144, v52")
e("  v_lshrrev_b32 v49, 6, v50           ; u")
e("  v_lshl_add_u32 v52, v49, 4, v52")
e("  v_and_b32 v50, 15, v50")
e("  v_add_u32 v50, v50, v52")
e(f"  v_add_u32 v50, {32*A}, v50            ; row")
e("  v_mul_u32_u24 v50, 9216, v50")
e("  v_lshl_add_u32 v50, v51, 7, v50")
e("  s_mul_i32 s39, s21, 1152")
e("  v_add_u32 v50, s39, v50")
C3 = opts["pf3"]
if C3:
    n3 = 4*2*16*C3; P3 = -(-n3//(9*NPF))
    sh = {1: 4, 2: 5}[C3]
    e(f"  s_mul_i32 s38, s27, {P3}")
    e("  v_add_u32 v49, s38, v3")
    e(f"  v_min_u32 v49, {n3-1}, v49")
    e(f"  v_lshrrev_b32 v51, {sh+1}, v49        ; wv")
    e("  v_mul_u32_u24 v51, 144, v51")
    e(f"  v_bfe_u32 v52, v49, {sh}, 1")
    e(f"  v_mul_u32_u24 v52, {16*A}, v52")
    e(f"  v_and_b32 v49, {(1<<sh)-1}, v49")
    e("  v_add3_u32 v51, v51, v52, v49")
    e(f"  v_add_u32 v51, {16*(A-C3)}, v51       ; row")
    e("  v_mul_u32_u24 v51, 9216, v51")
    e("  s_sub_u32 s38, 3, s21")
    e("  s_and_b32 s38, s38, 7")
    e("  s_lshl_b32 s41, s38, 7")
    e("  s_add_u32 s41, s41, s39")
    e("  v_add_u32 v51, s41, v51             ; class3 offset (first pair)")
    e("  s_cmp_eq_u32 s38, 0")
    e("  s_cselect_b32 s41, 1024, 0")
    e(f"  s_cselect_b32 s37, {(((1<<P3)-1)*0x101):#x}, {(1<<P3)-1}")
    e("  v_add_u32 v52, s41, v51")
    e("  v_cmp_eq_u32 vcc, 4, v2")
    e("  s_nop 1")
    e("  v_cndmask_b32 v50, v50, v51, vcc")
    e("  v_cmp_eq_u32 vcc, 5, v2")
    e("  s_nop 1")
    e("  v_cndmask_b32 v50, v50, v52, vcc")
else:
    e("  s_mov_b32 s37, 0")
e(f"  s_mov_b32 s36, {(1<<PER)-1:#x}")
e("  s_waitcnt vmcnt(0)")
stamp(2)
for d in range(4):
    for i in range(3):
        c = "0" if d == 0 else f"v{32+i}"
        e(f"  v_dot2_f32_bf16 v{32+i}, v{16+4*i+d}, v{8+d}, {c}")
e("  s_nop 1")
for dp in ["quad_perm:[1,0,3,2]", "quad_perm:[2,3,0,1]", "row_half_mirror"]:
    for i in range(3):
        e(f"  v_add_f32_dpp v{32+i}, v{32+i}, v{32+i} {dp} {DPPX}")
e("  s_mov_b64 exec, s[28:29]")
e("  ds_write2_b32 v41, v32, v33 offset0:0 offset1:12")
e("  ds_write_b32 v41, v34 offset:96")
e("  s_mov_b64 exec, s[36:37]")
e("  s_waitcnt lgkmcnt(0)")
bar("A")
stamp(3)
bar("B: key store issued")
e(f"  s_cmp_ge_u32 s33, {NPF}")
e("  s_cbranch_scc1 L_nopf")
e(f"  global_load_dword v49, v50, s[8:9] {opts['pff']}")
e(f"  global_load_dword v51, v50, s[10:11] {opts['pff']}")
mm = (1 << PD) - 1
e(f"  s_mov_b32 exec_lo, {mm & 0xffffffff:#x}")
e(f"  s_mov_b32 exec_hi, {mm >> 32:#x}")
if opts["pfw"]: e(f"  s_waitcnt vmcnt({2-opts['pfw']})")
if opts["b2"]: bar("B2")
stamp(9)
if not opts["nopfd"]: e(f"  global_load_dword v48, v42, s[12:13] {opts['pff']}")
e("L_nopf:")
if want(8):
    e("  s_waitcnt vmcnt(0)")
    stamp(8)
fin()
e("L_w9:")
e(f"  s_cmp_ge_u32 s2, {NWG}")
e("  s_cbranch_scc1 L_end")
e(f"  v_mov_b32 v20, {EOFF:#x}")
e("  v_lshlrev_b32 v21, 6, v0")
e(f"  v_add_u32 v21, {KOFF:#x}, v21")
e(f"  v_min_u32 v22, {NR-65}, v0")
e("  v_lshlrev_b32 v22, 6, v22")
e(f"  v_add_u32 v22, {KOFF+4096:#x}, v22")
e("  s_setprio 3")
e(f"  s_mov_b32 s40, {LCG_A}")
e("  s_waitcnt lgkmcnt(0)")
e("  global_load_dword v20, v20, s[18:19] sc1   ; epoch")
e(f"  s_cmp_ge_u32 s2, {NR}")
e("  s_cbranch_scc1 L_fpoll")
role[0] = "rw9"
e("  s_lshr_b32 s33, s2, 3               ; ridx")
e("  s_mul_i32 s22, s21, 14")
e("  s_add_u32 s22, s22, s33             ; slot")
e("  s_lshl_b32 s22, s22, 6")
e(f"  s_add_u32 s22, s22, {KOFF:#x}")
e("  v_mov_b32 v6, s22")
if opts["touch"]: e("  global_load_dword v30, v6, s[18:19] sc1")
e("  s_lshr_b32 s33, s2, 3               ; ridx")
e("  s_mul_i32 s20, s33, 4668")
e("  s_lshr_b32 s20, s20, 8")
e("  s_lshl_b32 s23, s21, 8")
e("  s_add_u32 s20, s20, s23")
e("  v_and_b32 v42, 31, v0")
e("  v_mul_u32_u24 v43, 48, v42")
e("  v_cmp_gt_u32 s[46:47], 19, v42")
e("  s_sub_u32 s22, 2047, s20")
e("  v_sub_u32 v42, s22, v42             ; 2047-idx")
e(f"  s_waitcnt vmcnt({1 if opts['touch'] else 0})")
e("  v_mul_lo_u32 v20, v20, s40")
e(f"  v_add_u32 v20, {LCG_C}, v20        ; tag")
e("  v_mov_b32 v35, v20")
bar("A")
stamp(3)
e("  ds_read_b128 v[36:39], v43")
e("  ds_read_b128 v[48:51], v43 offset:16")
e("  ds_read_b32 v52, v43 offset:32")
e("  s_waitcnt lgkmcnt(1)")
e("  v_add_f32 v36, v36, v37")
e("  v_add_f32 v38, v38, v39")
e("  v_add_f32 v48, v48, v49")
e("  v_add_f32 v50, v50, v51")
e("  v_add_f32 v36, v36, v38")
e("  v_add_f32 v48, v48, v50")
e("  s_waitcnt lgkmcnt(0)")
e("  v_add_f32 v36, v36, v52")
e("  v_add_f32 v36, v36, v48")
e("  v_cmp_o_f32 vcc, v36, v36")
e("  v_cvt_pk_bf16_f32 v34, v36, v36")
e("  v_ashrrev_i32 v37, 31, v34")
e("  v_or_b32 v37, 0x80000000, v37")
e("  v_xor_b32 v34, v34, v37")
e("  v_cndmask_b32 v34, 0, v34, vcc")
e("  v_and_b32 v34, 0xffff0000, v34")
e("  v_or_b32 v34, v34, v42")
e("  v_cndmask_b32 v34, 0, v34, s[46:47]")
for d in ["quad_perm:[1,0,3,2] row_mask:0xf", "quad_perm:[2,3,0,1] row_mask:0xf", "row_half_mirror row_mask:0xf",
          "row_mirror row_mask:0xf", "row_bcast:15 row_mask:0xa"]:
    e("  s_nop 1")
    e(f"  v_max_u32_dpp v34, v34, v34 {d} bank_mask:0xf")
e("  s_mov_b32 exec_lo, 0x80000000")
e("  s_mov_b32 exec_hi, 0")
e("  global_store_dwordx2 v6, v[34:35], s[18:19] sc1")
e("  s_mov_b64 exec, -1")
stamp(4)
if opts["ackb"]: e("  s_waitcnt vmcnt(0)")
bar("B")
if opts["b2"]:
    e(f"  s_cmp_ge_u32 s33, {NPF}")
    e("  s_cbranch_scc1 L_early")
    bar("B2")
    e("L_early:")
if opts["nearly"]:
    e(f"  s_cmp_lt_u32 s33, {NPF}")
    e("  s_cbranch_scc1 L_w9end")
    e("  s_waitcnt vmcnt(0)")
    stamp(5)
    poll_keys("rp")
    stamp(6)
    wave_max_u32(24, 26)
    e("  s_and_b32 s25, s26, 0x7ff")
    e("  s_sub_u32 s25, 2047, s25            ; idx")
    e("  s_mul_i32 s27, s25, 1152")
    e("  v_min_u32 v4, 8, v0")
    e("  v_lshl_add_u32 v4, v4, 7, s27")
    e("  global_load_dword v4, v4, s[4:5]")
    e("L_w9end:")
elif want(5):
    e("  s_waitcnt vmcnt(0)")
    stamp(5)
fin()
role[0] = "fp"
e("L_fpoll:")
e("  v_lshlrev_b32 v7, 4, v0")
e("  s_mov_b32 m0, 0")
e(f"  s_sub_u32 s33, s2, {NR}              ; reducer j")
e("  s_lshr_b32 s28, s33, 2")
e("  s_lshl_b32 s28, s28, 7              ; 128B")
e("  s_and_b32 s29, s33, 1")
e("  s_lshl_b32 s29, s29, 6              ; 64a")
e("  s_and_b32 s30, s33, 2")
e("  s_lshl_b32 s30, s30, 2              ; 8v")
e("  s_add_u32 s27, s28, s29")
e("  s_add_u32 s27, s27, s30")
e("  v_and_b32 v49, 15, v0")
e("  v_lshrrev_b32 v50, 2, v49")
e("  v_lshlrev_b32 v50, 4, v50")
e("  v_and_b32 v51, 3, v49")
e("  v_lshl_add_u32 v50, v51, 1, v50")
e("  v_add_u32 v50, s27, v50")
e("  v_mul_u32_u24 v54, 48, v49")
e("  v_add_u32 v54, 5120, v54")
e(f"  v_mov_b32 v55, {EOFF:#x}")
e("  s_waitcnt vmcnt(0)")
e("  v_mul_lo_u32 v20, v20, s40")
e(f"  v_add_u32 v20, {LCG_C}, v20        ; tag")
bar("P0")
stamp(1)
if opts["nodep"]: e("  v_mov_b32 v24, 0")
else: poll_keys("fp")
stamp(2)
wave_max_u32(24, 26)
e("  s_and_b32 s25, s26, 0x7ff")
e("  s_sub_u32 s25, 2047, s25            ; idx")
e("  s_mul_i32 s25, s25, 1152")
e("  v_add_u32 v5, s25, v7")
e("  global_load_lds_dwordx4 v5, s[4:5]")
e("  s_mov_b64 exec, 0xff")
e("  global_load_lds_dwordx4 v5, s[4:5] offset:1024")
bar("X1")
e("  v_mov_b32 v8, s25")
e("  v_mov_b32 v9, 4352")
e("  ds_write_b32 v9, v8")
e("  s_waitcnt vmcnt(0) lgkmcnt(0)")
stamp(3)
bar("X2")
e(f"  s_cmp_lt_u32 s33, {NRED}")
e("  s_cbranch_scc1 L_fin")
if STAMP or ENC.startswith("fp:"):
    bar("H (diagnostic)")
    e(f"  s_cmp_lt_u32 s2, {NR+40}")
    e("  s_cbranch_scc1 L_flush")
    bar("Q (diagnostic)")
fin()
e("L_fin:")
e("  s_setprio 0")
bar("H")
e("  s_mov_b64 exec, 0xffff")
e("  ds_read_u16 v51, v50")
e("  v_add_u32 v50, s25, v50")
e("  s_and_b32 s27, s26, 0xffff0000")
e("  s_ashr_i32 s28, s27, 31")
e("  s_not_b32 s28, s28")
e("  s_or_b32 s28, s28, 0x80000000")
e("  s_xor_b32 s27, s27, s28")
e("  s_and_b32 s27, s27, 0xffff0000      ; r as f32")
bar("Q")
e("  v_mov_b32 v52, 0xbfb8aa3b")
e("  v_mul_f32 v52, s27, v52")
e("  v_exp_f32 v52, v52")
e("  s_nop 0")
e("  v_add_f32 v52, 1.0, v52")
e("  v_rcp_f32 v52, v52")
e("  s_nop 0")
e("  v_cvt_pk_bf16_f32 v52, v52, v52")
e("  v_lshlrev_b32 v52, 16, v52          ; r_sel")
e("  s_waitcnt lgkmcnt(0)")
e("  v_lshlrev_b32 v51, 16, v51")
e("  v_fma_f32 v51, v51, 0, v51          ; x + x*0")
bar("E: partial sums in LDS")
stamp(7)
e("  ds_read_b128 v[32:35], v54")
e("  ds_read_b128 v[36:39], v54 offset:16")
e("  ds_read_b32 v48, v54 offset:32")
e("  s_waitcnt lgkmcnt(1)")
e("  v_add_f32 v32, v32, v33")
e("  v_add_f32 v34, v34, v35")
e("  v_add_f32 v36, v36, v37")
e("  v_add_f32 v38, v38, v39")
e("  v_add_f32 v32, v32, v34")
e("  v_add_f32 v36, v36, v38")
e("  s_waitcnt lgkmcnt(0)")
e("  v_add_f32 v32, v32, v48")
e("  v_add_f32 v32, v32, v36")
e("  v_cvt_pk_bf16_f32 v32, v32, v32")
e("  v_lshlrev_b32 v32, 16, v32          ; y bf16")
e("  v_mul_f32 v32, v32, v52")
e("  v_cvt_pk_bf16_f32 v32, v32, v32")
e("  v_lshlrev_b32 v32, 16, v32")
e("  v_add_f32 v32, v51, v32")
e("  v_cvt_pk_bf16_f32 v32, v32, v32")
e(f"  global_store_short v50, v32, s[14:15] {opts['ff']}")
stamp(8)
e("  s_cmp_lg_u32 s33, 0")
e("  s_cbranch_scc1 L_finend")
e("  s_mov_b64 exec, 1")
e(f"  global_store_dword v55, v20, s[18:19] {opts['ef']}")
e("L_finend:")
if ENC:
    e("L_flush:")
    e("  s_cmp_eq_u32 s78, 0")
    e("  s_cbranch_scc1 L_end")
    if opts["encwg"] >= 0:
        e(f"  s_cmp_lg_u32 s2, {opts['encwg']}")
        e("  s_cbranch_scc1 L_end")
    e("  s_add_u32 s78, s78, 3000")
    e("L_spin:")
    e("  s_memrealtime s[58:59]")
    e("  s_waitcnt lgkmcnt(0)")
    e("  s_sub_u32 s58, s58, s78")
    e("  s_cmp_lt_i32 s58, 0")
    e("  s_cbranch_scc1 L_spin")
if STAMP:
    e("L_flush:")
    e("  s_mov_b64 exec, -1")
    e("  s_sleep 40")
    e("  s_mov_b32 s60, s76")
    e("  s_mul_i32 s56, s2, 10")
    e("  s_add_u32 s56, s56, s3")
    e("  s_lshl_b32 s56, s56, 6")
    e("  s_add_u32 s56, s56, 0x100000")
    e("  s_getreg_b32 s75, hwreg(HW_REG_XCC_ID)")
    e("  s_getreg_b32 s74, hwreg(HW_REG_HW_ID)")
    e("  s_waitcnt vmcnt(0)")
    e("  v_mov_b32 v120, s56")
    for i in range(16):
        e(f"  v_mov_b32 v{100+i}, s{60+i}")
    e("  s_mov_b64 exec, 1")
    for i in range(4):
        e(f"  global_store_dwordx4 v120, v[{100+4*i}:{103+4*i}], s[18:19] offset:{16*i}")
e("L_end:")
e("  s_endpgm")
e("L_codeend:")
e("L_cpfix:                              ; some element is Inf/NaN: out = x + x*0 element by element")
e("  s_mov_b32 s30, 0xffff0000")
for d in range(20, 44):
    e(f"  v_lshlrev_b32 v18, 16, v{d}")
    e(f"  v_and_b32 v19, s30, v{d}")
    e("  v_fma_f32 v18, v18, 0, v18")
    e("  v_fma_f32 v19, v19, 0, v19")
    e(f"  v_perm_b32 v{d}, v19, v18, s31")
e("  s_branch L_cpst")
e('.section .rodata,"a"')
e(".p2align 6")
e(f".amdhsa_kernel {NAME}_kernel")
e(f"  .amdhsa_next_free_vgpr {NVG}")
e("  .amdhsa_next_free_sgpr 80")
e(f"  .amdhsa_accum_offset {(NVG+3)//4*4}")
e("  .amdhsa_group_segment_fixed_size 0")
e("  .amdhsa_kernarg_size 64")
e("  .amdhsa_user_sgpr_count 2")
e("  .amdhsa_user_sgpr_kernarg_segment_ptr 1")
e("  .amdhsa_system_sgpr_workgroup_id_x 1")
e("  .amdhsa_float_denorm_mode_32 3")
e(".end_amdhsa_kernel")
print("\n".join(out))
```

```python
import sys
opts = dict(stamp=0, enc="", encwg=-1, W0=2, n0=3, W1=4, W2=5, p0=12, pf3=2, dsplit=4, gs=6, nocomb=1, cack=0, krep=0)
for a in sys.argv[1:]:
    k, _, v = a.partition("=")
    if k not in opts: raise SystemExit("bad opt " + k)
    opts[k] = int(v) if isinstance(opts[k], int) else v.replace("+", " ")
STAMP = opts["stamp"]; ENC = opts["enc"]
NAME = "standalone__moe_arch_mod__prompt"
NR, NF, NRED = 112, 144, 36
NCP0 = NR + 40
NWG = NR + NF
SENT = 0xFF800001
SPIN = 0x40000
KOFF = 0x80000
KREP = opts["krep"]
EOFF = 0xA0000
LCG_A, LCG_C = 1664525, 1013904223
L_PART, L_WIN, L_RED = 2048, 4352, 5120
out = []
e = out.append
role = ["none"]
def stamp(slot):
    if ENC:
        if ENC == f"{role[0]}:{slot}":
            e("  s_memrealtime s[58:59]"); e("  s_waitcnt lgkmcnt(0)"); e("  s_mov_b32 s78, s58")
        return
    if STAMP:
        e("  s_memrealtime s[58:59]"); e("  s_waitcnt lgkmcnt(0)"); e(f"  s_mov_b32 s{60+slot}, s58")
def want(slot): return STAMP or ENC == f"{role[0]}:{slot}"
def fin():
    if STAMP or ENC: e("  s_branch L_flush")
    else: e("  s_endpgm")
def bar(c): e(f"  s_barrier                           ; {c}")
def cm(c): e(f"; {c}")
DPPX = "row_mask:0xf bank_mask:0xf"
def first_row():
    e("  s_lshr_b32 s33, s2, 3               ; ridx")
    e("  s_mul_i32 s20, s33, 4668")
    e("  s_lshr_b32 s20, s20, 8")
    e("  s_lshl_b32 s23, s21, 8")
    e("  s_add_u32 s20, s20, s23")
st_ = [(r*4668) >> 8 for r in range(14)]
assert st_[13] == 237 and all(st_[r+1]-st_[r] <= 19 for r in range(13))

e(f"; @launch grid=({NWG},1,1) block=(640,1,1) lds=8192")
cm("One launch, three roles by workgroup id (id&7 = group that shares lines, for L2 locality only):")
cm("  id <112   routers: 19 rows of x each -> r=x.w_r (bf16) -> best (score,row) key, published {key,tag} in ws;")
cm("            they also mark the partial-sum area empty and pull weight lines into L2")
cm("  id>=112   FFN: 32 hidden units each. waves 0-3 gate/up, 4-7 down, 9 waits for the keys and fetches x[idx]")
cm("            first 36 of them also sum the 144 partial rows (16 columns each), the last 104 copy x to out")
cm("tag = LCG(epoch word found in ws); the epoch is advanced once every workgroup has read it")
e('.amdgcn_target "amdgcn-amd-amdhsa--gfx950"')
e(".text")
e(f".globl {NAME}_kernel")
e(".p2align 8")
e(f".type {NAME}_kernel,@function")
e(f"{NAME}_kernel:")
cm("s[4:5]=x s[6:7]=w_r s[8:9]=w_gate s[10:11]=w_up s[12:13]=w_down s[14:15]=out s[16:17]=dbg s[18:19]=ws")
e("  s_load_dwordx16 s[4:19], s[0:1], 0")
if ENC:
    e("  s_mov_b32 s78, 0")
    if ENC == "start":
        e("  s_memrealtime s[58:59]"); e("  s_waitcnt lgkmcnt(0)"); e("  s_mov_b32 s78, s58")
if STAMP:
    e("  s_memrealtime s[76:77]")
    for i in range(0, 16, 2): e(f"  s_mov_b64 s[{60+i}:{61+i}], 0")
e("  v_lshrrev_b32 v1, 6, v0")
e("  v_and_b32 v0, 63, v0")
e("  v_readfirstlane_b32 s3, v1")
e("  v_and_b32 v3, 7, v0                 ; chi")
e("  v_lshrrev_b32 v2, 3, v0             ; g")
e("  s_and_b32 s21, s2, 7                ; group")
e("  s_cmp_eq_u32 s3, 9")
e("  s_cbranch_scc0 L_notw9")
e("  s_getpc_b64 s[44:45]")
e("L_pc:")
e("  v_min_u32 v28, (L_codeend-L_pc-4)/128, v0")
e("  v_lshlrev_b32 v28, 7, v28")
e("  global_load_dword v29, v28, s[44:45]")
e("  s_branch L_w9")
e("L_notw9:")
e(f"  s_cmp_ge_u32 s2, {NR}")
e("  s_cbranch_scc1 L_ffn")
role[0] = "rt"
cm("---- router waves 0-8: wave w owns columns 64w..64w+63, lane (g,chi) rows 3g..3g+2")
e("  s_lshl_b32 s22, s3, 7")
e("  v_lshl_add_u32 v4, v3, 4, s22")
first_row()
e("  s_mul_i32 s23, s20, 1152")
e("  v_mul_u32_u24 v5, 3*1152, v2")
e("  v_add3_u32 v5, v5, v4, s23          ; x off")
e("  s_mul_i32 s24, s2, 3")
e("  s_add_u32 s24, s24, s3")
e("  s_lshl_b32 s25, s24, 10")
e("  v_lshl_add_u32 v40, v0, 4, s25")
e(f"  v_mov_b32 v44, {SENT:#x}")
e("  v_mov_b32 v45, v44")
e("  v_mov_b64 v[46:47], v[44:45]")
e("  s_cmp_ge_u32 s3, 3")
e("  s_cselect_b32 s24, 999, s24")
e(f"  s_cmp_ge_u32 s24, {NRED*9}")
e("  s_waitcnt lgkmcnt(0)")
stamp(1)
e("  global_load_dwordx4 v[8:11], v4, s[6:7]")
e("  s_mov_b32 exec_hi, 0x00ffffff")
e("  global_load_dwordx4 v[16:19], v5, s[4:5]")
e("  s_mov_b32 exec_hi, 0x0000ffff")
e("  global_load_dwordx4 v[20:23], v5, s[4:5] offset:1152")
e("  global_load_dwordx4 v[24:27], v5, s[4:5] offset:2304")
e("  s_mov_b32 exec_hi, -1")
e("  s_cbranch_scc1 L_rt2")
e("  global_store_dwordx4 v40, v[44:47], s[18:19] sc1")
e("  s_branch L_rt2")
role[0] = "ffn"
e("L_ffn:")
e(f"  s_cmp_ge_u32 s2, {NWG}")
e("  s_cbranch_scc1 L_end")
e(f"  s_sub_u32 s20, s2, {NR}")
e("  s_lshr_b32 s20, s20, 3")
e("  s_mul_i32 s22, s21, 18")
e("  s_add_u32 s20, s20, s22             ; slice 0..143")
e("  s_cmp_ge_u32 s3, 4")
e("  s_cbranch_scc1 L_dn")
cm("---- gate/up waves: 144 rows each = 9 units of 16 rows; lane (g,chi): rows 2g,2g+1, chi<4 gate / chi>=4 up, 8 columns")
e("  s_movk_i32 s22, 9216")
e("  s_mov_b32 s23, 0")
e("  s_and_b32 s33, s20, 1")
e("  s_lshl_b32 s33, s33, 5")
e("  s_mul_i32 s34, s3, 144")
e("  s_add_u32 s35, s34, s33")
e("  s_mul_i32 s36, s35, s22")
e("  s_lshl_b32 s37, s20, 6")
e("  s_add_u32 s36, s36, s37")
e("  v_mul_u32_u24 v4, 2*9216, v2")
e("  v_and_b32 v5, 3, v0")
e("  v_lshlrev_b32 v5, 4, v5")
e("  v_add3_u32 v4, v4, v5, s36")
e("  v_mov_b32 v5, 0")
e("  v_cmp_gt_u32 vcc, 4, v3")
e("  s_waitcnt lgkmcnt(0)")
stamp(1)
e("  v_mov_b32 v8, s8")
e("  v_mov_b32 v9, s9")
e("  v_mov_b32 v10, s10")
e("  v_mov_b32 v11, s11")
e("  v_cndmask_b32 v8, v10, v8, vcc")
e("  v_cndmask_b32 v9, v11, v9, vcc")
e("  v_lshl_add_u64 v[4:5], v[4:5], 0, v[8:9]")
ORD = [0, 1, 4, 5, 2, 3, 6, 7, 8]
ORDB = [u ^ 2 if u < 8 else u for u in ORD]
RB = 100; NS = max(opts["W1"], opts["W2"]) + 2
assert RB + 4*NS <= 132
NVG = 160
def ring(i): return RB + 4*(i % NS)
def guload(i):
    e(f"  global_load_dwordx4 v[{ring(i)}:{ring(i)+3}], v[4:5], off")
    if i == 17: return
    if i % 2 == 0: st = 22
    else:
        t = i//2
        dA = (16*(ORD[t+1]-ORD[t]) - 1)*9216; dB = (16*(ORDB[t+1]-ORDB[t]) - 1)*9216
        e(f"  s_mov_b32 s24, {dA & 0xffffffff:#x}")
        if dA != dB:
            e("  s_bitcmp1_b32 s20, 0")
            e(f"  s_cselect_b32 s24, {dB & 0xffffffff:#x}, s24")
        e("  s_ashr_i32 s25, s24, 31")
        st = 24
    e(f"  v_lshl_add_u64 v[4:5], v[4:5], 0, s[{st}:{st+1}]")
NOCOMB = opts["nocomb"]
def gsetup():
    e("  v_and_b32 v6, 16, v0")
    e("  v_bfe_u32 v7, v0, 3, 1")
    e("  v_lshl_add_u32 v6, v7, 2, v6")
    e("  s_lshl_b32 s34, s34, 1")
    e("  v_add_u32 v6, s34, v6")
    e("  v_lshrrev_b32 v1, 5, v0")
    e("  v_lshlrev_b32 v1, 7, v1")
    e("  v_and_b32 v2, 1, v0")
    e("  v_mul_u32_u24 v92, 0xaaaa, v2")
    e("  v_add_u32 v92, 0x4444, v92")
    e("  v_lshl_add_u32 v2, v2, 6, v1")
    e("  s_lshl_b32 s33, s33, 1")
    e("  v_xor_b32 v2, s33, v2")
    e("  v_add_u32 v2, v2, v6                ; units 0-7")
    e("  v_add_u32 v6, 256, v6               ; unit 8")
    b1, b2 = (2, 4) if NOCOMB else (4, 2)
    e("  v_and_b32 v1, 3, v0")
    e(f"  v_bfe_u32 v72, v0, {b1}, 1")
    e("  v_lshl_add_u32 v1, v1, 1, v72")
    e("  v_mul_u32_u24 v1, 272, v1")
    e("  v_lshl_add_u32 v7, v7, 2, v1")
    e(f"  v_bfe_u32 v72, v0, {b2}, 1")
    e("  v_lshl_add_u32 v7, v72, 7, v7")
    e("  s_lshl_b32 s33, s3, 3")
    e(f"  s_add_u32 s33, s33, {L_PART}")
    e("  v_add_u32 v7, s33, v7")
    for r in list(range(80, 92, 2)) + list(range(132, 152, 2)):
        e(f"  v_mov_b64 v[{r}:{r+1}], 0")
    e(f"  v_mov_b32 v1, {L_WIN}")
    e("  s_mov_b32 s38, 0x00ff00ff")
    e("  s_mov_b32 s39, 0xff00ff00")
    e("  s_mov_b32 s32, 0x0f0f0f0f")
    e("  s_mov_b32 s33, 0x0f0f0f0f")
    e("  s_mov_b32 s34, 0x03030303")
    e("  s_mov_b32 s35, 0x30303030")
    e("  s_mov_b32 s36, 0x0c0c0c0c")
    e("  s_mov_b32 s37, 0xc0c0c0c0")
    e(f"  s_max_u32 s52, s2, {NCP0}")
    e(f"  s_sub_u32 s52, s52, {NCP0}")
    e("  s_lshr_b32 s52, s52, 3")
    e("  s_mul_i32 s52, s52, 23040")
    e("  s_mul_i32 s53, s3, 5760")
    e("  s_add_u32 s52, s52, s53")
    e(f"  s_mul_i32 s54, s21, {256*1152}")
    e("  s_add_u32 s53, s52, 5760")
    e(f"  s_min_u32 s53, s53, {256*1152}")
    e("  s_sub_u32 s55, s53, 16")
    e("  v_lshl_add_u32 v94, v0, 4, s52")
    for t in range(6):
        e(f"  v_add_u32 v{152+t}, {1024*t}, v94")
        e(f"  v_cmp_gt_u32 s[{40+2*t}:{41+2*t}], s53, v{152+t}")
        e(f"  v_min_u32 v{152+t}, s55, v{152+t}")
        e(f"  v_add_u32 v{152+t}, s54, v{152+t}")
    e("  s_movk_i32 s26, 1152")
def gperm(k):
    u = ORD[k]
    for c in range(8):
        d = 8 + 8*c + 4*(u >> 2) + ((u >> 1) & 1) + 2*(u & 1) if u < 8 else 72 + c
        e(f"  v_perm_b32 v{d}, v{ring(2*k+1)+(c>>1)}, v{ring(2*k)+(c>>1)}, s{30+(c&1)}")
def wof(i):
    if i < opts["n0"]: return opts["W0"]
    return opts["W1"] if i < 8 else opts["W2"]
done = 0; permd = 0; setup = False
for i in range(18):
    lim = wof(i) - 1
    if i - done > lim:
        if not setup and i >= opts["gs"]: gsetup(); setup = True
        e(f"  s_waitcnt vmcnt({lim})")
        done = i - lim
        if i == opts['n0']-1: stamp(9)
    while i - NS >= 2*permd:
        assert 2*permd + 2 <= done
        gperm(permd); permd += 1
    guload(i)
    if i == 0:
        e("  s_mov_b32 s30, 0x05040100")
        e("  s_mov_b32 s31, 0x07060302")
    if i + 1 == opts["p0"]: bar("P0: key wave may start")
    if i == 17:
        stamp(2)
        bar("X1: x row requested, stream issued")
    if i == 17 or i + 1 - done > wof(i + 1) - 1:
        while 2*permd + 2 <= done:
            gperm(permd); permd += 1
assert setup
while permd < 9:
    e(f"  s_waitcnt vmcnt({18 - 2*permd - 2})")
    gperm(permd); permd += 1
e("  s_mov_b64 exec, s[32:33]")
stamp(3)
bar("X2: x row in LDS")
stamp(4)
e("  ds_read2_b32 v[80:81], v2 offset0:0 offset1:8")
e("  ds_read2_b32 v[82:83], v2 offset0:2 offset1:10")
e("  s_mov_b64 exec, s[34:35]")
e("  ds_read_b32 v88, v6")
e("  ds_read_b32 v90, v6 offset:8")
e("  s_mov_b64 exec, s[36:37]")
e("  ds_read_b32 v89, v6")
e("  ds_read_b32 v91, v6 offset:8")
e("  s_not_b64 exec, s[32:33]")
e("  ds_read2_b32 v[84:85], v2 offset0:0 offset1:8")
e("  ds_read2_b32 v[86:87], v2 offset0:2 offset1:10")
e("  s_mov_b64 exec, -1")
e("  ds_read_b32 v93, v1")
e("  s_waitcnt lgkmcnt(7)")
for i_ in range(4):
    e(f"  v_smfmac_f32_16x16x64_bf16 v[{132+4*i_}:{135+4*i_}], v[80:83], v[{8+8*i_}:{15+8*i_}], v92")
e("  s_waitcnt lgkmcnt(3)")
e("  v_smfmac_f32_16x16x64_bf16 v[148:151], v[88:91], v[72:79], v92")
e("  s_waitcnt lgkmcnt(1)")
for i_ in range(4):
    e(f"  v_smfmac_f32_16x16x64_bf16 v[{132+4*i_}:{135+4*i_}], v[84:87], v[{40+8*i_}:{47+8*i_}], v92")
e("  s_mov_b64 exec, s[38:39]")
e("  s_nop 3")
for i_ in range(4):
    e(f"  v_add_f32 v{96+i_}, v{132+4*i_}, v{133+4*i_}")
    e(f"  v_add_f32 v{96+i_}, v{96+i_}, v{148+i_}")
    if i_ == 1: e("  ds_write2_b32 v7, v96, v97 offset0:0 offset1:8")
e("  ds_write2_b32 v7, v98, v99 offset0:16 offset1:24")
e("  s_mov_b64 exec, -1")
e("  s_waitcnt lgkmcnt(0)")
bar("H: gate/up partial sums in LDS")
stamp(5)
e(f"  s_cmp_lt_u32 s2, {NR+NRED}")
e("  s_cbranch_scc1 L_red")
e(f"  s_cmp_lt_u32 s2, {NCP0}")
e("  s_cbranch_scc1 L_gend")
cm("---- residual copy: out = x + x*0 for every row but the routed one")
for t in range(6):
    e(f"  global_load_dwordx4 v[{20+4*t}:{23+4*t}], v{152+t}, s[4:5]")
for t in range(6):
    e(f"  v_sub_u32 v95, v{152+t}, v93")
    e("  v_cmp_le_u32 vcc, s26, v95")
    e(f"  s_and_b64 s[{40+2*t}:{41+2*t}], s[{40+2*t}:{41+2*t}], vcc")
e("  v_mov_b32 v18, 0")
e("  v_mov_b32 v19, 0")
for t in range(6):
    e(f"  s_waitcnt vmcnt({5-t})")
    for d in range(4):
        e(f"  v_dot2_f32_bf16 v18, v{20+4*t+d}, v19, v18")
e("  s_nop 2")
e("  v_cmp_u_f32 vcc, v18, v18")
e("  s_cbranch_vccnz L_cpfix")
e("L_cpst:")
stamp(8)
bar("Q: partial row stored")
stamp(6)
for t in range(6):
    e(f"  s_mov_b64 exec, s[{40+2*t}:{41+2*t}]")
    e(f"  s_cbranch_execz L_cs{t}")
    e(f"  global_store_dwordx4 v{152+t}, v[{20+4*t}:{23+4*t}], s[14:15] sc1")
    e(f"L_cs{t}:")
if want(7):
    e("  s_waitcnt vmcnt(0)"); stamp(7)
e("L_gend:")
fin()
role[0] = "dn"
e("L_dn:")
e("  s_cmp_eq_u32 s3, 8")
e("  s_cbranch_scc1 L_w8")
cm("---- down waves: 128 columns each (wave 7 also the last 64), one-hot sparse A picks the column inside a 16 B chunk")
e("  s_sub_u32 s33, s3, 4")
e("  s_mul_i32 s24, s20, 32*1152")
e("  s_lshl_b32 s25, s33, 8")
e("  s_add_u32 s24, s24, s25")
if NOCOMB:
    e("  v_lshrrev_b32 v1, 5, v0")
    e("  v_bfe_u32 v2, v0, 4, 1")
    e("  v_lshl_add_u32 v1, v1, 3, v2")
    e("  v_mul_u32_u24 v4, 1152, v1")
    e("  v_and_b32 v2, 15, v0")
    e("  v_lshl_add_u32 v4, v2, 4, v4")
    e("  s_add_u32 s24, s24, 3456")
else:
    e("  v_lshrrev_b32 v1, 5, v0")
    e("  v_bfe_u32 v2, v0, 3, 1")
    e("  v_lshl_add_u32 v1, v1, 1, v2")
    e("  v_bfe_u32 v2, v0, 4, 1")
    e("  v_lshl_add_u32 v1, v1, 2, v2")
    e("  v_mul_u32_u24 v4, 1152, v1")
    e("  v_lshl_add_u32 v4, v3, 4, v4")
e("  v_add_u32 v4, s24, v4")
e("  v_add_u32 v5, 16*1152, v4")
e("  s_mov_b32 s32, 0xbfb8aa3b           ; -log2(e)")
MK = 100
e("  v_and_b32 v6, 1, v0")
e("  v_lshlrev_b32 v6, 4, v6")
e("  v_mov_b32 v7, 0xffff")
e("  v_lshlrev_b32 v6, v6, v7")
e("  v_cmp_gt_u32 vcc, 4, v3")
e("  v_bfe_u32 v102, v0, 1, 1")
e("  v_mul_u32_u24 v102, 0xaaaa, v102")
e("  v_cndmask_b32 v100, 0, v6, vcc")
e("  v_xor_b32 v101, v100, v6")
e("  v_add_u32 v102, 0x4444, v102")
e("  v_lshrrev_b32 v7, 3, v0")
e("  v_lshl_add_u32 v7, v0, 1, v7")
e("  v_lshlrev_b32 v7, 4, v7")
e(f"  v_add_u32 v7, {L_PART}, v7")
if NOCOMB:
    e("  v_bfe_u32 v103, v0, 3, 1")
    e("  v_bfe_u32 v6, v0, 4, 1              ; v")
    e("  v_lshl_add_u32 v103, v103, 1, v6")
else:
    e("  v_lshrrev_b32 v103, 4, v0")
e("  v_bfe_u32 v6, v0, 2, 1")
e("  v_lshl_add_u32 v103, v103, 1, v6")
e(f"  v_mul_u32_u24 v103, {NF*64}, v103")
e("  v_and_b32 v6, 3, v0")
e("  v_lshl_add_u32 v103, v6, 4, v103")
e("  s_lshl_b32 s26, s20, 6")
e(f"  s_mul_i32 s25, s33, {8*NF*64}")
e("  s_add_u32 s25, s25, s26")
e("  v_add_u32 v103, s25, v103")
e(f"  v_add_u32 v104, {8*NF*64}, v103")
for r in range(88, 100, 2):
    e(f"  v_mov_b64 v[{r}:{r+1}], 0")
e("  s_mov_b32 s34, 0x00ff00ff")
e("  s_mov_b32 s35, 0x00ff00ff")
e("  s_waitcnt lgkmcnt(0)")
bar("P0")
def hchain():
    e("  ds_read_b128 v[108:111], v7")
    e("  ds_read_b128 v[112:115], v7 offset:16")
    e("  s_waitcnt lgkmcnt(1)")
    e("  v_pk_add_f32 v[108:109], v[108:109], v[110:111]")
    e("  s_waitcnt lgkmcnt(0)")
    e("  v_pk_add_f32 v[112:113], v[112:113], v[114:115]")
    e("  v_pk_add_f32 v[108:109], v[108:109], v[112:113]")
    e("  v_add_f32 v108, v108, v109")
    e("  v_cvt_pk_bf16_f32 v108, 0, v108")
    e("  v_mul_f32 v109, s32, v108")
    e("  v_exp_f32 v109, v109")
    if NOCOMB: e(f"  v_mov_b32_dpp v111, v108 row_ror:8 {DPPX}")
    else: e("  s_nop 0")
    e("  v_add_f32 v109, 1.0, v109")
    e("  v_rcp_f32 v109, v109")
    e("  s_nop 0")
    e("  v_mul_f32 v109, v108, v109")
    e("  v_cvt_pk_bf16_f32 v109, 0, v109")
    if NOCOMB:
        e("  v_mul_f32 v110, v111, v109")
    else:
        e("  s_nop 1")
        e("  v_mul_f32_dpp v110, v108, v109 row_shl:4 row_mask:0xf bank_mask:0x5")
        e("  s_nop 1")
        e("  v_mul_f32_dpp v110, v109, v108 row_shr:4 row_mask:0xf bank_mask:0xa")
    e("  v_cvt_pk_bf16_f32 v110, v110, v110")
    e("  s_nop 1")
def down_tail(tail):
    stamp(7)
    e(f"  s_cmp_lt_u32 s2, {NR+NRED}")
    e("  s_cbranch_scc1 L_red")
    e(f"  s_cmp_lt_u32 s2, {NCP0}")
    e(f"  s_cbranch_scc1 L_dq{int(tail)}")
    if opts["cack"]: e("  s_waitcnt vmcnt(0)")
    bar("Q")
    e(f"L_dq{int(tail)}:")
    if want(8):
        e("  s_waitcnt vmcnt(0)"); stamp(8)
    fin()
def down_comb(tail):
    blks = [2, 0, 1] if tail else [0, 1]
    seq = [(b, V) for V in range(2) for b in blks]
    bar("X1"); stamp(2)
    n = 0
    for b, V in seq:
        for hi in range(2):
            r = 8 + 16*b + 8*V + 4*hi
            e(f"  global_load_dwordx4 v[{r}:{r+3}], v{4+hi}, s[12:13] offset:{2304*V+128*b}"); n += 1
            if n == opts["dsplit"]: bar("X2"); stamp(4)
    bar("H"); stamp(5)
    hchain()
    def avar(V, ps):
        for p in ps:
            i_ = 2*V + (p >> 1)
            e(f"  v_and_b32_dpp v{72+4*V+p}, v110, v{MK+(p&1)} quad_perm:[{i_},{i_},{i_},{i_}] {DPPX}")
    avar(0, range(4)); avar(1, range(2))
    for k, (b, V) in enumerate(seq):
        e(f"  s_waitcnt vmcnt({2*(len(seq)-1-k)})")
        if k == len(seq)-1: stamp(6)
        r = 8 + 16*b + 8*V
        e(f"  v_smfmac_f32_16x16x64_bf16 v[{88+4*b}:{91+4*b}], v[{72+4*V}:{75+4*V}], v[{r}:{r+7}], v102")
        if k == 0: avar(1, range(2, 4))
    if tail:
        e("  s_nop 3")
        for r in range(4): e(f"  v_permlane32_swap_b32 v{96+r}, v{112+r}")
        for r in range(4): e(f"  v_permlane32_swap_b32 v{88+r}, v{92+r}")
        for r in range(4): e(f"  v_add_f32_dpp v{96+r}, v{112+r}, v{96+r} row_ror:8 {DPPX}")
    else:
        e("  s_nop 7")
        for r in range(4): e(f"  v_permlane32_swap_b32 v{88+r}, v{92+r}")
    for r in range(4): e(f"  v_add_f32_dpp v{88+r}, v{92+r}, v{88+r} row_ror:8 {DPPX}")
    e("  s_mov_b64 exec, s[34:35]")
    e("  global_store_dwordx4 v103, v[88:91], s[18:19] sc1")
    if tail:
        e("  s_mov_b32 exec_hi, 0")
        e("  global_store_dwordx4 v104, v[96:99], s[18:19] sc1")
    down_tail(tail)
def down_nocomb(tail):
    parts = [1, 0] if tail else [0]
    seq = [(pt, V) for V in range(4) for pt in parts]
    bar("X1"); stamp(2)
    n = 0
    for pt, V in seq:
        if tail: e(f"  s_mov_b64 exec, {'s[34:35]' if pt else -1}")
        for hi in range(2):
            r = 8 + 32*pt + 8*V + 4*hi
            e(f"  global_load_dwordx4 v[{r}:{r+3}], v{4+hi}, s[12:13] offset:{2304*V-3456+256*pt}"); n += 1
            if n == opts["dsplit"]: bar("X2"); stamp(4)
    bar("H"); stamp(5)
    hchain()
    ands = [(V, p) for V in range(4) for p in range(4)]
    def emit_and(k):
        for _ in range(k):
            if ands:
                V, p = ands.pop(0)
                e(f"  v_and_b32_dpp v{72+4*V+p}, v110, v{MK+(p&1)} row_newbcast:{2*V+(p>>1)} {DPPX}")
    emit_and(5)
    for k, (pt, V) in enumerate(seq):
        e(f"  s_waitcnt vmcnt({2*(len(seq)-1-k)})")
        if k == len(seq)-1: stamp(6)
        r = 8 + 32*pt + 8*V
        e(f"  v_smfmac_f32_16x16x64_bf16 v[{88+4*pt}:{91+4*pt}], v[{72+4*V}:{75+4*V}], v[{r}:{r+7}], v102")
        had = len(ands)
        emit_and(2 if tail else 4)
        if had and not ands: e("  s_nop 0")
    if tail:
        e("  s_mov_b32 exec_lo, s34")
        e("  s_mov_b32 exec_hi, 0")
        e("  s_nop 3")
        e("  global_store_dwordx4 v104, v[92:95], s[18:19] sc1")
        e("  s_mov_b32 exec_lo, -1")
    else:
        e("  s_mov_b32 exec_hi, 0")
        e("  s_nop 6")
    e("  global_store_dwordx4 v103, v[88:91], s[18:19] sc1")
    down_tail(tail)
body = down_nocomb if NOCOMB else down_comb
e("  s_cmp_eq_u32 s3, 7")
e("  s_cbranch_scc1 L_dnt")
body(False)
e("L_dnt:")
body(True)
role[0] = "red"
e("L_w8:")
e(f"  s_cmp_ge_u32 s2, {NR+NRED}")
e("  s_cbranch_scc1 L_end")
e("  s_waitcnt lgkmcnt(0)")
bar("P0"); bar("X1"); bar("X2"); bar("H")
cm("---- reducer: wave w sums the pieces of producers 16w..16w+15 once none of them is still marked empty")
e("L_red:")
e("  s_mov_b64 exec, -1")
e(f"  s_sub_u32 s24, s2, {NR}")
e("  s_mul_i32 s24, s24, 9")
e("  s_add_u32 s24, s24, s3")
e("  s_lshl_b32 s24, s24, 10")
e("  v_lshl_add_u32 v8, v0, 4, s24")
e(f"  v_mov_b32 v9, {SENT:#x}")
e("  v_and_b32 v10, 3, v0")
e("  v_lshrrev_b32 v11, 4, v0")
e("  v_lshl_add_u32 v10, v10, 2, v11")
e("  v_mul_u32_u24 v10, 48, v10")
e("  s_lshl_b32 s27, s3, 2")
e(f"  s_add_u32 s27, s27, {L_RED}")
e("  v_add_u32 v10, s27, v10")
e("  s_mov_b32 s34, 0x000f000f")
e("  s_mov_b32 s35, 0x000f000f")
e(f"  s_mov_b32 s57, {SPIN}")
e("  s_waitcnt vmcnt(0)")
bar("Q")
stamp(10)
e("L_red_loop:")
e("  s_mov_b64 exec, -1")
e("  global_load_dwordx4 v[12:15], v8, s[18:19] sc1")
e("  s_sub_u32 s57, s57, 1")
e("  s_cselect_b64 s[36:37], -1, 0")
e("  s_waitcnt vmcnt(0)")
e("  v_permlane32_swap_b32 v12, v14")
e("  v_permlane32_swap_b32 v13, v15")
e("  v_add_f32 v16, v12, v14")
e("  v_add_f32 v17, v13, v15")
e("  v_cmp_ne_u32 s[28:29], v12, v9")
e("  v_cmp_ne_u32 s[30:31], v13, v9")
e("  v_permlane16_swap_b32 v16, v17")
e("  v_add_f32 v16, v16, v17")
e("  v_cmp_ne_u32 s[32:33], v14, v9")
e("  v_cmp_ne_u32 vcc, v15, v9")
e(f"  v_add_f32_dpp v16, v16, v16 row_ror:4 {DPPX}")
e("  s_and_b64 s[28:29], s[28:29], s[30:31]")
e("  s_and_b64 s[32:33], s[32:33], vcc")
e(f"  v_add_f32_dpp v16, v16, v16 row_ror:8 {DPPX}")
e("  s_mov_b64 exec, s[34:35]")
e("  ds_write_b32 v10, v16")
e("  s_and_b64 s[28:29], s[28:29], s[32:33]")
e("  s_or_b64 s[28:29], s[28:29], s[36:37]")
e("  s_cmp_eq_u64 s[28:29], -1")
e("  s_cbranch_scc0 L_red_loop")
if STAMP:
    e(f"  s_sub_u32 s72, {SPIN}, s57")
stamp(11)
e("  s_waitcnt lgkmcnt(0)")
bar("E")
fin()
role[0] = "rt"
e("L_rt2:")
e("  s_lshl_b32 s25, s3, 2")
e("  v_mul_u32_u24 v41, 3*48, v2")
e("  v_add_u32 v41, s25, v41")
e("  s_mov_b32 s28, 0x01010101")
e("  s_mov_b32 s29, 0x01010101")
cm("prefetch addresses (one dword per 128 B line): w_down rows of this group; unit 8 of gate/up; slow-set columns")
PD = 42
e(f"  s_mul_i32 s26, s21, {576*1152}")
e("  s_mul_i32 s34, s33, 9")
e("  s_add_u32 s34, s34, s3")
e(f"  s_mul_i32 s34, s34, {PD}")
e("  v_add_u32 v42, s34, v0")
e("  v_min_u32 v42, 5183, v42")
e("  v_lshl_add_u32 v42, v42, 7, s26")
e("  s_mul_i32 s27, s3, 14")
e("  s_add_u32 s27, s27, s33")
e("  s_mul_i32 s38, s27, 5")
e("  v_add_u32 v49, s38, v0")
e("  v_min_u32 v49, 575, v49")
e("  v_mul_u32_u24 v50, 7282, v49")
e("  v_lshrrev_b32 v50, 16, v50          ; item/9")
for it_ in range(576): assert (it_*7282) >> 16 == it_//9
e("  v_mul_u32_u24 v51, 9, v50")
e("  v_sub_u32 v51, v49, v51             ; item%9")
e("  v_lshrrev_b32 v52, 4, v50")
e("  v_lshl_add_u32 v50, v52, 7, v50")
e("  v_add_u32 v50, 128, v50")
e("  v_mul_u32_u24 v50, 9216, v50")
e("  v_lshl_add_u32 v50, v51, 7, v50")
e("  s_mul_i32 s39, s21, 1152")
e("  v_add_u32 v50, s39, v50")
C3 = opts["pf3"]
n3 = 4*2*16*C3; P3 = -(-n3//126)
CU = [u for t in range(4-C3, 4) for u in (ORD[t], ORDB[t])]
e(f"  s_mul_i32 s38, s27, {P3}")
e("  v_add_u32 v49, s38, v3")
e(f"  v_min_u32 v49, {n3-1}, v49")
e("  v_lshrrev_b32 v51, 6, v49")
e("  v_lshlrev_b32 v51, 2, v51")
e(f"  s_mov_b32 s38, {sum(u << (4*k) for k, u in enumerate(CU)):#x}")
e("  v_bfe_u32 v51, s38, v51, 4")
e("  v_bfe_u32 v52, v49, 4, 2")
e("  v_mul_u32_u24 v52, 144, v52")
e("  v_lshl_add_u32 v51, v51, 4, v52")
e("  v_and_b32 v49, 15, v49")
e("  v_add_u32 v51, v51, v49")
e("  v_mul_u32_u24 v51, 9216, v51")
e("  s_sub_u32 s38, 3, s21")
e("  s_and_b32 s38, s38, 7")
e("  s_lshl_b32 s41, s38, 7")
e("  s_add_u32 s41, s41, s39")
e("  v_add_u32 v51, s41, v51")
e("  s_cmp_eq_u32 s38, 0")
e("  s_cselect_b32 s41, 1024, 0")
e(f"  s_cselect_b32 s37, {(((1<<P3)-1)*0x101):#x}, {(1<<P3)-1}")
e("  v_add_u32 v52, s41, v51")
e("  v_cmp_eq_u32 vcc, 4, v2")
e("  s_nop 1")
e("  v_cndmask_b32 v50, v50, v51, vcc")
e("  v_cmp_eq_u32 vcc, 5, v2")
e("  s_mov_b32 s36, 0x1f")
e("  s_nop 0")
e("  v_cndmask_b32 v50, v50, v52, vcc")
e("  s_waitcnt vmcnt(0)")
stamp(2)
for d in range(4):
    for i in range(3):
        c = "0" if d == 0 else f"v{32+i}"
        e(f"  v_dot2_f32_bf16 v{32+i}, v{16+4*i+d}, v{8+d}, {c}")
e("  s_nop 0")
for dp in ["quad_perm:[1,0,3,2]", "quad_perm:[2,3,0,1]", "row_half_mirror"]:
    for i in range(3):
        e(f"  v_add_f32_dpp v{32+i}, v{32+i}, v{32+i} {dp} {DPPX}")
e("  s_mov_b64 exec, s[28:29]")
e("  ds_write2_b32 v41, v32, v33 offset0:0 offset1:12")
e("  ds_write_b32 v41, v34 offset:96")
e("  s_mov_b64 exec, s[36:37]")
e("  s_waitcnt lgkmcnt(0)")
bar("A: row sums in LDS, empty marks landed")
stamp(3)
bar("B: key store issued")
e("  global_load_dword v49, v50, s[8:9]")
e("  global_load_dword v51, v50, s[10:11]")
e("  s_mov_b32 exec_lo, -1")
e(f"  s_mov_b32 exec_hi, {(1 << (PD-32)) - 1:#x}")
e("  s_waitcnt vmcnt(0)")
stamp(9)
e("  global_load_dword v48, v42, s[12:13]")
if want(8):
    e("  s_waitcnt vmcnt(0)"); stamp(8)
fin()
e("L_w9:")
e(f"  s_cmp_ge_u32 s2, {NWG}")
e("  s_cbranch_scc1 L_end")
e(f"  v_mov_b32 v20, {EOFF:#x}")
e("  s_setprio 3")
e(f"  s_mov_b32 s40, {LCG_A}")
e("  s_waitcnt lgkmcnt(0)")
e("  global_load_dword v20, v20, s[18:19] sc1   ; epoch")
e(f"  s_cmp_ge_u32 s2, {NR}")
e("  s_cbranch_scc1 L_fpoll")
role[0] = "rw9"
cm("---- router wave 9: key = orderable(bf16 r)<<16 | (2047-row), max over the 19 rows")
first_row()
e("  s_mul_i32 s22, s21, 14")
e("  s_add_u32 s22, s22, s33")
e("  s_lshl_b32 s22, s22, 6")
e(f"  s_add_u32 s22, s22, {KOFF:#x}")
if KREP:
    e("  v_lshl_add_u32 v6, v3, 13, s22")
else:
    e("  v_mov_b32 v6, s22")
e("  global_load_dword v30, v6, s[18:19] sc1")
e("  v_and_b32 v42, 31, v0")
e("  v_mul_u32_u24 v43, 48, v42")
e("  v_cmp_gt_u32 s[46:47], 19, v42")
e("  s_sub_u32 s22, 2047, s20")
e("  v_sub_u32 v42, s22, v42")
e("  v_mov_b32 v34, 0")
e("  s_brev_b32 s41, 1")
e("  s_waitcnt vmcnt(1)")
e("  v_mul_lo_u32 v20, v20, s40")
e(f"  v_add_u32 v35, {LCG_C}, v20        ; tag")
e("  s_mov_b64 exec, s[46:47]")
bar("A")
stamp(3)
e("  ds_read_b128 v[36:39], v43")
e("  ds_read_b128 v[48:51], v43 offset:16")
e("  ds_read_b32 v52, v43 offset:32")
e("  s_waitcnt lgkmcnt(2)")
e("  v_pk_add_f32 v[36:37], v[36:37], v[38:39]")
e("  s_waitcnt lgkmcnt(1)")
e("  v_pk_add_f32 v[48:49], v[48:49], v[50:51]")
e("  v_pk_add_f32 v[36:37], v[36:37], v[48:49]")
e("  v_add_f32 v36, v36, v37")
e("  s_waitcnt lgkmcnt(0)")
e("  v_add_f32 v36, v36, v52")
e("  v_cmp_o_f32 vcc, v36, v36")
e("  v_cvt_pk_bf16_f32 v36, 0, v36       ; bf16(r)<<16")
e("  v_ashrrev_i32 v37, 31, v36")
e("  v_lshl_or_b32 v37, v37, 16, s41")
e("  v_xor_b32 v36, v36, v37")
e("  v_cndmask_b32 v36, 0, v36, vcc")
e("  v_or_b32 v34, v36, v42")
e("  s_mov_b64 exec, -1")
for k_, d in enumerate(["quad_perm:[1,0,3,2] row_mask:0xf", "quad_perm:[2,3,0,1] row_mask:0xf", "row_half_mirror row_mask:0xf",
          "row_mirror row_mask:0xf", "row_bcast:15 row_mask:0xa"]):
    e("  s_nop 0" if k_ == 0 else "  s_nop 1")
    e(f"  v_max_u32_dpp v34, v34, v34 {d} bank_mask:0xf")
e(f"  s_mov_b32 exec_lo, {0xff000000 if KREP else 0x80000000:#x}")
e("  s_mov_b32 exec_hi, 0")
e("  global_store_dwordx2 v6, v[34:35], s[18:19] sc1")
stamp(4)
bar("B")
if want(5):
    e("  s_waitcnt vmcnt(0)"); stamp(5)
fin()
role[0] = "fp"
cm("---- FFN wave 9: wait for all 112 keys, fetch x[idx] into LDS; in reducing WGs it also finishes 16 outputs")
e("L_fpoll:")
if KREP:
    e("  s_lshl_b32 s22, s21, 13")
    e(f"  s_add_u32 s22, s22, {KOFF:#x}")
else:
    e(f"  s_mov_b32 s22, {KOFF:#x}")
e("  v_lshl_add_u32 v21, v0, 6, s22")
e(f"  v_min_u32 v22, {NR-65}, v0")
e("  v_add_u32 v22, 64, v22")
e("  v_lshl_add_u32 v22, v22, 6, s22")
e("  v_lshlrev_b32 v7, 4, v0")
e("  s_mov_b32 m0, 0")
e(f"  s_sub_u32 s33, s2, {NR}")
e("  s_lshr_b32 s28, s33, 2")
e("  s_lshl_b32 s28, s28, 7")
e("  s_and_b32 s29, s33, 1")
e("  s_lshl_b32 s29, s29, 6")
e("  s_and_b32 s30, s33, 2")
e("  s_lshl_b32 s30, s30, 2")
e("  s_add_u32 s27, s28, s29")
e("  s_add_u32 s27, s27, s30")
e("  v_and_b32 v49, 15, v0")
e("  v_lshrrev_b32 v50, 2, v49")
e("  v_lshlrev_b32 v50, 4, v50")
e("  v_and_b32 v51, 3, v49")
e("  v_lshl_add_u32 v50, v51, 1, v50")
e("  v_add_u32 v50, s27, v50")
e("  v_mul_u32_u24 v54, 48, v49")
e(f"  v_add_u32 v54, {L_RED}, v54")
e(f"  v_mov_b32 v55, {EOFF:#x}")
e(f"  v_mov_b32 v9, {L_WIN}")
e(f"  s_mov_b32 s57, {SPIN}")
e("  s_waitcnt vmcnt(0)")
e("  v_mul_lo_u32 v20, v20, s40")
e(f"  v_add_u32 v20, {LCG_C}, v20        ; tag")
bar("P0")
stamp(1)
e("L_fp_loop:")
e("  global_load_dwordx2 v[24:25], v21, s[18:19] sc1")
e("  global_load_dwordx2 v[26:27], v22, s[18:19] sc1")
e("  s_sub_u32 s57, s57, 1")
e("  s_cselect_b64 s[36:37], -1, 0")
e("  s_waitcnt vmcnt(0)")
e("  v_max_u32 v24, v24, v26")
e("  v_cmp_eq_u32 vcc, v25, v20")
e("  v_cmp_eq_u32 s[42:43], v27, v20")
e(f"  v_max_u32_dpp v24, v24, v24 quad_perm:[1,0,3,2] {DPPX}")
e("  s_and_b64 vcc, vcc, s[42:43]")
e("  s_or_b64 vcc, vcc, s[36:37]")
e(f"  v_max_u32_dpp v24, v24, v24 quad_perm:[2,3,0,1] {DPPX}")
e("  s_cmp_eq_u64 vcc, -1")
e("  s_cbranch_scc0 L_fp_loop")
if STAMP: e(f"  s_sub_u32 s72, {SPIN}, s57")
stamp(2)
e(f"  v_max_u32_dpp v24, v24, v24 row_half_mirror {DPPX}")
for d in ["row_mirror row_mask:0xf", "row_bcast:15 row_mask:0xa", "row_bcast:31 row_mask:0xc"]:
    e("  s_nop 1")
    e(f"  v_max_u32_dpp v24, v24, v24 {d} bank_mask:0xf")
e("  s_nop 0")
e("  v_readlane_b32 s26, v24, 63")
e("  s_andn2_b32 s25, 0x7ff, s26         ; idx")
e("  s_mul_i32 s25, s25, 1152")
e("  v_add_u32 v5, s25, v7")
e("  global_load_lds_dwordx4 v5, s[4:5]")
e("  s_mov_b64 exec, 0xff")
e("  global_load_lds_dwordx4 v5, s[4:5] offset:1024")
bar("X1")
e("  v_mov_b32 v8, s25")
e("  ds_write_b32 v9, v8")
e("  s_waitcnt vmcnt(0) lgkmcnt(0)")
stamp(3)
bar("X2")
e(f"  s_cmp_lt_u32 s33, {NRED}")
e("  s_cbranch_scc1 L_fin")
if STAMP or ENC.startswith("fp:"):
    bar("H (diagnostic)")
    e(f"  s_cmp_lt_u32 s2, {NCP0}")
    e("  s_cbranch_scc1 L_flush")
    bar("Q (diagnostic)")
fin()
e("L_fin:")
e("  s_setprio 0")
bar("H")
e("  s_mov_b64 exec, 0xffff")
e("  ds_read_u16 v51, v50")
e("  v_add_u32 v50, s25, v50")
e("  s_and_b32 s27, s26, 0xffff0000")
e("  s_ashr_i32 s28, s27, 31")
e("  s_not_b32 s28, s28")
e("  s_or_b32 s28, s28, 0x80000000")
e("  s_xor_b32 s27, s27, s28")
e("  s_and_b32 s27, s27, 0xffff0000")
bar("Q")
e("  v_mov_b32 v52, 0xbfb8aa3b")
e("  v_mul_f32 v52, s27, v52")
e("  v_exp_f32 v52, v52")
e("  s_nop 0")
e("  v_add_f32 v52, 1.0, v52")
e("  v_rcp_f32 v52, v52")
e("  s_nop 0")
e("  v_cvt_pk_bf16_f32 v52, 0, v52")
e("  s_waitcnt lgkmcnt(0)")
e("  v_lshlrev_b32 v51, 16, v51")
e("  v_fma_f32 v51, v51, 0, v51          ; x + x*0")
e("  s_cmp_lg_u32 s33, 0")
bar("E: nine sums per column in LDS")
stamp(7)
e("  ds_read_b128 v[32:35], v54")
e("  ds_read_b128 v[36:39], v54 offset:16")
e("  ds_read_b32 v48, v54 offset:32")
e("  s_waitcnt lgkmcnt(2)")
e("  v_pk_add_f32 v[32:33], v[32:33], v[34:35]")
e("  s_waitcnt lgkmcnt(1)")
e("  v_pk_add_f32 v[36:37], v[36:37], v[38:39]")
e("  v_pk_add_f32 v[32:33], v[32:33], v[36:37]")
e("  v_add_f32 v32, v32, v33")
e("  s_waitcnt lgkmcnt(0)")
e("  v_add_f32 v32, v32, v48")
e("  v_cvt_pk_bf16_f32 v32, 0, v32       ; y")
e("  v_mul_f32 v32, v32, v52")
e("  v_cvt_pk_bf16_f32 v32, 0, v32       ; y*sigmoid(r)")
e("  v_add_f32 v32, v51, v32")
e("  v_cvt_pk_bf16_f32 v32, v32, v32")
e("  global_store_short v50, v32, s[14:15]")
stamp(8)
e("  s_cbranch_scc1 L_finend")
e("  s_mov_b64 exec, 1")
e("  global_store_dword v55, v20, s[18:19]")
e("L_finend:")
if ENC:
    e("L_flush:")
    e("  s_cmp_eq_u32 s78, 0")
    e("  s_cbranch_scc1 L_end")
    if opts["encwg"] >= 0:
        e(f"  s_cmp_lg_u32 s2, {opts['encwg']}")
        e("  s_cbranch_scc1 L_end")
    e("  s_add_u32 s78, s78, 3000")
    e("L_spin:")
    e("  s_memrealtime s[58:59]")
    e("  s_waitcnt lgkmcnt(0)")
    e("  s_sub_u32 s58, s58, s78")
    e("  s_cmp_lt_i32 s58, 0")
    e("  s_cbranch_scc1 L_spin")
if STAMP:
    e("L_flush:")
    e("  s_mov_b64 exec, -1")
    e("  s_sleep 40")
    e("  s_mov_b32 s60, s76")
    e("  s_mul_i32 s56, s2, 10")
    e("  s_add_u32 s56, s56, s3")
    e("  s_lshl_b32 s56, s56, 6")
    e("  s_add_u32 s56, s56, 0x100000")
    e("  s_getreg_b32 s75, hwreg(HW_REG_XCC_ID)")
    e("  s_getpc_b64 s[58:59]")
    e("  s_mov_b32 s73, s58")
    e("  s_mov_b32 s74, s59")
    e("  s_waitcnt vmcnt(0)")
    e("  v_mov_b32 v120, s56")
    for i in range(16): e(f"  v_mov_b32 v{100+i}, s{60+i}")
    e("  s_mov_b64 exec, 1")
    for i in range(4): e(f"  global_store_dwordx4 v120, v[{100+4*i}:{103+4*i}], s[18:19] offset:{16*i}")
e("L_end:")
e("  s_endpgm")
e("L_codeend:")
e("L_cpfix:                              ; some element is Inf/NaN: out = x + x*0 element by element")
e("  s_mov_b32 s30, 0xffff0000")
for d in range(20, 44):
    e(f"  v_lshlrev_b32 v18, 16, v{d}")
    e(f"  v_and_b32 v19, s30, v{d}")
    e("  v_fma_f32 v18, v18, 0, v18")
    e("  v_fma_f32 v19, v19, 0, v19")
    e(f"  v_perm_b32 v{d}, v19, v18, s31")
e("  s_branch L_cpst")
e('.section .rodata,"a"')
e(".p2align 6")
e(f".amdhsa_kernel {NAME}_kernel")
e(f"  .amdhsa_next_free_vgpr {NVG}")
e("  .amdhsa_next_free_sgpr 80")
e(f"  .amdhsa_accum_offset {NVG}")
e("  .amdhsa_group_segment_fixed_size 0")
e("  .amdhsa_kernarg_size 64")
e("  .amdhsa_user_sgpr_count 2")
e("  .amdhsa_user_sgpr_kernarg_segment_ptr 1")
e("  .amdhsa_system_sgpr_workgroup_id_x 1")
e("  .amdhsa_float_denorm_mode_32 3")
e(".end_amdhsa_kernel")
print("\n".join(out))
```

```python
import sys
opts = dict(stamp=0, enc="", encwg=-1, W0=2, n0=3, W1=4, W2=5, p0=12, pf3=2, dsplit=4, gs=6, nocomb=1, cack=0, krep=0, xt=0, wrl=0, pfe=0, il=0, pt=8)
for a in sys.argv[1:]:
    k, _, v = a.partition("=")
    if k not in opts: raise SystemExit("bad opt " + k)
    opts[k] = int(v) if isinstance(opts[k], int) else v.replace("+", " ")
STAMP = opts["stamp"]; ENC = opts["enc"]
NAME = "standalone__moe_arch_mod__prompt"
NR, NF, NRED = 112, 144, 54
NCP0 = NR + 56
NWG = NR + NF
SPIN = 0x40000
KOFF = 0x80000
KREP = opts["krep"]
EOFF = 0xA0000
LCG_A, LCG_C = 1664525, 1013904223
L_PART, L_WIN, L_RED = 2048, 4352, 5120
out = []
e = out.append
role = ["none"]
def stamp(slot):
    if ENC:
        if ENC == f"{role[0]}:{slot}":
            e("  s_memrealtime s[58:59]"); e("  s_waitcnt lgkmcnt(0)"); e("  s_mov_b32 s78, s58")
        return
    if STAMP:
        e("  s_memrealtime s[58:59]"); e("  s_waitcnt lgkmcnt(0)"); e(f"  s_mov_b32 s{60+slot}, s58")
def want(slot): return STAMP or ENC == f"{role[0]}:{slot}"
def fin():
    if STAMP or ENC: e("  s_branch L_flush")
    else: e("  s_endpgm")
def bar(c): e(f"  s_barrier                           ; {c}")
def cm(c): e(f"; {c}")
DPPX = "row_mask:0xf bank_mask:0xf"
def first_row():
    e("  s_lshr_b32 s33, s2, 3               ; ridx")
    e("  s_mul_i32 s20, s33, 4668")
    e("  s_lshr_b32 s20, s20, 8")
    e("  s_lshl_b32 s23, s21, 8")
    e("  s_add_u32 s20, s20, s23")
st_ = [(r*4668) >> 8 for r in range(14)]
assert st_[13] == 237 and all(st_[r+1]-st_[r] <= 19 for r in range(13))

e(f"; @launch grid=({NWG},1,1) block=(640,1,1) lds=8192")
cm("One launch, three roles by workgroup id (id&7 = group that shares lines, for L2 locality only):")
cm("  id <112   routers: 19 rows of x each -> r=x.w_r (bf16) -> best (score,row) key, published {key,tag} in ws;")
cm("            they then pull weight lines into L2")
cm("  id>=112   FFN: 32 hidden units each. waves 0-3 gate/up, 4-7 down, 9 waits for the keys and fetches x[idx]")
cm("            first 54 of them also sum the 144 partial rows (8-12 columns each), the last 88 copy x to out")
cm("tag = LCG(epoch word found in ws); the epoch is advanced once every workgroup has read it")
e('.amdgcn_target "amdgcn-amd-amdhsa--gfx950"')
e(".text")
e(f".globl {NAME}_kernel")
e(".p2align 8")
e(f".type {NAME}_kernel,@function")
e(f"{NAME}_kernel:")
cm("s[4:5]=x s[6:7]=w_r s[8:9]=w_gate s[10:11]=w_up s[12:13]=w_down s[14:15]=out s[16:17]=dbg s[18:19]=ws")
e("  s_load_dwordx16 s[4:19], s[0:1], 0")
if ENC:
    e("  s_mov_b32 s78, 0")
    if ENC == "start":
        e("  s_memrealtime s[58:59]"); e("  s_waitcnt lgkmcnt(0)"); e("  s_mov_b32 s78, s58")
if STAMP:
    e("  s_memrealtime s[76:77]")
    for i in range(0, 16, 2): e(f"  s_mov_b64 s[{60+i}:{61+i}], 0")
e("  v_lshrrev_b32 v1, 6, v0")
e("  v_and_b32 v0, 63, v0")
e("  v_readfirstlane_b32 s3, v1")
e("  v_and_b32 v3, 7, v0                 ; chi")
e("  v_lshrrev_b32 v2, 3, v0             ; g")
e("  s_and_b32 s21, s2, 7                ; group")
e("  s_cmp_eq_u32 s3, 9")
e("  s_cbranch_scc0 L_notw9")
e("  s_getpc_b64 s[44:45]")
e("L_pc:")
e("  v_min_u32 v28, (L_codeend-L_pc-4)/128, v0")
e("  v_lshlrev_b32 v28, 7, v28")
e("  global_load_dword v29, v28, s[44:45]")
e("  s_branch L_w9")
e("L_notw9:")
e(f"  s_cmp_ge_u32 s2, {NR}")
e("  s_cbranch_scc1 L_ffn")
role[0] = "rt"
cm("---- router waves 0-8: wave w owns columns 64w..64w+63, lane (g,chi) rows 3g..3g+2")
e("  s_lshl_b32 s22, s3, 7")
e("  v_lshl_add_u32 v4, v3, 4, s22")
first_row()
e("  s_mul_i32 s23, s20, 1152")
e("  v_mul_u32_u24 v5, 3*1152, v2")
e("  v_add3_u32 v5, v5, v4, s23          ; x off")
e("  s_waitcnt lgkmcnt(0)")
stamp(1)
if not opts["wrl"]: e("  global_load_dwordx4 v[8:11], v4, s[6:7]")
e("  s_mov_b32 exec_hi, 0x00ffffff")
e("  global_load_dwordx4 v[16:19], v5, s[4:5]")
e("  s_mov_b32 exec_hi, 0x0000ffff")
e("  global_load_dwordx4 v[20:23], v5, s[4:5] offset:1152")
e("  global_load_dwordx4 v[24:27], v5, s[4:5] offset:2304")
e("  s_mov_b32 exec_hi, -1")
if opts["wrl"]: e("  global_load_dwordx4 v[8:11], v4, s[6:7]")
e("  s_branch L_rt2")
role[0] = "ffn"
e("L_ffn:")
e(f"  s_cmp_ge_u32 s2, {NWG}")
e("  s_cbranch_scc1 L_end")
e(f"  s_sub_u32 s20, s2, {NR}")
e("  s_lshr_b32 s20, s20, 3")
e("  s_mul_i32 s22, s21, 18")
e("  s_add_u32 s20, s20, s22             ; slice 0..143")
e("  s_cmp_ge_u32 s3, 4")
e("  s_cbranch_scc1 L_dn")
cm("---- gate/up waves: 144 rows each = 9 units of 16 rows; lane (g,chi): rows 2g,2g+1, chi<4 gate / chi>=4 up, 8 columns")
e("  s_movk_i32 s22, 9216")
e("  s_mov_b32 s23, 0")
e("  s_and_b32 s33, s20, 1")
e("  s_lshl_b32 s33, s33, 5")
e("  s_mul_i32 s34, s3, 144")
e("  s_add_u32 s35, s34, s33")
e("  s_mul_i32 s36, s35, s22")
e("  s_lshl_b32 s37, s20, 6")
e("  s_add_u32 s36, s36, s37")
e("  v_mul_u32_u24 v4, 2*9216, v2")
e("  v_and_b32 v5, 3, v0")
e("  v_lshlrev_b32 v5, 4, v5")
e("  v_add3_u32 v4, v4, v5, s36")
e("  v_mov_b32 v5, 0")
if opts["xt"]:
    e("  s_lshl2_add_u32 s40, s20, s3")
    e("  s_lshl_b32 s40, s40, 12")
    e("  v_lshl_add_u32 v12, v0, 7, s40")
e("  v_cmp_gt_u32 vcc, 4, v3")
e("  s_waitcnt lgkmcnt(0)")
stamp(1)
if opts["xt"]:
    e("  s_mov_b32 exec_hi, 0")
    e("  global_load_dword v95, v12, s[4:5]")
    e("  s_mov_b32 exec_hi, -1")
e("  v_mov_b32 v8, s8")
e("  v_mov_b32 v9, s9")
e("  v_mov_b32 v10, s10")
e("  v_mov_b32 v11, s11")
e("  v_cndmask_b32 v8, v10, v8, vcc")
e("  v_cndmask_b32 v9, v11, v9, vcc")
e("  v_lshl_add_u64 v[4:5], v[4:5], 0, v[8:9]")
ORD = {0: [0, 1, 4, 5, 2, 3, 6, 7, 8], 1: [0, 1, 4, 2, 5, 3, 6, 8, 7], 2: [0, 1, 4, 5, 2, 3, 8, 6, 7], 3: [0, 1, 4, 5, 2, 3, 6, 8, 7]}[opts['il']]
ORDB = [u ^ 2 if u < 8 else u for u in ORD]
RB = 100; NS = max(opts["W1"], opts["W2"]) + 2
assert RB + 4*NS <= 132
NVG = 160
def ring(i): return RB + 4*(i % NS)
def guload(i):
    e(f"  global_load_dwordx4 v[{ring(i)}:{ring(i)+3}], v[4:5], off")
    if i == 17: return
    if i % 2 == 0: st = 22
    else:
        t = i//2
        dA = (16*(ORD[t+1]-ORD[t]) - 1)*9216; dB = (16*(ORDB[t+1]-ORDB[t]) - 1)*9216
        e(f"  s_mov_b32 s24, {dA & 0xffffffff:#x}")
        if dA != dB:
            e("  s_bitcmp1_b32 s20, 0")
            e(f"  s_cselect_b32 s24, {dB & 0xffffffff:#x}, s24")
        e("  s_ashr_i32 s25, s24, 31")
        st = 24
    e(f"  v_lshl_add_u64 v[4:5], v[4:5], 0, s[{st}:{st+1}]")
NOCOMB = opts["nocomb"]; NCL = 7
def gsetup():
    e("  v_and_b32 v6, 16, v0")
    e("  v_bfe_u32 v7, v0, 3, 1")
    e("  v_lshl_add_u32 v6, v7, 2, v6")
    e("  s_lshl_b32 s34, s34, 1")
    e("  v_add_u32 v6, s34, v6")
    e("  v_lshrrev_b32 v1, 5, v0")
    e("  v_lshlrev_b32 v1, 7, v1")
    e("  v_and_b32 v2, 1, v0")
    e("  v_mul_u32_u24 v92, 0xaaaa, v2")
    e("  v_add_u32 v92, 0x4444, v92")
    e("  v_lshl_add_u32 v2, v2, 6, v1")
    e("  s_lshl_b32 s33, s33, 1")
    e("  v_xor_b32 v2, s33, v2")
    e("  v_add_u32 v2, v2, v6                ; units 0-7")
    e("  v_add_u32 v6, 256, v6               ; unit 8")
    b1, b2 = (2, 4) if NOCOMB else (4, 2)
    e("  v_and_b32 v1, 3, v0")
    e(f"  v_bfe_u32 v72, v0, {b1}, 1")
    e("  v_lshl_add_u32 v1, v1, 1, v72")
    e("  v_mul_u32_u24 v1, 272, v1")
    e("  v_lshl_add_u32 v7, v7, 2, v1")
    e(f"  v_bfe_u32 v72, v0, {b2}, 1")
    e("  v_lshl_add_u32 v7, v72, 7, v7")
    e("  s_lshl_b32 s33, s3, 3")
    e(f"  s_add_u32 s33, s33, {L_PART}")
    e("  v_add_u32 v7, s33, v7")
    for r in list(range(80, 92, 2)) + list(range(132, 152, 2)):
        e(f"  v_mov_b64 v[{r}:{r+1}], 0")
    e(f"  v_mov_b32 v1, {L_WIN}")
    e("  s_mov_b32 s38, 0x00ff00ff")
    e("  s_mov_b32 s39, 0xff00ff00")
    e("  s_mov_b32 s32, 0x0f0f0f0f")
    e("  s_mov_b32 s33, 0x0f0f0f0f")
    e("  s_mov_b32 s34, 0x03030303")
    e("  s_mov_b32 s35, 0x30303030")
    e("  s_mov_b32 s36, 0x0c0c0c0c")
    e("  s_mov_b32 s37, 0xc0c0c0c0")
    e(f"  s_max_u32 s27, s2, {NCP0}")
    e(f"  s_sub_u32 s27, s27, {NCP0}")
    e("  s_lshr_b32 s27, s27, 3")
    e("  s_mul_i32 s27, s27, 27648")
    e("  s_mul_i32 s28, s3, 6912")
    e("  s_add_u32 s27, s27, s28")
    e(f"  s_mul_i32 s54, s21, {256*1152}")
    e("  s_add_u32 s28, s27, 6912")
    e(f"  s_min_u32 s28, s28, {256*1152}")
    e("  s_sub_u32 s55, s28, 16")
    e("  v_lshl_add_u32 v94, v0, 4, s27")
    for t in range(NCL):
        e(f"  v_add_u32 v{152+t}, {1024*t}, v94")
        e(f"  v_cmp_gt_u32 s[{40+2*t}:{41+2*t}], s28, v{152+t}")
        e(f"  v_min_u32 v{152+t}, s55, v{152+t}")
        e(f"  v_add_u32 v{152+t}, s54, v{152+t}")
    e("  s_movk_i32 s26, 1152")
def gperm(k):
    u = ORD[k]
    for c in range(8):
        d = 8 + 8*c + 4*(u >> 2) + ((u >> 1) & 1) + 2*(u & 1) if u < 8 else 72 + c
        e(f"  v_perm_b32 v{d}, v{ring(2*k+1)+(c>>1)}, v{ring(2*k)+(c>>1)}, s{30+(c&1)}")
def wof(i):
    if i < opts["n0"]: return opts["W0"]
    return opts["W1"] if i < (10 if opts["il"] == 1 else 8) else opts["W2"]
done = 0; permd = 0; setup = False
for i in range(18):
    lim = wof(i) - 1
    if i - done > lim:
        if not setup and i >= opts["gs"]: gsetup(); setup = True
        e(f"  s_waitcnt vmcnt({lim})")
        done = i - lim
        if i == opts['n0']-1: stamp(9)
    while i - NS >= 2*permd:
        assert 2*permd + 2 <= done
        gperm(permd); permd += 1
    guload(i)
    if i == 0:
        e("  s_mov_b32 s30, 0x05040100")
        e("  s_mov_b32 s31, 0x07060302")
    if i + 1 == opts["p0"]: bar("P0: key wave may start")
    if i == 17:
        stamp(2)
        bar("X1: x row requested, stream issued")
    if i == 17 or i + 1 - done > wof(i + 1) - 1:
        while 2*permd + 2 <= done:
            gperm(permd); permd += 1
assert setup
while permd < 9:
    e(f"  s_waitcnt vmcnt({18 - 2*permd - 2})")
    gperm(permd); permd += 1
e("  s_mov_b64 exec, s[32:33]")
stamp(3)
bar("X2: x row in LDS")
stamp(4)
e("  ds_read2_b32 v[80:81], v2 offset0:0 offset1:8")
e("  ds_read2_b32 v[82:83], v2 offset0:2 offset1:10")
e("  s_mov_b64 exec, s[34:35]")
e("  ds_read_b32 v88, v6")
e("  ds_read_b32 v90, v6 offset:8")
e("  s_mov_b64 exec, s[36:37]")
e("  ds_read_b32 v89, v6")
e("  ds_read_b32 v91, v6 offset:8")
e("  s_not_b64 exec, s[32:33]")
e("  ds_read2_b32 v[84:85], v2 offset0:0 offset1:8")
e("  ds_read2_b32 v[86:87], v2 offset0:2 offset1:10")
e("  s_mov_b64 exec, -1")
e("  ds_read_b32 v93, v1")
e("  s_waitcnt lgkmcnt(7)")
for i_ in range(4):
    e(f"  v_smfmac_f32_16x16x64_bf16 v[{132+4*i_}:{135+4*i_}], v[80:83], v[{8+8*i_}:{15+8*i_}], v92")
e("  s_waitcnt lgkmcnt(3)")
e("  v_smfmac_f32_16x16x64_bf16 v[148:151], v[88:91], v[72:79], v92")
e("  s_waitcnt lgkmcnt(1)")
for i_ in range(4):
    e(f"  v_smfmac_f32_16x16x64_bf16 v[{132+4*i_}:{135+4*i_}], v[84:87], v[{40+8*i_}:{47+8*i_}], v92")
e("  s_mov_b64 exec, s[38:39]")
e("  s_nop 3")
for i_ in range(4):
    e(f"  v_add_f32 v{96+i_}, v{132+4*i_}, v{133+4*i_}")
    e(f"  v_add_f32 v{96+i_}, v{96+i_}, v{148+i_}")
    if i_ == 1: e("  ds_write2_b32 v7, v96, v97 offset0:0 offset1:8")
e("  ds_write2_b32 v7, v98, v99 offset0:16 offset1:24")
e("  s_mov_b64 exec, -1")
e("  s_waitcnt lgkmcnt(0)")
bar("H: gate/up partial sums in LDS")
stamp(5)
e(f"  s_cmp_lt_u32 s2, {NR+NRED}")
e("  s_cbranch_scc1 L_red")
e(f"  s_cmp_lt_u32 s2, {NCP0}")
e("  s_cbranch_scc1 L_gend")
cm("---- residual copy: out = x + x*0 for every row but the routed one")
for t in range(NCL):
    e(f"  global_load_dwordx4 v[{20+4*t}:{23+4*t}], v{152+t}, s[4:5]")
for t in range(NCL):
    e(f"  v_sub_u32 v95, v{152+t}, v93")
    e("  v_cmp_le_u32 vcc, s26, v95")
    e(f"  s_and_b64 s[{40+2*t}:{41+2*t}], s[{40+2*t}:{41+2*t}], vcc")
e("  v_mov_b32 v18, 0")
e("  v_mov_b32 v19, 0")
for t in range(NCL):
    e(f"  s_waitcnt vmcnt({NCL-1-t})")
    for d in range(4):
        e(f"  v_dot2_f32_bf16 v18, v{20+4*t+d}, v19, v18")
e("  s_nop 2")
e("  v_cmp_u_f32 vcc, v18, v18")
e("  s_cbranch_vccnz L_cpfix")
e("L_cpst:")
stamp(8)
bar("Q: partial row stored")
stamp(6)
for t in range(NCL):
    e(f"  s_mov_b64 exec, s[{40+2*t}:{41+2*t}]")
    e(f"  s_cbranch_execz L_cs{t}")
    e(f"  global_store_dwordx4 v{152+t}, v[{20+4*t}:{23+4*t}], s[14:15] sc1")
    e(f"L_cs{t}:")
if want(7):
    e("  s_waitcnt vmcnt(0)"); stamp(7)
e("L_gend:")
fin()
role[0] = "dn"
e("L_dn:")
e("  s_cmp_eq_u32 s3, 8")
e("  s_cbranch_scc1 L_w8")
cm("---- down waves: 128 columns each (wave 7 also the last 64), one-hot sparse A picks the column inside a 16 B chunk")
e("  s_sub_u32 s33, s3, 4")
e("  s_mul_i32 s24, s20, 32*1152")
e("  s_lshl_b32 s25, s33, 8")
e("  s_add_u32 s24, s24, s25")
if NOCOMB:
    e("  v_lshrrev_b32 v1, 5, v0")
    e("  v_bfe_u32 v2, v0, 4, 1")
    e("  v_lshl_add_u32 v1, v1, 3, v2")
    e("  v_mul_u32_u24 v4, 1152, v1")
    e("  v_and_b32 v2, 15, v0")
    e("  v_lshl_add_u32 v4, v2, 4, v4")
    e("  s_add_u32 s24, s24, 3456")
else:
    e("  v_lshrrev_b32 v1, 5, v0")
    e("  v_bfe_u32 v2, v0, 3, 1")
    e("  v_lshl_add_u32 v1, v1, 1, v2")
    e("  v_bfe_u32 v2, v0, 4, 1")
    e("  v_lshl_add_u32 v1, v1, 2, v2")
    e("  v_mul_u32_u24 v4, 1152, v1")
    e("  v_lshl_add_u32 v4, v3, 4, v4")
e("  v_add_u32 v4, s24, v4")
e("  v_add_u32 v5, 16*1152, v4")
e("  s_mov_b32 s32, 0xbfb8aa3b           ; -log2(e)")
MK = 100
e("  v_bfe_u32 v6, v0, 2, 2")
e("  v_sub_u32 v1, v2, v6                ; j = m-qd")
e("  v_and_b32 v6, 1, v1")
e("  v_lshlrev_b32 v6, 4, v6")
e("  v_mov_b32 v7, 0xffff")
e("  v_lshlrev_b32 v6, v6, v7")
e("  v_bfe_u32 v102, v1, 1, 1")
e("  v_mul_u32_u24 v102, 0xaaaa, v102")
e("  v_add_u32 v102, 0x4444, v102")
e("  s_mov_b32 s36, 0x00170017")
e("  s_mov_b32 s37, 0x00170017")
e("  s_mov_b32 s38, 0x03600360")
e("  s_mov_b32 s39, 0x03600360")
e("  v_cndmask_b32 v100, 0, v6, s[36:37]")
e("  v_cndmask_b32 v101, 0, v6, s[38:39]")
e("  v_lshrrev_b32 v7, 3, v0")
e("  v_lshl_add_u32 v7, v0, 1, v7")
e("  v_lshlrev_b32 v7, 4, v7")
e(f"  v_add_u32 v7, {L_PART}, v7")
e("  v_lshrrev_b32 v103, 2, v0")
e(f"  v_mul_u32_u24 v103, {NF*64}, v103")
e("  v_and_b32 v6, 3, v0")
e("  s_lshl_b32 s26, s20, 6")
e("  v_lshl_add_u32 v6, v6, 4, s26")
e("  v_add_u32 v103, v103, v6")
e("  v_lshrrev_b32 v104, 4, v0")
e(f"  v_mul_u32_u24 v104, {2*NF*64}, v104")
e("  v_sub_u32 v104, v103, v104")
e(f"  v_add_u32 v104, {48*NF*64}, v104")
e(f"  s_mul_i32 s25, s33, {12*NF*64}")
e("  v_add_u32 v103, s25, v103")
for r in range(88, 100, 2):
    e(f"  v_mov_b64 v[{r}:{r+1}], 0")
e("  s_mov_b32 s34, 0x00ff00ff")
e("  s_mov_b32 s35, 0x00ff00ff")
e("  s_mov_b32 s40, -1")
e("  s_mov_b32 s41, 0xffff")
e("  s_waitcnt lgkmcnt(0)")
if opts["pt"] == 8:
    e("  s_bitcmp1_b32 s20, 0")
    e("  s_cbranch_scc1 L_pw")
e("  s_mov_b32 exec_hi, 0x1111")
e("  s_mov_b32 exec_lo, 0x11111111")
e("  global_load_dword v116, v103, s[18:19]   ; bring the lines this pair will write close")
e("  s_cmp_lg_u32 s3, 7")
e("  s_cbranch_scc1 L_pw")
e("  s_mov_b32 exec_hi, 0x11")
e("  s_mov_b32 exec_lo, 0x00110011")
e("  global_load_dword v117, v104, s[18:19]")
e("L_pw:")
e("  s_mov_b64 exec, -1")
e(f"  v_mov_b32 v105, {L_WIN}")
bar("P0")
def hchain():
    e("  ds_read_b128 v[108:111], v7")
    e("  ds_read_b128 v[112:115], v7 offset:16")
    e("  ds_read_b32 v105, v105 offset:4     ; tag")
    e("  s_waitcnt lgkmcnt(2)")
    e("  v_pk_add_f32 v[108:109], v[108:109], v[110:111]")
    e("  s_waitcnt lgkmcnt(1)")
    e("  v_pk_add_f32 v[112:113], v[112:113], v[114:115]")
    e("  v_pk_add_f32 v[108:109], v[108:109], v[112:113]")
    e("  v_add_f32 v108, v108, v109")
    e("  v_cvt_pk_bf16_f32 v108, 0, v108")
    e("  v_mul_f32 v109, s32, v108")
    e("  v_exp_f32 v109, v109")
    if NOCOMB: e(f"  v_mov_b32_dpp v111, v108 row_ror:8 {DPPX}")
    else: e("  s_nop 0")
    e("  v_add_f32 v109, 1.0, v109")
    e("  v_rcp_f32 v109, v109")
    e("  s_nop 0")
    e("  v_mul_f32 v109, v108, v109")
    e("  v_cvt_pk_bf16_f32 v109, 0, v109     ; silu(g) rounded to bf16")
    if NOCOMB:
        e("  v_mul_f32 v110, v111, v109")
    else:
        e("  s_nop 1")
        e("  v_mul_f32_dpp v110, v108, v109 row_shl:4 row_mask:0xf bank_mask:0x5")
        e("  s_nop 1")
        e("  v_mul_f32_dpp v110, v109, v108 row_shr:4 row_mask:0xf bank_mask:0xa")
    e("  v_cvt_pk_bf16_f32 v110, v110, v110  ; h = silu(g)*u in both halves")
    e("  s_nop 1")
def down_tail(tail):
    stamp(7)
    e(f"  s_cmp_lt_u32 s2, {NR+NRED}")
    e("  s_cbranch_scc1 L_red")
    e(f"  s_cmp_lt_u32 s2, {NCP0}")
    e(f"  s_cbranch_scc1 L_dq{int(tail)}")
    if opts["cack"]: e("  s_waitcnt vmcnt(0)")
    bar("Q")
    e(f"L_dq{int(tail)}:")
    if want(8):
        e("  s_waitcnt vmcnt(0)"); stamp(8)
    fin()
def down_nocomb(tail):
    parts = [1, 0] if tail else [0]
    seq = [(pt, V) for V in range(4) for pt in parts]
    bar("X1"); stamp(2)
    n = 0
    for pt, V in seq:
        if tail: e(f"  s_mov_b64 exec, {'s[34:35]' if pt else -1}")
        for hi in range(2):
            r = 8 + 32*pt + 8*V + 4*hi
            e(f"  global_load_dwordx4 v[{r}:{r+3}], v{4+hi}, s[12:13] offset:{2304*V-3456+256*pt}"); n += 1
            if n == opts["dsplit"]: bar("X2"); stamp(4)
    bar("H"); stamp(5)
    hchain()
    ands = [(V, p) for V in range(4) for p in range(4)]
    def emit_and(k):
        for _ in range(k):
            if ands:
                V, p = ands.pop(0)
                e(f"  v_and_b32_dpp v{72+4*V+p}, v110, v{MK+(p&1)} row_newbcast:{2*V+(p>>1)} {DPPX}")
    emit_and(5)
    for k, (pt, V) in enumerate(seq):
        e(f"  s_waitcnt vmcnt({2*(len(seq)-1-k)})")
        if k == len(seq)-1: stamp(6)
        r = 8 + 32*pt + 8*V
        e(f"  v_smfmac_f32_16x16x64_bf16 v[{88+4*pt}:{91+4*pt}], v[{72+4*V}:{75+4*V}], v[{r}:{r+7}], v102")
        had = len(ands)
        emit_and(2 if tail else 4)
        if had and not ands: e("  s_nop 0")
    if tail:
        e("  s_mov_b32 exec_lo, s34")
        e("  s_movk_i32 exec_hi, 0xff")
        e("  s_waitcnt lgkmcnt(0)")
        e("  s_nop 2")
        e("  v_mov_b32 v95, v105")
        e("  global_store_dwordx4 v104, v[92:95], s[18:19] sc1")
        e("  s_mov_b64 exec, s[40:41]")
    else:
        e("  s_mov_b64 exec, s[40:41]")
        e("  s_waitcnt lgkmcnt(0)")
        e("  s_nop 5")
    e("  v_mov_b32 v91, v105")
    e("  global_store_dwordx4 v103, v[88:91], s[18:19] sc1")
    down_tail(tail)
assert NOCOMB
body = down_nocomb
e("  s_cmp_eq_u32 s3, 7")
e("  s_cbranch_scc1 L_dnt")
body(False)
e("L_dnt:")
body(True)
role[0] = "red"
e("L_w8:")
e(f"  s_cmp_ge_u32 s2, {NR+NRED}")
e("  s_cbranch_scc1 L_end")
e("  s_waitcnt lgkmcnt(0)")
bar("P0"); bar("X1"); bar("X2"); bar("H")
cm("---- reducer: wave w sums the pieces of producers 16w..16w+15 once every dword carries this launch's tag byte")
e("L_red:")
e("  s_mov_b64 exec, -1")
e(f"  s_sub_u32 s24, s2, {NR}")
e("  s_mul_i32 s24, s24, 9")
e("  s_add_u32 s24, s24, s3")
e("  s_lshl_b32 s24, s24, 10")
e("  v_lshl_add_u32 v8, v0, 4, s24")
e(f"  v_mov_b32 v9, {L_WIN}")
e("  ds_read_b32 v9, v9 offset:4")
e("  v_and_b32 v10, 3, v0")
e("  v_lshrrev_b32 v11, 4, v0")
e("  v_lshl_add_u32 v10, v10, 2, v11")
e("  v_mul_u32_u24 v10, 48, v10")
e("  s_lshl_b32 s27, s3, 2")
e(f"  s_add_u32 s27, s27, {L_RED}")
e("  v_add_u32 v10, s27, v10")
e("  s_mov_b32 s34, 0x000f000f")
e("  s_mov_b32 s35, 0x000f000f")
e(f"  s_mov_b32 s57, {SPIN}")
e("  s_waitcnt vmcnt(0) lgkmcnt(0)")
bar("Q")
stamp(10)
e("L_red_loop:")
e("  s_mov_b64 exec, -1")
e("  global_load_dwordx4 v[12:15], v8, s[18:19] sc1")
e("  s_sub_u32 s57, s57, 1")
e("  s_cselect_b64 s[36:37], -1, 0")
e("  s_waitcnt vmcnt(0)")
e("  v_permlane32_swap_b32 v12, v14")
e("  v_permlane32_swap_b32 v13, v18")
e("  v_add_f32 v16, v12, v14")
e("  v_add_f32 v17, v13, v18")
e("  v_cmp_eq_u32 vcc, v15, v9")
e("  s_nop 0")
e("  v_permlane16_swap_b32 v16, v17")
e("  v_add_f32 v16, v16, v17")
e("  s_or_b64 vcc, vcc, s[36:37]")
e("  s_cmp_eq_u64 vcc, -1")
e(f"  v_add_f32_dpp v16, v16, v16 row_ror:4 {DPPX}")
e("  s_nop 1")
e(f"  v_add_f32_dpp v16, v16, v16 row_ror:8 {DPPX}")
e("  s_mov_b64 exec, s[34:35]")
e("  ds_write_b32 v10, v16")
e("  s_cbranch_scc0 L_red_loop")
if STAMP:
    e(f"  s_sub_u32 s72, {SPIN}, s57")
stamp(11)
e("  s_waitcnt lgkmcnt(0)")
bar("E")
fin()
role[0] = "rt"
e("L_rt2:")
e("  s_lshl_b32 s25, s3, 2")
e("  v_mul_u32_u24 v41, 3*48, v2")
e("  v_add_u32 v41, s25, v41")
e("  s_mov_b32 s28, 0x01010101")
e("  s_mov_b32 s29, 0x01010101")
cm("prefetch addresses (one dword per 128 B line): w_down rows of this group; unit 8 of gate/up; slow-set columns")
PD = 42
e(f"  s_mul_i32 s26, s21, {576*1152}")
e("  s_mul_i32 s34, s33, 9")
e("  s_add_u32 s34, s34, s3")
e(f"  s_mul_i32 s34, s34, {PD}")
e("  v_add_u32 v42, s34, v0")
e("  v_min_u32 v42, 5183, v42")
e("  v_lshl_add_u32 v42, v42, 7, s26")
e("  s_mul_i32 s27, s3, 14")
e("  s_add_u32 s27, s27, s33")
e("  s_mul_i32 s38, s27, 5")
e("  v_add_u32 v49, s38, v0")
e("  v_min_u32 v49, 575, v49")
e("  v_mul_u32_u24 v50, 7282, v49")
e("  v_lshrrev_b32 v50, 16, v50          ; item/9")
for it_ in range(576): assert (it_*7282) >> 16 == it_//9
e("  v_mul_u32_u24 v51, 9, v50")
e("  v_sub_u32 v51, v49, v51             ; item%9")
e("  v_lshrrev_b32 v52, 4, v50")
e("  v_lshl_add_u32 v50, v52, 7, v50")
e("  v_add_u32 v50, 128, v50")
e("  v_mul_u32_u24 v50, 9216, v50")
e("  v_lshl_add_u32 v50, v51, 7, v50")
e("  s_mul_i32 s39, s21, 1152")
e("  v_add_u32 v50, s39, v50")
C3 = opts["pf3"]
n3 = 4*2*16*C3; P3 = -(-n3//126)
CU = [u for t in [0, 1, 4, 5][4-C3:] for u in (t, t ^ 2)]
e(f"  s_mul_i32 s38, s27, {P3}")
e("  v_add_u32 v49, s38, v3")
e(f"  v_min_u32 v49, {n3-1}, v49")
e("  v_lshrrev_b32 v51, 6, v49")
e("  v_lshlrev_b32 v51, 2, v51")
e(f"  s_mov_b32 s38, {sum(u << (4*k) for k, u in enumerate(CU)):#x}")
e("  v_bfe_u32 v51, s38, v51, 4")
e("  v_bfe_u32 v52, v49, 4, 2")
e("  v_mul_u32_u24 v52, 144, v52")
e("  v_lshl_add_u32 v51, v51, 4, v52")
e("  v_and_b32 v49, 15, v49")
e("  v_add_u32 v51, v51, v49")
e("  v_mul_u32_u24 v51, 9216, v51")
e("  s_sub_u32 s38, 3, s21")
e("  s_and_b32 s38, s38, 7")
e("  s_lshl_b32 s41, s38, 7")
e("  s_add_u32 s41, s41, s39")
e("  v_add_u32 v51, s41, v51")
e("  s_cmp_eq_u32 s38, 0")
e("  s_cselect_b32 s41, 1024, 0")
e(f"  s_cselect_b32 s37, {(((1<<P3)-1)*0x101):#x}, {(1<<P3)-1}")
e("  v_add_u32 v52, s41, v51")
e("  v_cmp_eq_u32 vcc, 4, v2")
e("  s_nop 1")
e("  v_cndmask_b32 v50, v50, v51, vcc")
e("  v_cmp_eq_u32 vcc, 5, v2")
e("  s_mov_b32 s36, 0x1f")
e("  s_nop 0")
e("  v_cndmask_b32 v50, v50, v52, vcc")
e("  s_waitcnt vmcnt(0)")
stamp(2)
for d in range(4):
    for i in range(3):
        c = "0" if d == 0 else f"v{32+i}"
        e(f"  v_dot2_f32_bf16 v{32+i}, v{16+4*i+d}, v{8+d}, {c}")
e("  s_nop 0")
for dp in ["quad_perm:[1,0,3,2]", "quad_perm:[2,3,0,1]", "row_half_mirror"]:
    for i in range(3):
        e(f"  v_add_f32_dpp v{32+i}, v{32+i}, v{32+i} {dp} {DPPX}")
e("  s_mov_b64 exec, s[28:29]")
e("  ds_write2_b32 v41, v32, v33 offset0:0 offset1:12")
e("  ds_write_b32 v41, v34 offset:96")
e("  s_mov_b64 exec, s[36:37]")
e("  s_waitcnt lgkmcnt(0)")
bar("A: row sums in LDS")
stamp(3)
bar("B: key store issued")
e("  global_load_dword v49, v50, s[8:9]")
e("  global_load_dword v51, v50, s[10:11]")
PE = opts["pfe"]
if PE:
    e(f"  s_mov_b64 exec, {(1 << PE) - 1:#x}")
    e("  global_load_dword v47, v42, s[12:13]")
mm = ((1 << PD) - 1) ^ ((1 << PE) - 1)
e(f"  s_mov_b32 exec_lo, {mm & 0xffffffff:#x}")
e(f"  s_mov_b32 exec_hi, {mm >> 32:#x}")
e(f"  s_waitcnt vmcnt({1 if PE else 0})")
stamp(9)
e("  global_load_dword v48, v42, s[12:13]")
if want(8):
    e("  s_waitcnt vmcnt(0)"); stamp(8)
fin()
e("L_w9:")
e(f"  s_cmp_ge_u32 s2, {NWG}")
e("  s_cbranch_scc1 L_end")
e(f"  v_mov_b32 v20, {EOFF:#x}")
e("  s_setprio 3")
e(f"  s_mov_b32 s40, {LCG_A}")
e("  s_waitcnt lgkmcnt(0)")
e("  global_load_dword v20, v20, s[18:19] sc1   ; epoch")
e(f"  s_cmp_ge_u32 s2, {NR}")
e("  s_cbranch_scc1 L_fpoll")
role[0] = "rw9"
cm("---- router wave 9: key = orderable(bf16 r)<<16 | (2047-row), max over the 19 rows")
first_row()
e("  s_mul_i32 s22, s21, 14")
e("  s_add_u32 s22, s22, s33")
e("  s_lshl_b32 s22, s22, 6")
e(f"  s_add_u32 s22, s22, {KOFF:#x}")
if KREP:
    e("  v_lshl_add_u32 v6, v3, 13, s22")
else:
    e("  v_mov_b32 v6, s22")
e("  global_load_dword v30, v6, s[18:19] sc1")
e("  v_and_b32 v42, 31, v0")
e("  v_mul_u32_u24 v43, 48, v42")
e("  v_cmp_gt_u32 s[46:47], 19, v42")
e("  s_sub_u32 s22, 2047, s20")
e("  v_sub_u32 v42, s22, v42")
e("  v_mov_b32 v34, 0")
e("  s_brev_b32 s41, 1")
e("  s_waitcnt vmcnt(1)")
e("  v_mul_lo_u32 v20, v20, s40")
e(f"  v_add_u32 v35, {LCG_C}, v20        ; tag")
e("  s_mov_b64 exec, s[46:47]")
bar("A")
stamp(3)
e("  ds_read_b128 v[36:39], v43")
e("  ds_read_b128 v[48:51], v43 offset:16")
e("  ds_read_b32 v52, v43 offset:32")
e("  s_waitcnt lgkmcnt(2)")
e("  v_pk_add_f32 v[36:37], v[36:37], v[38:39]")
e("  s_waitcnt lgkmcnt(1)")
e("  v_pk_add_f32 v[48:49], v[48:49], v[50:51]")
e("  v_pk_add_f32 v[36:37], v[36:37], v[48:49]")
e("  v_add_f32 v36, v36, v37")
e("  s_waitcnt lgkmcnt(0)")
e("  v_add_f32 v36, v36, v52")
e("  v_cmp_o_f32 vcc, v36, v36")
e("  v_cvt_pk_bf16_f32 v36, 0, v36       ; bf16(r)<<16")
e("  v_ashrrev_i32 v37, 31, v36")
e("  v_lshl_or_b32 v37, v37, 16, s41")
e("  v_xor_b32 v36, v36, v37")
e("  v_cndmask_b32 v36, 0, v36, vcc")
e("  v_or_b32 v34, v36, v42")
e("  s_mov_b64 exec, -1")
for k_, d in enumerate(["quad_perm:[1,0,3,2] row_mask:0xf", "quad_perm:[2,3,0,1] row_mask:0xf", "row_half_mirror row_mask:0xf",
          "row_mirror row_mask:0xf", "row_bcast:15 row_mask:0xa"]):
    e("  s_nop 0" if k_ == 0 else "  s_nop 1")
    e(f"  v_max_u32_dpp v34, v34, v34 {d} bank_mask:0xf")
e(f"  s_mov_b32 exec_lo, {0xff000000 if KREP else 0x80000000:#x}")
e("  s_mov_b32 exec_hi, 0")
e("  global_store_dwordx2 v6, v[34:35], s[18:19] sc1")
stamp(4)
bar("B")
if want(5):
    e("  s_waitcnt vmcnt(0)"); stamp(5)
fin()
role[0] = "fp"
cm("---- FFN wave 9: wait for all 112 keys, fetch x[idx] into LDS; in reducing WGs it also finishes 16 outputs")
e("L_fpoll:")
if KREP:
    e("  s_lshl_b32 s22, s21, 13")
    e(f"  s_add_u32 s22, s22, {KOFF:#x}")
else:
    e(f"  s_mov_b32 s22, {KOFF:#x}")
e("  v_lshl_add_u32 v21, v0, 6, s22")
e(f"  v_min_u32 v22, {NR-65}, v0")
e("  v_add_u32 v22, 64, v22")
e("  v_lshl_add_u32 v22, v22, 6, s22")
e("  v_lshlrev_b32 v7, 4, v0")
e("  s_mov_b32 m0, 0")
e(f"  s_sub_u32 s33, s2, {NR}              ; reducer j")
e("  s_mul_i32 s28, s33, 5462")
e("  s_lshr_b32 s28, s28, 16             ; w' = j/12")
e("  s_mul_i32 s29, s28, 12")
e("  s_sub_u32 s29, s33, s29")
e("  s_cmp_lt_u32 s33, 48")
e("  s_cselect_b32 s30, 2, 1")
e("  s_cselect_b32 s31, 3, 1")
e("  s_lshr_b32 s30, s29, s30            ; qd")
e("  s_and_b32 s29, s29, s31             ; n>>2")
e("  s_lshl_b32 s27, s28, 8")
e("  s_lshl_b32 s29, s29, 6")
e("  s_add_u32 s27, s27, s29")
e("  s_mul_i32 s29, s30, 6")
e("  s_add_u32 s27, s27, s29")
e("  s_movk_i32 s48, 0x7777")
e("  s_cmp_eq_u32 s30, 2")
e("  s_cselect_b32 s48, 0x3333, s48")
e("  s_mov_b32 s49, 0")
for j_ in range(144): assert (j_*5462) >> 16 == j_//12
e("  v_and_b32 v49, 15, v0")
e("  v_lshrrev_b32 v50, 2, v49")
e("  v_lshlrev_b32 v50, 4, v50")
e("  v_and_b32 v51, 3, v49")
e("  v_lshl_add_u32 v50, v51, 1, v50")
e("  v_add_u32 v50, s27, v50")
e("  v_mul_u32_u24 v54, 48, v49")
e(f"  v_add_u32 v54, {L_RED}, v54")
e(f"  v_mov_b32 v55, {EOFF:#x}")
e(f"  v_mov_b32 v9, {L_WIN}")
e(f"  s_mov_b32 s57, {SPIN}")
e("  s_waitcnt vmcnt(0)")
e("  v_mul_lo_u32 v20, v20, s40")
e(f"  v_add_u32 v20, {LCG_C}, v20        ; tag")
bar("P0")
stamp(1)
e("L_fp_loop:")
e("  global_load_dwordx2 v[24:25], v21, s[18:19] sc1")
e("  global_load_dwordx2 v[26:27], v22, s[18:19] sc1")
e("  s_sub_u32 s57, s57, 1")
e("  s_cselect_b64 s[36:37], -1, 0")
e("  s_waitcnt vmcnt(0)")
e("  v_max_u32 v24, v24, v26")
e("  v_cmp_eq_u32 vcc, v25, v20")
e("  v_cmp_eq_u32 s[42:43], v27, v20")
e(f"  v_max_u32_dpp v24, v24, v24 quad_perm:[1,0,3,2] {DPPX}")
e("  s_and_b64 vcc, vcc, s[42:43]")
e("  s_or_b64 vcc, vcc, s[36:37]")
e(f"  v_max_u32_dpp v24, v24, v24 quad_perm:[2,3,0,1] {DPPX}")
e("  s_cmp_eq_u64 vcc, -1")
e("  s_cbranch_scc0 L_fp_loop")
if STAMP: e(f"  s_sub_u32 s72, {SPIN}, s57")
stamp(2)
e(f"  v_max_u32_dpp v24, v24, v24 row_half_mirror {DPPX}")
for d in ["row_mirror row_mask:0xf", "row_bcast:15 row_mask:0xa", "row_bcast:31 row_mask:0xc"]:
    e("  s_nop 1")
    e(f"  v_max_u32_dpp v24, v24, v24 {d} bank_mask:0xf")
e("  s_nop 0")
e("  v_readlane_b32 s26, v24, 63")
e("  s_andn2_b32 s25, 0x7ff, s26         ; idx")
e("  s_mul_i32 s25, s25, 1152")
e("  v_add_u32 v5, s25, v7")
e("  global_load_lds_dwordx4 v5, s[4:5]")
e("  s_mov_b64 exec, 0xff")
e("  global_load_lds_dwordx4 v5, s[4:5] offset:1024")
bar("X1")
e("  v_mov_b32 v8, s25")
e("  ds_write2_b32 v9, v8, v20 offset0:0 offset1:1")
e("  s_waitcnt vmcnt(0) lgkmcnt(0)")
stamp(3)
bar("X2")
e(f"  s_cmp_lt_u32 s33, {NRED}")
e("  s_cbranch_scc1 L_fin")
if STAMP or ENC.startswith("fp:"):
    bar("H (diagnostic)")
    e(f"  s_cmp_lt_u32 s2, {NCP0}")
    e("  s_cbranch_scc1 L_flush")
    bar("Q (diagnostic)")
fin()
e("L_fin:")
e("  s_setprio 0")
bar("H")
e("  s_mov_b64 exec, s[48:49]")
e("  ds_read_u16 v51, v50")
e("  v_add_u32 v50, s25, v50")
e("  s_and_b32 s27, s26, 0xffff0000")
e("  s_ashr_i32 s28, s27, 31")
e("  s_not_b32 s28, s28")
e("  s_or_b32 s28, s28, 0x80000000")
e("  s_xor_b32 s27, s27, s28")
e("  s_and_b32 s27, s27, 0xffff0000")
bar("Q")
e("  v_mov_b32 v52, 0xbfb8aa3b")
e("  v_mul_f32 v52, s27, v52")
e("  v_exp_f32 v52, v52")
e("  s_nop 0")
e("  v_add_f32 v52, 1.0, v52")
e("  v_rcp_f32 v52, v52")
e("  s_nop 0")
e("  v_cvt_pk_bf16_f32 v52, 0, v52")
e("  s_waitcnt lgkmcnt(0)")
e("  v_lshlrev_b32 v51, 16, v51")
e("  v_fma_f32 v51, v51, 0, v51          ; x + x*0")
e("  s_cmp_lg_u32 s33, 0")
bar("E: nine sums per column in LDS")
stamp(7)
e("  ds_read_b128 v[32:35], v54")
e("  ds_read_b128 v[36:39], v54 offset:16")
e("  ds_read_b32 v48, v54 offset:32")
e("  s_waitcnt lgkmcnt(2)")
e("  v_pk_add_f32 v[32:33], v[32:33], v[34:35]")
e("  s_waitcnt lgkmcnt(1)")
e("  v_pk_add_f32 v[36:37], v[36:37], v[38:39]")
e("  v_pk_add_f32 v[32:33], v[32:33], v[36:37]")
e("  v_add_f32 v32, v32, v33")
e("  s_waitcnt lgkmcnt(0)")
e("  v_add_f32 v32, v32, v48")
e("  v_cvt_pk_bf16_f32 v32, 0, v32       ; y")
e("  v_mul_f32 v32, v32, v52")
e("  v_cvt_pk_bf16_f32 v32, 0, v32       ; y*sigmoid(r)")
e("  v_add_f32 v32, v51, v32")
e("  v_cvt_pk_bf16_f32 v32, v32, v32")
e("  global_store_short v50, v32, s[14:15]")
stamp(8)
e("  s_cbranch_scc1 L_finend")
e("  s_mov_b64 exec, 1")
e("  global_store_dword v55, v20, s[18:19]")
e("L_finend:")
if ENC:
    e("L_flush:")
    e("  s_cmp_eq_u32 s78, 0")
    e("  s_cbranch_scc1 L_end")
    if opts["encwg"] >= 0:
        e(f"  s_cmp_lg_u32 s2, {opts['encwg']}")
        e("  s_cbranch_scc1 L_end")
    e("  s_add_u32 s78, s78, 3000")
    e("L_spin:")
    e("  s_memrealtime s[58:59]")
    e("  s_waitcnt lgkmcnt(0)")
    e("  s_sub_u32 s58, s58, s78")
    e("  s_cmp_lt_i32 s58, 0")
    e("  s_cbranch_scc1 L_spin")
if STAMP:
    e("L_flush:")
    e("  s_mov_b64 exec, -1")
    e("  s_sleep 40")
    e("  s_mov_b32 s60, s76")
    e("  s_mul_i32 s56, s2, 10")
    e("  s_add_u32 s56, s56, s3")
    e("  s_lshl_b32 s56, s56, 6")
    e("  s_add_u32 s56, s56, 0x100000")
    e("  s_getreg_b32 s75, hwreg(HW_REG_XCC_ID)")
    e("  s_getpc_b64 s[58:59]")
    e("  s_mov_b32 s73, s58")
    e("  s_mov_b32 s74, s59")
    e("  s_waitcnt vmcnt(0)")
    e("  v_mov_b32 v120, s56")
    for i in range(16): e(f"  v_mov_b32 v{100+i}, s{60+i}")
    e("  s_mov_b64 exec, 1")
    for i in range(4): e(f"  global_store_dwordx4 v120, v[{100+4*i}:{103+4*i}], s[18:19] offset:{16*i}")
e("L_end:")
e("  s_endpgm")
e("L_codeend:")
e("L_cpfix:                              ; some element is Inf/NaN: out = x + x*0 element by element")
e("  s_mov_b32 s30, 0xffff0000")
for d in range(20, 20+4*NCL):
    e(f"  v_lshlrev_b32 v18, 16, v{d}")
    e(f"  v_and_b32 v19, s30, v{d}")
    e("  v_fma_f32 v18, v18, 0, v18")
    e("  v_fma_f32 v19, v19, 0, v19")
    e(f"  v_perm_b32 v{d}, v19, v18, s31")
e("  s_branch L_cpst")
e('.section .rodata,"a"')
e(".p2align 6")
e(f".amdhsa_kernel {NAME}_kernel")
e(f"  .amdhsa_next_free_vgpr {NVG}")
e("  .amdhsa_next_free_sgpr 80")
e(f"  .amdhsa_accum_offset {NVG}")
e("  .amdhsa_group_segment_fixed_size 0")
e("  .amdhsa_kernarg_size 64")
e("  .amdhsa_user_sgpr_count 2")
e("  .amdhsa_user_sgpr_kernarg_segment_ptr 1")
e("  .amdhsa_system_sgpr_workgroup_id_x 1")
e("  .amdhsa_float_denorm_mode_32 3")
e(".end_amdhsa_kernel")
print("\n".join(out))
```

```python
import sys
opts = dict(stamp=0, enc="", encwg=-1, W0=2, n0=3, W1=4, W2=5, p0=12, pf3=2, dsplit=4, gs=6, nocomb=1, cack=0, krep=0, xt=0, wrl=0, pfe=0, il=0, noclear=0, hca=0, hcw=0, hw=3, hn=8, ks=6, mf="", hf="", pf="", df="", fast0=1, cpw=0)
for a in sys.argv[1:]:
    k, _, v = a.partition("=")
    if k not in opts: raise SystemExit("bad opt " + k)
    opts[k] = int(v) if isinstance(opts[k], int) else v.replace("+", " ")
STAMP = opts["stamp"]; ENC = opts["enc"]
NAME = "standalone__moe_arch_mod__prompt"
NR, NF, NRED = 112, 144, 36
NCP0 = NR + 40
NWG = NR + NF
SENT = 0xFF800001
SPIN = 0x40000
if opts['noclear']: SENT = 0xA5A5A5A5
KOFF = 0x80000
KREP = opts["krep"]
EOFF = 0xA0000
LCG_A, LCG_C = 1664525, 1013904223
L_PART, L_WIN, L_RED = 2048, 4352, 5120
out = []
e = out.append
role = ["none"]
def stamp(slot):
    if ENC:
        if ENC == f"{role[0]}:{slot}":
            e("  s_memrealtime s[58:59]"); e("  s_waitcnt lgkmcnt(0)"); e("  s_mov_b32 s78, s58")
        return
    if STAMP:
        e("  s_memrealtime s[58:59]"); e("  s_waitcnt lgkmcnt(0)"); e(f"  s_mov_b32 s{60+slot}, s58")
def want(slot): return STAMP or ENC == f"{role[0]}:{slot}"
def fin():
    if STAMP or ENC: e("  s_branch L_flush")
    else: e("  s_endpgm")
def bar(c): e(f"  s_barrier                           ; {c}")
def cm(c): e(f"; {c}")
DPPX = "row_mask:0xf bank_mask:0xf"
def first_row():
    e("  s_lshr_b32 s33, s2, 3               ; ridx")
    e("  s_mul_i32 s20, s33, 4668")
    e("  s_lshr_b32 s20, s20, 8")
    e("  s_lshl_b32 s23, s21, 8")
    e("  s_add_u32 s20, s20, s23")
st_ = [(r*4668) >> 8 for r in range(14)]
assert st_[13] == 237 and all(st_[r+1]-st_[r] <= 19 for r in range(13))

e(f"; @launch grid=({NWG},1,1) block=(640,1,1) lds=8192")
cm("One launch, three roles by workgroup id (id&7 = group that shares lines, for L2 locality only):")
cm("  id <112   routers: 19 rows of x each -> r=x.w_r (bf16) -> best (score,row) key, published {key,tag} in ws;")
cm("            they also mark the partial-sum area empty and pull weight lines into L2")
cm("  id>=112   FFN: 32 hidden units each. waves 0-3 gate/up, 4-7 down, 9 waits for the keys and fetches x[idx]")
cm("            first 36 of them also sum the 144 partial rows (16 columns each), the last 104 copy x to out")
cm("tag = LCG(epoch word found in ws); the epoch is advanced once every workgroup has read it")
e('.amdgcn_target "amdgcn-amd-amdhsa--gfx950"')
e(".text")
e(f".globl {NAME}_kernel")
e(".p2align 8")
e(f".type {NAME}_kernel,@function")
e(f"{NAME}_kernel:")
cm("s[4:5]=x s[6:7]=w_r s[8:9]=w_gate s[10:11]=w_up s[12:13]=w_down s[14:15]=out s[16:17]=dbg s[18:19]=ws")
e("  s_load_dwordx16 s[4:19], s[0:1], 0")
if ENC:
    e("  s_mov_b32 s78, 0")
    if ENC == "start":
        e("  s_memrealtime s[58:59]"); e("  s_waitcnt lgkmcnt(0)"); e("  s_mov_b32 s78, s58")
if STAMP:
    e("  s_memrealtime s[76:77]")
    for i in range(0, 16, 2): e(f"  s_mov_b64 s[{60+i}:{61+i}], 0")
e("  v_lshrrev_b32 v1, 6, v0")
e("  v_and_b32 v0, 63, v0")
e("  v_readfirstlane_b32 s3, v1")
e("  v_and_b32 v3, 7, v0                 ; chi")
e("  v_lshrrev_b32 v2, 3, v0             ; g")
e("  s_and_b32 s21, s2, 7                ; group")
e("  s_cmp_eq_u32 s3, 9")
e("  s_cbranch_scc0 L_notw9")
if opts["cpw"]:
    e(f"  s_cmp_lt_u32 s2, {opts['cpw']}")
    e("  s_cbranch_scc1 L_w9")
e("  s_getpc_b64 s[44:45]")
e("L_pc:")
e("  v_min_u32 v28, (L_codeend-L_pc-4)/128, v0")
e("  v_lshlrev_b32 v28, 7, v28")
e("  global_load_dword v29, v28, s[44:45]")
e("  s_branch L_w9")
e("L_notw9:")
e(f"  s_cmp_ge_u32 s2, {NR}")
e("  s_cbranch_scc1 L_ffn")
role[0] = "rt"
cm("---- router waves 0-8: wave w owns columns 64w..64w+63, lane (g,chi) rows 3g..3g+2")
e("  s_lshl_b32 s22, s3, 7")
e("  v_lshl_add_u32 v4, v3, 4, s22")
first_row()
e("  s_mul_i32 s23, s20, 1152")
e("  v_mul_u32_u24 v5, 3*1152, v2")
e("  v_add3_u32 v5, v5, v4, s23          ; x off")
e("  s_mul_i32 s24, s2, 3")
e("  s_add_u32 s24, s24, s3")
e("  s_lshl_b32 s25, s24, 10")
e("  v_lshl_add_u32 v40, v0, 4, s25")
e(f"  v_mov_b32 v44, {SENT:#x}")
e("  v_mov_b32 v45, v44")
e("  v_mov_b64 v[46:47], v[44:45]")
e("  s_cmp_ge_u32 s3, 3")
e("  s_cselect_b32 s24, 999, s24")
e(f"  s_cmp_ge_u32 s24, {NRED*9}")
e("  s_waitcnt lgkmcnt(0)")
stamp(1)
if not opts["wrl"]: e("  global_load_dwordx4 v[8:11], v4, s[6:7]")
e("  s_mov_b32 exec_hi, 0x00ffffff")
e("  global_load_dwordx4 v[16:19], v5, s[4:5]")
e("  s_mov_b32 exec_hi, 0x0000ffff")
e("  global_load_dwordx4 v[20:23], v5, s[4:5] offset:1152")
e("  global_load_dwordx4 v[24:27], v5, s[4:5] offset:2304")
e("  s_mov_b32 exec_hi, -1")
if opts["wrl"]: e("  global_load_dwordx4 v[8:11], v4, s[6:7]")
e("  s_cbranch_scc1 L_rt2")
if opts["noclear"] == 2:
    out.pop()
    e("  s_cbranch_scc0 L_cl")
    e("  global_load_dword v30, v4, s[6:7]")
    e("  s_branch L_rt2")
    e("L_cl:")
if opts["noclear"] in (0, 2): e("  global_store_dwordx4 v40, v[44:47], s[18:19] sc1")
e("  s_branch L_rt2")
role[0] = "ffn"
e("L_ffn:")
e(f"  s_cmp_ge_u32 s2, {NWG}")
e("  s_cbranch_scc1 L_end")
e(f"  s_sub_u32 s20, s2, {NR}")
e("  s_lshr_b32 s20, s20, 3")
e("  s_mul_i32 s22, s21, 18")
e("  s_add_u32 s20, s20, s22             ; slice 0..143")
e("  s_cmp_ge_u32 s3, 4")
e("  s_cbranch_scc1 L_dn")
cm("---- gate/up waves: 144 rows each = 9 units of 16 rows; lane (g,chi): rows 2g,2g+1, chi<4 gate / chi>=4 up, 8 columns")
e("  s_movk_i32 s22, 9216")
e("  s_mov_b32 s23, 0")
e("  s_and_b32 s33, s20, 1")
e("  s_lshl_b32 s33, s33, 5")
e("  s_mul_i32 s34, s3, 144")
e("  s_add_u32 s35, s34, s33")
e("  s_mul_i32 s36, s35, s22")
e("  s_lshl_b32 s37, s20, 6")
e("  s_add_u32 s36, s36, s37")
e("  v_mul_u32_u24 v4, 2*9216, v2")
e("  v_and_b32 v5, 3, v0")
e("  v_lshlrev_b32 v5, 4, v5")
e("  v_add3_u32 v4, v4, v5, s36")
e("  v_mov_b32 v5, 0")
if opts["xt"]:
    e("  s_lshl2_add_u32 s40, s20, s3")
    e("  s_lshl_b32 s40, s40, 12")
    e("  v_lshl_add_u32 v12, v0, 7, s40")
if opts["fast0"]:
    e("  s_mov_b32 exec_lo, 0x0f0f0f0f")
    e("  s_mov_b32 exec_hi, 0x0f0f0f0f")
    e("  s_waitcnt lgkmcnt(0)")
    stamp(1)
    e("  v_lshl_add_u64 v[4:5], v[4:5], 0, s[8:9]")
    e("  s_not_b64 exec, exec")
    e("  v_lshl_add_u64 v[4:5], v[4:5], 0, s[10:11]")
    e("  s_mov_b64 exec, -1")
    if opts["xt"]:
        e("  s_mov_b32 exec_hi, 0")
        e("  global_load_dword v95, v12, s[4:5]")
        e("  s_mov_b32 exec_hi, -1")
else:
    e("  v_cmp_gt_u32 vcc, 4, v3")
    e("  s_waitcnt lgkmcnt(0)")
    stamp(1)
    if opts["xt"]:
        e("  s_mov_b32 exec_hi, 0")
        e("  global_load_dword v95, v12, s[4:5]")
        e("  s_mov_b32 exec_hi, -1")
    e("  v_mov_b32 v8, s8")
    e("  v_mov_b32 v9, s9")
    e("  v_mov_b32 v10, s10")
    e("  v_mov_b32 v11, s11")
    e("  v_cndmask_b32 v8, v10, v8, vcc")
    e("  v_cndmask_b32 v9, v11, v9, vcc")
    e("  v_lshl_add_u64 v[4:5], v[4:5], 0, v[8:9]")
ORD = {0: [0, 1, 4, 5, 2, 3, 6, 7, 8], 1: [0, 1, 4, 2, 5, 3, 6, 8, 7], 2: [0, 1, 4, 5, 2, 3, 8, 6, 7], 3: [0, 1, 4, 5, 2, 3, 6, 8, 7]}[opts['il']]
ORDB = [u ^ 2 if u < 8 else u for u in ORD]
RB = 100; NS = max(opts["W1"], opts["W2"]) + 2
assert RB + 4*NS <= 132
NVG = 160
def ring(i): return RB + 4*(i % NS)
def guload(i):
    e(f"  global_load_dwordx4 v[{ring(i)}:{ring(i)+3}], v[4:5], off {opts['mf'] if i < 8 else opts['hf']}".rstrip())
    if i == 17: return
    if i % 2 == 0: st = 22
    else:
        t = i//2
        dA = (16*(ORD[t+1]-ORD[t]) - 1)*9216; dB = (16*(ORDB[t+1]-ORDB[t]) - 1)*9216
        e(f"  s_mov_b32 s24, {dA & 0xffffffff:#x}")
        if dA != dB:
            e("  s_bitcmp1_b32 s20, 0")
            e(f"  s_cselect_b32 s24, {dB & 0xffffffff:#x}, s24")
        e("  s_ashr_i32 s25, s24, 31")
        st = 24
    e(f"  v_lshl_add_u64 v[4:5], v[4:5], 0, s[{st}:{st+1}]")
NOCOMB = opts["nocomb"]
def gsetup():
    e("  v_and_b32 v6, 16, v0")
    e("  v_bfe_u32 v7, v0, 3, 1")
    e("  v_lshl_add_u32 v6, v7, 2, v6")
    e("  s_lshl_b32 s34, s34, 1")
    e("  v_add_u32 v6, s34, v6")
    e("  v_lshrrev_b32 v1, 5, v0")
    e("  v_lshlrev_b32 v1, 7, v1")
    e("  v_and_b32 v2, 1, v0")
    e("  v_mul_u32_u24 v92, 0xaaaa, v2")
    e("  v_add_u32 v92, 0x4444, v92")
    e("  v_lshl_add_u32 v2, v2, 6, v1")
    e("  s_lshl_b32 s33, s33, 1")
    e("  v_xor_b32 v2, s33, v2")
    e("  v_add_u32 v2, v2, v6                ; units 0-7")
    e("  v_add_u32 v6, 256, v6               ; unit 8")
    b1, b2 = (2, 4) if NOCOMB else (4, 2)
    e("  v_and_b32 v1, 3, v0")
    e(f"  v_bfe_u32 v72, v0, {b1}, 1")
    e("  v_lshl_add_u32 v1, v1, 1, v72")
    e("  v_mul_u32_u24 v1, 272, v1")
    e("  v_lshl_add_u32 v7, v7, 2, v1")
    e(f"  v_bfe_u32 v72, v0, {b2}, 1")
    e("  v_lshl_add_u32 v7, v72, 7, v7")
    e("  s_lshl_b32 s33, s3, 3")
    e(f"  s_add_u32 s33, s33, {L_PART}")
    e("  v_add_u32 v7, s33, v7")
    for r in list(range(80, 92, 2)) + list(range(132, 152, 2)):
        e(f"  v_mov_b64 v[{r}:{r+1}], 0")
    e(f"  v_mov_b32 v1, {L_WIN}")
    e("  s_mov_b32 s38, 0x00ff00ff")
    e("  s_mov_b32 s39, 0xff00ff00")
    e("  s_mov_b32 s32, 0x0f0f0f0f")
    e("  s_mov_b32 s33, 0x0f0f0f0f")
    e("  s_mov_b32 s34, 0x03030303")
    e("  s_mov_b32 s35, 0x30303030")
    e("  s_mov_b32 s36, 0x0c0c0c0c")
    e("  s_mov_b32 s37, 0xc0c0c0c0")
    e(f"  s_max_u32 s52, s2, {NCP0}")
    e(f"  s_sub_u32 s52, s52, {NCP0}")
    e("  s_lshr_b32 s52, s52, 3")
    e("  s_mul_i32 s52, s52, 23040")
    e("  s_mul_i32 s53, s3, 5760")
    e("  s_add_u32 s52, s52, s53")
    e(f"  s_mul_i32 s54, s21, {256*1152}")
    e("  s_add_u32 s53, s52, 5760")
    e(f"  s_min_u32 s53, s53, {256*1152}")
    e("  s_sub_u32 s55, s53, 16")
    e("  v_lshl_add_u32 v94, v0, 4, s52")
    for t in range(6):
        e(f"  v_add_u32 v{152+t}, {1024*t}, v94")
        e(f"  v_cmp_gt_u32 s[{40+2*t}:{41+2*t}], s53, v{152+t}")
        e(f"  v_min_u32 v{152+t}, s55, v{152+t}")
        e(f"  v_add_u32 v{152+t}, s54, v{152+t}")
    e("  s_movk_i32 s26, 1152")
def gperm(k):
    u = ORD[k]
    for c in range(8):
        d = 8 + 8*c + 4*(u >> 2) + ((u >> 1) & 1) + 2*(u & 1) if u < 8 else 72 + c
        e(f"  v_perm_b32 v{d}, v{ring(2*k+1)+(c>>1)}, v{ring(2*k)+(c>>1)}, s{30+(c&1)}")
def wof(i):
    if i < opts["n0"]: return opts["W0"]
    return opts["W1"] if i < (10 if opts["il"] == 1 else 8) else opts["W2"]
done = 0; permd = 0; setup = False
for i in range(18):
    lim = wof(i) - 1
    if i - done > lim:
        if not setup and i >= opts["gs"]: gsetup(); setup = True
        e(f"  s_waitcnt vmcnt({lim})")
        done = i - lim
        if i == opts['n0']-1: stamp(9)
    if opts["hcw"] and i < opts["hn"] and opts["hw"] - 1 < min(lim, i):
        e(f"  s_bitcmp1_b32 {opts['hcw']:#x}, s21")
        e(f"  s_cbranch_scc0 L_hw{i}")
        e(f"  s_waitcnt vmcnt({opts['hw']-1})")
        e(f"L_hw{i}:")
    while i - NS >= 2*permd:
        assert 2*permd + 2 <= done
        gperm(permd); permd += 1
    guload(i)
    if i == 0:
        e("  s_mov_b32 s30, 0x05040100")
        e("  s_mov_b32 s31, 0x07060302")
    if i + 1 == opts["p0"]: bar("P0: key wave may start")
    if i == 17:
        stamp(2)
        bar("X1: x row requested, stream issued")
    if i == 17 or i + 1 - done > wof(i + 1) - 1:
        while 2*permd + 2 <= done:
            gperm(permd); permd += 1
assert setup
while permd < 9:
    e(f"  s_waitcnt vmcnt({18 - 2*permd - 2})")
    gperm(permd); permd += 1
e("  s_mov_b64 exec, s[32:33]")
stamp(3)
bar("X2: x row in LDS")
stamp(4)
e("  ds_read2_b32 v[80:81], v2 offset0:0 offset1:8")
e("  ds_read2_b32 v[82:83], v2 offset0:2 offset1:10")
e("  s_mov_b64 exec, s[34:35]")
e("  ds_read_b32 v88, v6")
e("  ds_read_b32 v90, v6 offset:8")
e("  s_mov_b64 exec, s[36:37]")
e("  ds_read_b32 v89, v6")
e("  ds_read_b32 v91, v6 offset:8")
e("  s_not_b64 exec, s[32:33]")
e("  ds_read2_b32 v[84:85], v2 offset0:0 offset1:8")
e("  ds_read2_b32 v[86:87], v2 offset0:2 offset1:10")
e("  s_mov_b64 exec, -1")
e("  ds_read_b32 v93, v1")
e("  s_waitcnt lgkmcnt(7)")
for i_ in range(4):
    e(f"  v_smfmac_f32_16x16x64_bf16 v[{132+4*i_}:{135+4*i_}], v[80:83], v[{8+8*i_}:{15+8*i_}], v92")
e("  s_waitcnt lgkmcnt(3)")
e("  v_smfmac_f32_16x16x64_bf16 v[148:151], v[88:91], v[72:79], v92")
e("  s_waitcnt lgkmcnt(1)")
for i_ in range(4):
    e(f"  v_smfmac_f32_16x16x64_bf16 v[{132+4*i_}:{135+4*i_}], v[84:87], v[{40+8*i_}:{47+8*i_}], v92")
e("  s_mov_b64 exec, s[38:39]")
e("  s_nop 3")
for i_ in range(4):
    e(f"  v_add_f32 v{96+i_}, v{132+4*i_}, v{133+4*i_}")
    e(f"  v_add_f32 v{96+i_}, v{96+i_}, v{148+i_}")
    if i_ == 1: e("  ds_write2_b32 v7, v96, v97 offset0:0 offset1:8")
e("  ds_write2_b32 v7, v98, v99 offset0:16 offset1:24")
e("  s_mov_b64 exec, -1")
e("  s_waitcnt lgkmcnt(0)")
bar("H: gate/up partial sums in LDS")
stamp(5)
e(f"  s_cmp_lt_u32 s2, {NR+NRED}")
e("  s_cbranch_scc1 L_red")
e(f"  s_cmp_lt_u32 s2, {NCP0}")
e("  s_cbranch_scc1 L_gend")
cm("---- residual copy: out = x + x*0 for every row but the routed one")
for t in range(6):
    e(f"  global_load_dwordx4 v[{20+4*t}:{23+4*t}], v{152+t}, s[4:5]")
for t in range(6):
    e(f"  v_sub_u32 v95, v{152+t}, v93")
    e("  v_cmp_le_u32 vcc, s26, v95")
    e(f"  s_and_b64 s[{40+2*t}:{41+2*t}], s[{40+2*t}:{41+2*t}], vcc")
e("  v_mov_b32 v18, 0")
e("  v_mov_b32 v19, 0")
for t in range(6):
    e(f"  s_waitcnt vmcnt({5-t})")
    for d in range(4):
        e(f"  v_dot2_f32_bf16 v18, v{20+4*t+d}, v19, v18")
e("  s_nop 2")
e("  v_cmp_u_f32 vcc, v18, v18")
e("  s_cbranch_vccnz L_cpfix")
e("L_cpst:")
stamp(8)
bar("Q: partial row stored")
stamp(6)
for t in range(6):
    e(f"  s_mov_b64 exec, s[{40+2*t}:{41+2*t}]")
    e(f"  s_cbranch_execz L_cs{t}")
    e(f"  global_store_dwordx4 v{152+t}, v[{20+4*t}:{23+4*t}], s[14:15] sc1")
    e(f"L_cs{t}:")
if want(7):
    e("  s_waitcnt vmcnt(0)"); stamp(7)
e("L_gend:")
fin()
role[0] = "dn"
e("L_dn:")
e("  s_cmp_eq_u32 s3, 8")
e("  s_cbranch_scc1 L_w8")
cm("---- down waves: 128 columns each (wave 7 also the last 64), one-hot sparse A picks the column inside a 16 B chunk")
e("  s_sub_u32 s33, s3, 4")
e("  s_mul_i32 s24, s20, 32*1152")
e("  s_lshl_b32 s25, s33, 8")
e("  s_add_u32 s24, s24, s25")
if NOCOMB:
    e("  v_lshrrev_b32 v1, 5, v0")
    e("  v_bfe_u32 v2, v0, 4, 1")
    e("  v_lshl_add_u32 v1, v1, 3, v2")
    e("  v_mul_u32_u24 v4, 1152, v1")
    e("  v_and_b32 v2, 15, v0")
    e("  v_lshl_add_u32 v4, v2, 4, v4")
    e("  s_add_u32 s24, s24, 3456")
else:
    e("  v_lshrrev_b32 v1, 5, v0")
    e("  v_bfe_u32 v2, v0, 3, 1")
    e("  v_lshl_add_u32 v1, v1, 1, v2")
    e("  v_bfe_u32 v2, v0, 4, 1")
    e("  v_lshl_add_u32 v1, v1, 2, v2")
    e("  v_mul_u32_u24 v4, 1152, v1")
    e("  v_lshl_add_u32 v4, v3, 4, v4")
e("  v_add_u32 v4, s24, v4")
e("  v_add_u32 v5, 16*1152, v4")
e("  s_mov_b32 s32, 0xbfb8aa3b           ; -log2(e)")
MK = 100
e("  v_and_b32 v6, 1, v0")
e("  v_lshlrev_b32 v6, 4, v6")
e("  v_mov_b32 v7, 0xffff")
e("  v_lshlrev_b32 v6, v6, v7")
e("  v_cmp_gt_u32 vcc, 4, v3")
e("  v_bfe_u32 v102, v0, 1, 1")
e("  v_mul_u32_u24 v102, 0xaaaa, v102")
e("  v_cndmask_b32 v100, 0, v6, vcc")
e("  v_xor_b32 v101, v100, v6")
e("  v_add_u32 v102, 0x4444, v102")
e("  v_lshrrev_b32 v7, 3, v0")
e("  v_lshl_add_u32 v7, v0, 1, v7")
e("  v_lshlrev_b32 v7, 4, v7")
e(f"  v_add_u32 v7, {L_PART}, v7")
if NOCOMB:
    e("  v_bfe_u32 v103, v0, 3, 1")
    e("  v_bfe_u32 v6, v0, 4, 1              ; v")
    e("  v_lshl_add_u32 v103, v103, 1, v6")
else:
    e("  v_lshrrev_b32 v103, 4, v0")
e("  v_bfe_u32 v6, v0, 2, 1")
e("  v_lshl_add_u32 v103, v103, 1, v6")
e(f"  v_mul_u32_u24 v103, {NF*64}, v103")
e("  v_and_b32 v6, 3, v0")
e("  v_lshl_add_u32 v103, v6, 4, v103")
e("  s_lshl_b32 s26, s20, 6")
e(f"  s_mul_i32 s25, s33, {8*NF*64}")
e("  s_add_u32 s25, s25, s26")
e("  v_add_u32 v103, s25, v103")
e(f"  v_add_u32 v104, {8*NF*64}, v103")
for r in range(88, 100, 2):
    e(f"  v_mov_b64 v[{r}:{r+1}], 0")
e("  s_mov_b32 s34, 0x00ff00ff")
e("  s_mov_b32 s35, 0x00ff00ff")
e("  s_waitcnt lgkmcnt(0)")
def prewrite():
    for r in range(4): e(f"  v_mov_b32 v{116+r}, {SENT:#x}")
    e("  s_mov_b32 exec_hi, 0")
    e("  global_store_dwordx4 v103, v[116:119], s[18:19] sc1")
    e("  s_cmp_lg_u32 s3, 7")
    e("  s_cbranch_scc1 L_pw")
    e("  s_mov_b32 exec_lo, s34")
    e("  global_store_dwordx4 v104, v[116:119], s[18:19] sc1")
    e("L_pw:")
    e("  s_mov_b64 exec, -1")
def pretouch():
    e("  s_mov_b32 exec_hi, 0")
    e("  s_mov_b32 exec_lo, 0x11111111")
    e("  global_load_dword v116, v103, s[18:19]")
    e("  s_cmp_lg_u32 s3, 7")
    e("  s_cbranch_scc1 L_pw")
    e("  s_mov_b32 exec_lo, 0x00110011")
    e("  global_load_dword v117, v104, s[18:19]")
    e("L_pw:")
    e("  s_mov_b64 exec, -1")
if opts["noclear"] == 5: prewrite()
if opts["noclear"] == 6: pretouch()
if opts["noclear"] == 8:
    e("  s_bitcmp1_b32 s20, 0")
    e("  s_cbranch_scc1 L_pw")
    pretouch()
bar("P0")
if opts["noclear"] == 7: pretouch()
if opts["noclear"] == 4: prewrite()
def hchain():
    e("  ds_read_b128 v[108:111], v7")
    e("  ds_read_b128 v[112:115], v7 offset:16")
    e("  s_waitcnt lgkmcnt(1)")
    e("  v_pk_add_f32 v[108:109], v[108:109], v[110:111]")
    e("  s_waitcnt lgkmcnt(0)")
    e("  v_pk_add_f32 v[112:113], v[112:113], v[114:115]")
    e("  v_pk_add_f32 v[108:109], v[108:109], v[112:113]")
    e("  v_add_f32 v108, v108, v109")
    e("  v_cvt_pk_bf16_f32 v108, 0, v108")
    e("  v_mul_f32 v109, s32, v108")
    e("  v_exp_f32 v109, v109")
    if NOCOMB: e(f"  v_mov_b32_dpp v111, v108 row_ror:8 {DPPX}")
    else: e("  s_nop 0")
    e("  v_add_f32 v109, 1.0, v109")
    e("  v_rcp_f32 v109, v109")
    e("  s_nop 0")
    e("  v_mul_f32 v109, v108, v109")
    e("  v_cvt_pk_bf16_f32 v109, 0, v109     ; silu(g) rounded to bf16")
    if NOCOMB:
        e("  v_mul_f32 v110, v111, v109")
    else:
        e("  s_nop 1")
        e("  v_mul_f32_dpp v110, v108, v109 row_shl:4 row_mask:0xf bank_mask:0x5")
        e("  s_nop 1")
        e("  v_mul_f32_dpp v110, v109, v108 row_shr:4 row_mask:0xf bank_mask:0xa")
    e("  v_cvt_pk_bf16_f32 v110, v110, v110  ; h = silu(g)*u in both halves")
    e("  s_nop 1")
def down_tail(tail):
    stamp(7)
    e(f"  s_cmp_lt_u32 s2, {NR+NRED}")
    e("  s_cbranch_scc1 L_red")
    e(f"  s_cmp_lt_u32 s2, {NCP0}")
    e(f"  s_cbranch_scc1 L_dq{int(tail)}")
    if opts["cack"]: e("  s_waitcnt vmcnt(0)")
    bar("Q")
    e(f"L_dq{int(tail)}:")
    if want(8):
        e("  s_waitcnt vmcnt(0)"); stamp(8)
    fin()
def down_comb(tail):
    blks = [2, 0, 1] if tail else [0, 1]
    seq = [(b, V) for V in range(2) for b in blks]
    bar("X1"); stamp(2)
    n = 0
    for b, V in seq:
        for hi in range(2):
            r = 8 + 16*b + 8*V + 4*hi
            e(f"  global_load_dwordx4 v[{r}:{r+3}], v{4+hi}, s[12:13] offset:{2304*V+128*b}"); n += 1
            if n == opts["dsplit"]: bar("X2"); stamp(4)
    bar("H"); stamp(5)
    hchain()
    def avar(V, ps):
        for p in ps:
            i_ = 2*V + (p >> 1)
            e(f"  v_and_b32_dpp v{72+4*V+p}, v110, v{MK+(p&1)} quad_perm:[{i_},{i_},{i_},{i_}] {DPPX}")
    avar(0, range(4)); avar(1, range(2))
    for k, (b, V) in enumerate(seq):
        e(f"  s_waitcnt vmcnt({2*(len(seq)-1-k)})")
        if k == len(seq)-1: stamp(6)
        r = 8 + 16*b + 8*V
        e(f"  v_smfmac_f32_16x16x64_bf16 v[{88+4*b}:{91+4*b}], v[{72+4*V}:{75+4*V}], v[{r}:{r+7}], v102")
        if k == 0: avar(1, range(2, 4))
    if tail:
        e("  s_nop 3")
        for r in range(4): e(f"  v_permlane32_swap_b32 v{96+r}, v{112+r}")
        for r in range(4): e(f"  v_permlane32_swap_b32 v{88+r}, v{92+r}")
        for r in range(4): e(f"  v_add_f32_dpp v{96+r}, v{112+r}, v{96+r} row_ror:8 {DPPX}")
    else:
        e("  s_nop 7")
        for r in range(4): e(f"  v_permlane32_swap_b32 v{88+r}, v{92+r}")
    for r in range(4): e(f"  v_add_f32_dpp v{88+r}, v{92+r}, v{88+r} row_ror:8 {DPPX}")
    e("  s_mov_b64 exec, s[34:35]")
    e("  global_store_dwordx4 v103, v[88:91], s[18:19] sc1")
    if tail:
        e("  s_mov_b32 exec_hi, 0")
        e("  global_store_dwordx4 v104, v[96:99], s[18:19] sc1")
    down_tail(tail)
def down_nocomb(tail):
    parts = [1, 0] if tail else [0]
    seq = [(pt, V) for V in range(4) for pt in parts]
    bar("X1"); stamp(2)
    n = 0
    for pt, V in seq:
        if tail: e(f"  s_mov_b64 exec, {'s[34:35]' if pt else -1}")
        for hi in range(2):
            r = 8 + 32*pt + 8*V + 4*hi
            e(f"  global_load_dwordx4 v[{r}:{r+3}], v{4+hi}, s[12:13] offset:{2304*V-3456+256*pt} {opts['df']}".rstrip()); n += 1
            if n == opts["dsplit"]: bar("X2"); stamp(4)
    bar("H"); stamp(5)
    hchain()
    ands = [(V, p) for V in range(4) for p in range(4)]
    def emit_and(k):
        for _ in range(k):
            if ands:
                V, p = ands.pop(0)
                e(f"  v_and_b32_dpp v{72+4*V+p}, v110, v{MK+(p&1)} row_newbcast:{2*V+(p>>1)} {DPPX}")
    emit_and(5)
    for k, (pt, V) in enumerate(seq):
        e(f"  s_waitcnt vmcnt({2*(len(seq)-1-k)})")
        if k == len(seq)-1: stamp(6)
        r = 8 + 32*pt + 8*V
        e(f"  v_smfmac_f32_16x16x64_bf16 v[{88+4*pt}:{91+4*pt}], v[{72+4*V}:{75+4*V}], v[{r}:{r+7}], v102")
        had = len(ands)
        emit_and(2 if tail else 4)
        if had and not ands: e("  s_nop 0")
    if tail:
        e("  s_mov_b32 exec_lo, s34")
        e("  s_mov_b32 exec_hi, 0")
        e("  s_nop 3")
        e("  global_store_dwordx4 v104, v[92:95], s[18:19] sc1")
        e("  s_mov_b32 exec_lo, -1")
    else:
        e("  s_mov_b32 exec_hi, 0")
        e("  s_nop 6")
    e("  global_store_dwordx4 v103, v[88:91], s[18:19] sc1")
    down_tail(tail)
body = down_nocomb if NOCOMB else down_comb
e("  s_cmp_eq_u32 s3, 7")
e("  s_cbranch_scc1 L_dnt")
body(False)
e("L_dnt:")
body(True)
role[0] = "red"
e("L_w8:")
e(f"  s_cmp_ge_u32 s2, {NR+NRED}")
e("  s_cbranch_scc1 L_end")
e("  s_waitcnt lgkmcnt(0)")
bar("P0"); bar("X1"); bar("X2"); bar("H")
cm("---- reducer: wave w sums the pieces of producers 16w..16w+15 once none of them is still marked empty")
e("L_red:")
e("  s_mov_b64 exec, -1")
e(f"  s_sub_u32 s24, s2, {NR}")
e("  s_mul_i32 s24, s24, 9")
e("  s_add_u32 s24, s24, s3")
e("  s_lshl_b32 s24, s24, 10")
e("  v_lshl_add_u32 v8, v0, 4, s24")
e(f"  v_mov_b32 v9, {SENT:#x}")
e("  v_and_b32 v10, 3, v0")
e("  v_lshrrev_b32 v11, 4, v0")
e("  v_lshl_add_u32 v10, v10, 2, v11")
e("  v_mul_u32_u24 v10, 48, v10")
e("  s_lshl_b32 s27, s3, 2")
e(f"  s_add_u32 s27, s27, {L_RED}")
e("  v_add_u32 v10, s27, v10")
e("  s_mov_b32 s34, 0x000f000f")
e("  s_mov_b32 s35, 0x000f000f")
e(f"  s_mov_b32 s57, {SPIN}")
e("  s_waitcnt vmcnt(0)")
bar("Q")
stamp(10)
e("L_red_loop:")
e("  s_mov_b64 exec, -1")
e("  global_load_dwordx4 v[12:15], v8, s[18:19] sc1")
e("  s_sub_u32 s57, s57, 1")
e("  s_cselect_b64 s[36:37], -1, 0")
e("  s_waitcnt vmcnt(0)")
e("  v_permlane32_swap_b32 v12, v14")
e("  v_permlane32_swap_b32 v13, v15")
e("  v_add_f32 v16, v12, v14")
e("  v_add_f32 v17, v13, v15")
e("  v_cmp_ne_u32 s[28:29], v12, v9")
e("  v_cmp_ne_u32 s[30:31], v13, v9")
e("  v_permlane16_swap_b32 v16, v17")
e("  v_add_f32 v16, v16, v17")
e("  v_cmp_ne_u32 s[32:33], v14, v9")
e("  v_cmp_ne_u32 vcc, v15, v9")
e(f"  v_add_f32_dpp v16, v16, v16 row_ror:4 {DPPX}")
e("  s_and_b64 s[28:29], s[28:29], s[30:31]")
e("  s_and_b64 s[32:33], s[32:33], vcc")
e(f"  v_add_f32_dpp v16, v16, v16 row_ror:8 {DPPX}")
e("  s_mov_b64 exec, s[34:35]")
e("  ds_write_b32 v10, v16")
e("  s_and_b64 s[28:29], s[28:29], s[32:33]")
e("  s_or_b64 s[28:29], s[28:29], s[36:37]")
e("  s_cmp_eq_u64 s[28:29], -1")
e("  s_cbranch_scc0 L_red_loop")
if STAMP:
    e(f"  s_sub_u32 s72, {SPIN}, s57")
stamp(11)
e("  s_waitcnt lgkmcnt(0)")
bar("E")
fin()
role[0] = "rt"
e("L_rt2:")
e("  s_lshl_b32 s25, s3, 2")
e("  v_mul_u32_u24 v41, 3*48, v2")
e("  v_add_u32 v41, s25, v41")
e("  s_mov_b32 s28, 0x01010101")
e("  s_mov_b32 s29, 0x01010101")
cm("prefetch addresses (one dword per 128 B line): w_down rows of this group; unit 8 of gate/up; slow-set columns")
PD = 42
e(f"  s_mul_i32 s26, s21, {576*1152}")
e("  s_mul_i32 s34, s33, 9")
e("  s_add_u32 s34, s34, s3")
e(f"  s_mul_i32 s34, s34, {PD}")
e("  v_add_u32 v42, s34, v0")
e("  v_min_u32 v42, 5183, v42")
e("  v_lshl_add_u32 v42, v42, 7, s26")
e("  s_mul_i32 s27, s3, 14")
e("  s_add_u32 s27, s27, s33")
e("  s_mul_i32 s38, s27, 5")
e("  v_add_u32 v49, s38, v0")
e("  v_min_u32 v49, 575, v49")
e("  v_mul_u32_u24 v50, 7282, v49")
e("  v_lshrrev_b32 v50, 16, v50          ; item/9")
for it_ in range(576): assert (it_*7282) >> 16 == it_//9
e("  v_mul_u32_u24 v51, 9, v50")
e("  v_sub_u32 v51, v49, v51             ; item%9")
e("  v_lshrrev_b32 v52, 4, v50")
e("  v_lshl_add_u32 v50, v52, 7, v50")
e("  v_add_u32 v50, 128, v50")
e("  v_mul_u32_u24 v50, 9216, v50")
e("  v_lshl_add_u32 v50, v51, 7, v50")
e("  s_mul_i32 s39, s21, 1152")
e("  v_add_u32 v50, s39, v50")
C3 = opts["pf3"]
n3 = 4*2*16*C3; P3 = -(-n3//126)
CU = [u for t in [0, 1, 4, 5][4-C3:] for u in (t, t ^ 2)]
e(f"  s_mul_i32 s38, s27, {P3}")
e("  v_add_u32 v49, s38, v3")
e(f"  v_min_u32 v49, {n3-1}, v49")
e("  v_lshrrev_b32 v51, 6, v49")
e("  v_lshlrev_b32 v51, 2, v51")
e(f"  s_mov_b32 s38, {sum(u << (4*k) for k, u in enumerate(CU)):#x}")
e("  v_bfe_u32 v51, s38, v51, 4")
e("  v_bfe_u32 v52, v49, 4, 2")
e("  v_mul_u32_u24 v52, 144, v52")
e("  v_lshl_add_u32 v51, v51, 4, v52")
e("  v_and_b32 v49, 15, v49")
e("  v_add_u32 v51, v51, v49")
e("  v_mul_u32_u24 v51, 9216, v51")
e("  s_sub_u32 s38, 3, s21")
e("  s_and_b32 s38, s38, 7")
e("  s_lshl_b32 s41, s38, 7")
e("  s_add_u32 s41, s41, s39")
e("  v_add_u32 v51, s41, v51")
e("  s_cmp_eq_u32 s38, 0")
e("  s_cselect_b32 s41, 1024, 0")
e(f"  s_cselect_b32 s37, {(((1<<P3)-1)*0x101):#x}, {(1<<P3)-1}")
e("  v_add_u32 v52, s41, v51")
e("  v_cmp_eq_u32 vcc, 4, v2")
e("  s_nop 1")
e("  v_cndmask_b32 v50, v50, v51, vcc")
e("  v_cmp_eq_u32 vcc, 5, v2")
e("  s_mov_b32 s36, 0x1f")
e("  s_nop 0")
e("  v_cndmask_b32 v50, v50, v52, vcc")
e(f"  s_waitcnt vmcnt({1 if opts['noclear'] == 2 else 0})")
stamp(2)
for d in range(4):
    for i in range(3):
        c = "0" if d == 0 else f"v{32+i}"
        e(f"  v_dot2_f32_bf16 v{32+i}, v{16+4*i+d}, v{8+d}, {c}")
e("  s_nop 0")
for dp in ["quad_perm:[1,0,3,2]", "quad_perm:[2,3,0,1]", "row_half_mirror"]:
    for i in range(3):
        e(f"  v_add_f32_dpp v{32+i}, v{32+i}, v{32+i} {dp} {DPPX}")
e("  s_mov_b64 exec, s[28:29]")
e("  ds_write2_b32 v41, v32, v33 offset0:0 offset1:12")
e("  ds_write_b32 v41, v34 offset:96")
e("  s_mov_b64 exec, s[36:37]")
e("  s_waitcnt lgkmcnt(0)")
bar("A: row sums in LDS, empty marks landed")
stamp(3)
bar("B: key store issued")
if opts["noclear"] == 3:
    e(f"  s_cmp_ge_u32 s24, {NRED*9}")
    e("  s_cbranch_scc1 L_cl3")
    e("  s_mov_b64 exec, -1")
    e("  global_store_dwordx4 v40, v[44:47], s[18:19] sc1")
    e("  s_mov_b64 exec, s[36:37]")
    e("L_cl3:")
e(f"  global_load_dword v49, v50, s[8:9] {opts['pf']}".rstrip())
e(f"  global_load_dword v51, v50, s[10:11] {opts['pf']}".rstrip())
PE = opts["pfe"]
if PE:
    e(f"  s_mov_b64 exec, {(1 << PE) - 1:#x}")
    e("  global_load_dword v47, v42, s[12:13]")
mm = ((1 << PD) - 1) ^ ((1 << PE) - 1)
e(f"  s_mov_b32 exec_lo, {mm & 0xffffffff:#x}")
e(f"  s_mov_b32 exec_hi, {mm >> 32:#x}")
e(f"  s_waitcnt vmcnt({1 if PE else 0})")
stamp(9)
e(f"  global_load_dword v48, v42, s[12:13] {opts['pf']}".rstrip())
if want(8):
    e("  s_waitcnt vmcnt(0)"); stamp(8)
fin()
e("L_w9:")
e(f"  s_cmp_ge_u32 s2, {NWG}")
e("  s_cbranch_scc1 L_end")
e(f"  v_mov_b32 v20, {EOFF:#x}")
e("  s_setprio 3")
e(f"  s_mov_b32 s40, {LCG_A}")
e("  s_waitcnt lgkmcnt(0)")
e("  global_load_dword v20, v20, s[18:19] sc1   ; epoch")
e(f"  s_cmp_ge_u32 s2, {NR}")
e("  s_cbranch_scc1 L_fpoll")
role[0] = "rw9"
cm("---- router wave 9: key = orderable(bf16 r)<<16 | (2047-row), max over the 19 rows")
first_row()
KS = opts["ks"]
e(f"  s_mul_i32 s22, s21, {16 if KS == 3 else 14}")
e("  s_add_u32 s22, s22, s33")
e(f"  s_lshl_b32 s22, s22, {KS}")
e(f"  s_add_u32 s22, s22, {KOFF:#x}")
if KREP:
    e("  v_lshl_add_u32 v6, v3, 13, s22")
else:
    e("  v_mov_b32 v6, s22")
e("  global_load_dword v30, v6, s[18:19] sc1")
e("  v_and_b32 v42, 31, v0")
e("  v_mul_u32_u24 v43, 48, v42")
e("  v_cmp_gt_u32 s[46:47], 19, v42")
e("  s_sub_u32 s22, 2047, s20")
e("  v_sub_u32 v42, s22, v42")
e("  v_mov_b32 v34, 0")
e("  s_brev_b32 s41, 1")
e("  s_waitcnt vmcnt(1)")
e("  v_mul_lo_u32 v20, v20, s40")
e(f"  v_add_u32 v35, {LCG_C}, v20        ; tag")
e("  s_mov_b64 exec, s[46:47]")
bar("A")
stamp(3)
e("  ds_read_b128 v[36:39], v43")
e("  ds_read_b128 v[48:51], v43 offset:16")
e("  ds_read_b32 v52, v43 offset:32")
e("  s_waitcnt lgkmcnt(2)")
e("  v_pk_add_f32 v[36:37], v[36:37], v[38:39]")
e("  s_waitcnt lgkmcnt(1)")
e("  v_pk_add_f32 v[48:49], v[48:49], v[50:51]")
e("  v_pk_add_f32 v[36:37], v[36:37], v[48:49]")
e("  v_add_f32 v36, v36, v37")
e("  s_waitcnt lgkmcnt(0)")
e("  v_add_f32 v36, v36, v52")
e("  v_cmp_o_f32 vcc, v36, v36")
e("  v_cvt_pk_bf16_f32 v36, 0, v36       ; bf16(r)<<16")
e("  v_ashrrev_i32 v37, 31, v36")
e("  v_lshl_or_b32 v37, v37, 16, s41")
e("  v_xor_b32 v36, v36, v37")
e("  v_cndmask_b32 v36, 0, v36, vcc")
e("  v_or_b32 v34, v36, v42")
e("  s_mov_b64 exec, -1")
for k_, d in enumerate(["quad_perm:[1,0,3,2] row_mask:0xf", "quad_perm:[2,3,0,1] row_mask:0xf", "row_half_mirror row_mask:0xf",
          "row_mirror row_mask:0xf", "row_bcast:15 row_mask:0xa"]):
    e("  s_nop 0" if k_ == 0 else "  s_nop 1")
    e(f"  v_max_u32_dpp v34, v34, v34 {d} bank_mask:0xf")
e(f"  s_mov_b32 exec_lo, {0xff000000 if KREP else 0x80000000:#x}")
e("  s_mov_b32 exec_hi, 0")
e("  global_store_dwordx2 v6, v[34:35], s[18:19] sc1")
stamp(4)
if opts["hca"]:
    e(f"  s_bitcmp1_b32 {opts['hca']:#x}, s21")
    e("  s_cbranch_scc0 L_noack")
    e("  s_waitcnt vmcnt(0)")
    e("L_noack:")
bar("B")
if want(5):
    e("  s_waitcnt vmcnt(0)"); stamp(5)
fin()
role[0] = "fp"
cm("---- FFN wave 9: wait for all 112 keys, fetch x[idx] into LDS; in reducing WGs it also finishes 16 outputs")
e("L_fpoll:")
if KREP:
    e("  s_lshl_b32 s22, s21, 13")
    e(f"  s_add_u32 s22, s22, {KOFF:#x}")
else:
    e(f"  s_mov_b32 s22, {KOFF:#x}")
if KS == 3:
    e("  v_min_u32 v21, 6, v3")
    e("  v_lshl_add_u32 v21, v2, 3, v21")
    e("  v_lshl_add_u32 v21, v21, 4, s22")
else:
    e(f"  v_lshl_add_u32 v21, v0, {KS}, s22")
    e(f"  v_min_u32 v22, {NR-65}, v0")
    e("  v_add_u32 v22, 64, v22")
    e(f"  v_lshl_add_u32 v22, v22, {KS}, s22")
e("  v_lshlrev_b32 v7, 4, v0")
e("  s_mov_b32 m0, 0")
e(f"  s_sub_u32 s33, s2, {NR}")
e("  s_lshr_b32 s28, s33, 2")
e("  s_lshl_b32 s28, s28, 7")
e("  s_and_b32 s29, s33, 1")
e("  s_lshl_b32 s29, s29, 6")
e("  s_and_b32 s30, s33, 2")
e("  s_lshl_b32 s30, s30, 2")
e("  s_add_u32 s27, s28, s29")
e("  s_add_u32 s27, s27, s30")
e("  v_and_b32 v49, 15, v0")
e("  v_lshrrev_b32 v50, 2, v49")
e("  v_lshlrev_b32 v50, 4, v50")
e("  v_and_b32 v51, 3, v49")
e("  v_lshl_add_u32 v50, v51, 1, v50")
e("  v_add_u32 v50, s27, v50")
e("  v_mul_u32_u24 v54, 48, v49")
e(f"  v_add_u32 v54, {L_RED}, v54")
e(f"  v_mov_b32 v55, {EOFF:#x}")
e(f"  v_mov_b32 v9, {L_WIN}")
e(f"  s_mov_b32 s57, {SPIN}")
e("  s_waitcnt vmcnt(0)")
e("  v_mul_lo_u32 v20, v20, s40")
e(f"  v_add_u32 v20, {LCG_C}, v20        ; tag")
bar("P0")
stamp(1)
e("L_fp_loop:")
if KS == 3:
    e("  global_load_dwordx4 v[24:27], v21, s[18:19] sc1")
else:
    e("  global_load_dwordx2 v[24:25], v21, s[18:19] sc1")
    e("  global_load_dwordx2 v[26:27], v22, s[18:19] sc1")
e("  s_sub_u32 s57, s57, 1")
e("  s_cselect_b64 s[36:37], -1, 0")
e("  s_waitcnt vmcnt(0)")
e("  v_max_u32 v24, v24, v26")
e("  v_cmp_eq_u32 vcc, v25, v20")
e("  v_cmp_eq_u32 s[42:43], v27, v20")
e(f"  v_max_u32_dpp v24, v24, v24 quad_perm:[1,0,3,2] {DPPX}")
e("  s_and_b64 vcc, vcc, s[42:43]")
e("  s_or_b64 vcc, vcc, s[36:37]")
e(f"  v_max_u32_dpp v24, v24, v24 quad_perm:[2,3,0,1] {DPPX}")
e("  s_cmp_eq_u64 vcc, -1")
e("  s_cbranch_scc0 L_fp_loop")
if STAMP: e(f"  s_sub_u32 s72, {SPIN}, s57")
stamp(2)
e(f"  v_max_u32_dpp v24, v24, v24 row_half_mirror {DPPX}")
for d in ["row_mirror row_mask:0xf", "row_bcast:15 row_mask:0xa", "row_bcast:31 row_mask:0xc"]:
    e("  s_nop 1")
    e(f"  v_max_u32_dpp v24, v24, v24 {d} bank_mask:0xf")
e("  s_nop 0")
e("  v_readlane_b32 s26, v24, 63")
e("  s_andn2_b32 s25, 0x7ff, s26         ; idx")
e("  s_mul_i32 s25, s25, 1152")
e("  v_add_u32 v5, s25, v7")
e("  global_load_lds_dwordx4 v5, s[4:5]")
e("  s_mov_b64 exec, 0xff")
e("  global_load_lds_dwordx4 v5, s[4:5] offset:1024")
bar("X1")
e("  v_mov_b32 v8, s25")
e("  ds_write_b32 v9, v8")
e("  s_waitcnt vmcnt(0) lgkmcnt(0)")
stamp(3)
bar("X2")
e(f"  s_cmp_lt_u32 s33, {NRED}")
e("  s_cbranch_scc1 L_fin")
if STAMP or ENC.startswith("fp:"):
    bar("H (diagnostic)")
    e(f"  s_cmp_lt_u32 s2, {NCP0}")
    e("  s_cbranch_scc1 L_flush")
    bar("Q (diagnostic)")
fin()
e("L_fin:")
e("  s_setprio 0")
bar("H")
e("  s_mov_b64 exec, 0xffff")
e("  ds_read_u16 v51, v50")
e("  v_add_u32 v50, s25, v50")
e("  s_and_b32 s27, s26, 0xffff0000")
e("  s_ashr_i32 s28, s27, 31")
e("  s_not_b32 s28, s28")
e("  s_or_b32 s28, s28, 0x80000000")
e("  s_xor_b32 s27, s27, s28")
e("  s_and_b32 s27, s27, 0xffff0000")
bar("Q")
e("  v_mov_b32 v52, 0xbfb8aa3b")
e("  v_mul_f32 v52, s27, v52")
e("  v_exp_f32 v52, v52")
e("  s_nop 0")
e("  v_add_f32 v52, 1.0, v52")
e("  v_rcp_f32 v52, v52")
e("  s_nop 0")
e("  v_cvt_pk_bf16_f32 v52, 0, v52")
e("  s_waitcnt lgkmcnt(0)")
e("  v_lshlrev_b32 v51, 16, v51")
e("  v_fma_f32 v51, v51, 0, v51          ; x + x*0")
e("  s_cmp_lg_u32 s33, 0")
bar("E: nine sums per column in LDS")
stamp(7)
e("  ds_read_b128 v[32:35], v54")
e("  ds_read_b128 v[36:39], v54 offset:16")
e("  ds_read_b32 v48, v54 offset:32")
e("  s_waitcnt lgkmcnt(2)")
e("  v_pk_add_f32 v[32:33], v[32:33], v[34:35]")
e("  s_waitcnt lgkmcnt(1)")
e("  v_pk_add_f32 v[36:37], v[36:37], v[38:39]")
e("  v_pk_add_f32 v[32:33], v[32:33], v[36:37]")
e("  v_add_f32 v32, v32, v33")
e("  s_waitcnt lgkmcnt(0)")
e("  v_add_f32 v32, v32, v48")
e("  v_cvt_pk_bf16_f32 v32, 0, v32       ; y")
e("  v_mul_f32 v32, v32, v52")
e("  v_cvt_pk_bf16_f32 v32, 0, v32       ; y*sigmoid(r)")
e("  v_add_f32 v32, v51, v32")
e("  v_cvt_pk_bf16_f32 v32, v32, v32")
e("  global_store_short v50, v32, s[14:15]")
stamp(8)
e("  s_cbranch_scc1 L_finend")
e("  s_mov_b64 exec, 1")
e("  global_store_dword v55, v20, s[18:19]")
e("L_finend:")
if ENC:
    e("L_flush:")
    e("  s_cmp_eq_u32 s78, 0")
    e("  s_cbranch_scc1 L_end")
    if opts["encwg"] >= 0:
        e(f"  s_cmp_lg_u32 s2, {opts['encwg']}")
        e("  s_cbranch_scc1 L_end")
    e("  s_add_u32 s78, s78, 3000")
    e("L_spin:")
    e("  s_memrealtime s[58:59]")
    e("  s_waitcnt lgkmcnt(0)")
    e("  s_sub_u32 s58, s58, s78")
    e("  s_cmp_lt_i32 s58, 0")
    e("  s_cbranch_scc1 L_spin")
if STAMP:
    e("L_flush:")
    e("  s_mov_b64 exec, -1")
    e("  s_sleep 40")
    e("  s_mov_b32 s60, s76")
    e("  s_mul_i32 s56, s2, 10")
    e("  s_add_u32 s56, s56, s3")
    e("  s_lshl_b32 s56, s56, 6")
    e("  s_add_u32 s56, s56, 0x100000")
    e("  s_getreg_b32 s75, hwreg(HW_REG_XCC_ID)")
    e("  s_getpc_b64 s[58:59]")
    e("  s_mov_b32 s73, s58")
    e("  s_mov_b32 s74, s59")
    e("  s_waitcnt vmcnt(0)")
    e("  v_mov_b32 v120, s56")
    for i in range(16): e(f"  v_mov_b32 v{100+i}, s{60+i}")
    e("  s_mov_b64 exec, 1")
    for i in range(4): e(f"  global_store_dwordx4 v120, v[{100+4*i}:{103+4*i}], s[18:19] offset:{16*i}")
e("L_end:")
e("  s_endpgm")
e("L_codeend:")
e("L_cpfix:                              ; some element is Inf/NaN: out = x + x*0 element by element")
e("  s_mov_b32 s30, 0xffff0000")
for d in range(20, 44):
    e(f"  v_lshlrev_b32 v18, 16, v{d}")
    e(f"  v_and_b32 v19, s30, v{d}")
    e("  v_fma_f32 v18, v18, 0, v18")
    e("  v_fma_f32 v19, v19, 0, v19")
    e(f"  v_perm_b32 v{d}, v19, v18, s31")
e("  s_branch L_cpst")
e('.section .rodata,"a"')
e(".p2align 6")
e(f".amdhsa_kernel {NAME}_kernel")
e(f"  .amdhsa_next_free_vgpr {NVG}")
e("  .amdhsa_next_free_sgpr 80")
e(f"  .amdhsa_accum_offset {NVG}")
e("  .amdhsa_group_segment_fixed_size 0")
e("  .amdhsa_kernarg_size 64")
e("  .amdhsa_user_sgpr_count 2")
e("  .amdhsa_user_sgpr_kernarg_segment_ptr 1")
e("  .amdhsa_system_sgpr_workgroup_id_x 1")
e("  .amdhsa_float_denorm_mode_32 3")
e(".end_amdhsa_kernel")
print("\n".join(out))
```

```python
import sys
opts = dict(stamp=0, enc="", encwg=-1, W0=2, n0=4, W1=4, W2=4, p0=10, pf3=2, dsplit=6, gs=6, nocomb=1, cack=1, krep=0, xt=0, wrl=0, pfe=0, il=0, pt=8, ew=20, nocopy=0, cpf="sc1", qpos=0, gq=0, gt=13, tt=0, rpre=1, ee=1, ptr=2, late8=1, a3=0, pfw=2, scf=0, scg=0, p1=8, xw=0, scp=0, xb="8", ks=6, W3=0, n3=18, cpw=0, dm=1, dskip=0, pre=0, ackb=0)
for a in sys.argv[1:]:
    k, _, v = a.partition("=")
    if k not in opts: raise SystemExit("bad opt " + k)
    opts[k] = int(v) if isinstance(opts[k], int) else v.replace("+", " ")
STAMP = opts["stamp"]; ENC = opts["enc"]
NAME = "standalone__moe_arch_mod__prompt"
NR, NF, NRED = 112, 144, 54
NCP0 = NR + 56
NWG = NR + NF
SPIN = 0x40000
KOFF = 0x80000
KREP = opts["krep"]
FOFF = 0x90000
EOFF = 0xA0000
LCG_A, LCG_C = 1664525, 1013904223
L_PART, L_WIN, L_RED = 2048, 4352, 5120
out = []
e = out.append
role = ["none"]
def stamp(slot):
    if ENC:
        if ENC == f"{role[0]}:{slot}":
            e("  s_memrealtime s[58:59]"); e("  s_waitcnt lgkmcnt(0)"); e("  s_mov_b32 s78, s58")
        return
    if STAMP:
        e("  s_memrealtime s[58:59]"); e("  s_waitcnt lgkmcnt(0)"); e(f"  s_mov_b32 s{60+slot}, s58")
def want(slot): return STAMP or ENC == f"{role[0]}:{slot}"
def fin():
    if STAMP or ENC: e("  s_branch L_flush")
    else: e("  s_endpgm")
def bar(c): e(f"  s_barrier                           ; {c}")
def cm(c): e(f"; {c}")
DPPX = "row_mask:0xf bank_mask:0xf"
def first_row():
    e("  s_lshr_b32 s33, s2, 3               ; ridx")
    e("  s_mul_i32 s20, s33, 4668")
    e("  s_lshr_b32 s20, s20, 8")
    e("  s_lshl_b32 s23, s21, 8")
    e("  s_add_u32 s20, s20, s23")
def roles():
    e(f"  s_sub_u32 s82, s2, {NR}")
    e("  s_lshr_b32 s82, s82, 3")
    e("  s_mul_i32 s79, s21, 6")
    e("  s_add_u32 s79, s79, s82")
    e("  s_add_u32 s84, s21, 6")
    e("  s_sub_u32 s80, s82, 6")
    e("  s_cmp_eq_u32 s82, 17")
    e("  s_cselect_b32 s80, s84, s80")
    e("  s_cselect_b32 s81, 7, s21")
    e("  s_sub_u32 s84, s82, 12")
    e("  s_cmp_eq_u32 s21, 7")
    e("  s_cselect_b32 s80, s84, s80")
    e("  s_cselect_b32 s83, 12, 6")
    e("  s_cmp_lt_u32 s82, s83")
    e("  s_cselect_b32 s79, s79, 63")
def redsetup():
    e("  s_mul_i32 s83, s79, 9")
    e("  s_add_u32 s83, s83, s3")
    e("  s_lshl_b32 s83, s83, 10")
    e("  v_lshl_add_u32 v160, v0, 4, s83")
    e("  v_and_b32 v161, 3, v0")
    e("  v_lshrrev_b32 v162, 4, v0")
    e("  v_lshl_add_u32 v161, v161, 2, v162")
    e("  v_mul_u32_u24 v161, 48, v161")
    e("  s_lshl_b32 s83, s3, 2")
    e(f"  s_add_u32 s83, s83, {L_RED}")
    e("  v_add_u32 v161, s83, v161")
    e(f"  v_mov_b32 v162, {L_WIN}")
def is_red(): e("  s_cmp_lg_u32 s79, 63")
def not_cp(): e("  s_cmp_ge_u32 s80, 11")
red_ = set(); cp_ = set()
for f_ in range(144):
    c_, t_ = f_ & 7, f_ >> 3
    k_ = (c_+6 if t_ == 17 else t_-6) if c_ != 7 else t_-12
    g_ = 7 if t_ == 17 else c_
    if t_ < (12 if c_ == 7 else 6): red_.add(6*c_+t_)
    elif 0 <= k_ < 11: assert (g_, k_) not in cp_; cp_.add((g_, k_))
assert red_ == set(range(54)) and len(cp_) == 88
st_ = [(r*4668) >> 8 for r in range(14)]
assert st_[13] == 237 and all(st_[r+1]-st_[r] <= 19 for r in range(13))

SCF = opts["scf"]; SCG = opts["scg"]; XW = opts["xw"]; NSW = (9 if SCG else 5) + XW + opts["scp"]
def scffn():
    e("  s_mul_i32 s85, s20, 288")
    if SCG: e(f"  s_mul_i32 s86, s3, {SCF}")
    else:
        e("  s_sub_u32 s86, s3, 4")
        if XW and not opts["scp"]:
            e("  s_cmp_gt_u32 s3, 9")
            e("  s_subb_u32 s86, s86, 0")
        e(f"  s_mul_i32 s86, s86, {SCF}")
    e("  s_add_u32 s85, s85, s86")
    e("  s_lshl_b32 s86, s85, 7")
    e("  s_add_u32 s86, s12, s86")
    e("  s_addc_u32 s87, s13, 0")
def scissue():
    for k in range(2*SCF): e(f"  s_load_dword s{88+k}, s[86:87], {64*k}")
P1B = SCF and opts["p1"] != opts["p0"]
XB = [int(t) for t in opts["xb"].split(",") if t]
assert all(t < opts["p0"] for t in XB) and not (XB and SCF)
def xbars():
    for t in XB: bar("S")
e(f"; @launch grid=({NWG},1,1) block=({640+64*XW},1,1) lds=8192")
cm("One launch, three roles by workgroup id (id&7 = group that shares lines, for L2 locality only):")
cm("  id <112   routers: 19 rows of x each -> r=x.w_r (bf16) -> best (score,row) key, published {key,tag} in ws;")
cm("            they then pull weight lines into L2")
cm("  id>=112   FFN: 32 hidden units each. waves 0-3 gate/up, 4-7 down, 9 waits for the keys and fetches x[idx]")
cm("            54 of them also sum the 144 partial rows (8-12 columns each), 88 others copy x to out")
cm("tag = LCG(epoch word found in ws); the epoch is advanced once every workgroup has read it")
e('.amdgcn_target "amdgcn-amd-amdhsa--gfx950"')
e(".text")
e(f".globl {NAME}_kernel")
e(".p2align 8")
e(f".type {NAME}_kernel,@function")
e(f"{NAME}_kernel:")
cm("s[4:5]=x s[6:7]=w_r s[8:9]=w_gate s[10:11]=w_up s[12:13]=w_down s[14:15]=out s[16:17]=dbg s[18:19]=ws")
e("  s_load_dwordx16 s[4:19], s[0:1], 0")
if ENC:
    e("  s_mov_b32 s78, 0")
    if ENC == "start":
        e("  s_memrealtime s[58:59]"); e("  s_waitcnt lgkmcnt(0)"); e("  s_mov_b32 s78, s58")
if STAMP:
    e("  s_memrealtime s[76:77]")
    for i in range(0, 16, 2): e(f"  s_mov_b64 s[{60+i}:{61+i}], 0")
e("  v_lshrrev_b32 v1, 6, v0")
e("  v_and_b32 v0, 63, v0")
e("  v_readfirstlane_b32 s3, v1")
e("  v_and_b32 v3, 7, v0                 ; chi")
e("  v_lshrrev_b32 v2, 3, v0             ; g")
e("  s_and_b32 s21, s2, 7                ; group")
e("  s_cmp_eq_u32 s3, 9")
e("  s_cbranch_scc0 L_notw9")
if opts["cpw"]:
    e(f"  s_cmp_lt_u32 s2, {opts['cpw']}")
    e("  s_cbranch_scc1 L_w9")
e("  s_getpc_b64 s[44:45]")
e("L_pc:")
e("  v_min_u32 v28, (L_codeend-L_pc-4)/128, v0")
e("  v_lshlrev_b32 v28, 7, v28")
e("  global_load_dword v29, v28, s[44:45]")
e("  s_branch L_w9")
e("L_notw9:")
e(f"  s_cmp_ge_u32 s2, {NR}")
e("  s_cbranch_scc1 L_ffn")
if XW:
    e("  s_cmp_gt_u32 s3, 9")
    e("  s_cbranch_scc1 L_end")
role[0] = "rt"
cm("---- router waves 0-8: wave w owns columns 64w..64w+63, lane (g,chi) rows 3g..3g+2")
e("  s_lshl_b32 s22, s3, 7")
e("  v_lshl_add_u32 v4, v3, 4, s22")
first_row()
e("  s_mul_i32 s23, s20, 1152")
e("  v_mul_u32_u24 v5, 3*1152, v2")
e("  v_add3_u32 v5, v5, v4, s23          ; x off")
e("  s_waitcnt lgkmcnt(0)")
stamp(1)
if not opts["wrl"]: e("  global_load_dwordx4 v[8:11], v4, s[6:7]")
e("  s_mov_b32 exec_hi, 0x00ffffff")
e("  global_load_dwordx4 v[16:19], v5, s[4:5]")
e("  s_mov_b32 exec_hi, 0x0000ffff")
e("  global_load_dwordx4 v[20:23], v5, s[4:5] offset:1152")
e("  global_load_dwordx4 v[24:27], v5, s[4:5] offset:2304")
e("  s_mov_b32 exec_hi, -1")
if opts["wrl"]: e("  global_load_dwordx4 v[8:11], v4, s[6:7]")
e("  s_branch L_rt2")
role[0] = "ffn"
e("L_ffn:")
e(f"  s_cmp_ge_u32 s2, {NWG}")
e("  s_cbranch_scc1 L_end")
e(f"  s_sub_u32 s20, s2, {NR}")
e("  s_lshr_b32 s20, s20, 3")
e("  s_mul_i32 s22, s21, 18")
e("  s_add_u32 s20, s20, s22             ; slice 0..143")
e("  s_cmp_ge_u32 s3, 4")
e("  s_cbranch_scc1 L_dn")
cm("---- gate/up waves: 144 rows each = 9 units of 16 rows; lane (g,chi): rows 2g,2g+1, chi<4 gate / chi>=4 up, 8 columns")
e("  s_movk_i32 s22, 9216")
e("  s_mov_b32 s23, 0")
e("  s_and_b32 s33, s20, 1")
e("  s_lshl_b32 s33, s33, 5")
e("  s_mul_i32 s34, s3, 144")
e("  s_add_u32 s35, s34, s33")
e("  s_mul_i32 s36, s35, s22")
e("  s_lshl_b32 s37, s20, 6")
e("  s_add_u32 s36, s36, s37")
e("  v_mul_u32_u24 v4, 2*9216, v2")
e("  v_and_b32 v5, 3, v0")
e("  v_lshlrev_b32 v5, 4, v5")
e("  v_add3_u32 v4, v4, v5, s36")
e("  v_mov_b32 v5, 0")
if opts["xt"]:
    e("  s_lshl2_add_u32 s40, s20, s3")
    e("  s_lshl_b32 s40, s40, 12")
    e("  v_lshl_add_u32 v12, v0, 7, s40")
e("  s_mov_b32 exec_lo, 0x0f0f0f0f")
e("  s_mov_b32 exec_hi, 0x0f0f0f0f")
e("  s_waitcnt lgkmcnt(0)")
stamp(1)
e("  v_lshl_add_u64 v[4:5], v[4:5], 0, s[8:9]")
e("  s_not_b64 exec, exec")
e("  v_lshl_add_u64 v[4:5], v[4:5], 0, s[10:11]")
e("  s_mov_b64 exec, -1")
ORD = {0: [0, 1, 4, 5, 2, 3, 6, 7, 8], 1: [0, 1, 4, 2, 5, 3, 6, 8, 7], 2: [0, 1, 4, 5, 2, 3, 8, 6, 7], 3: [0, 1, 4, 5, 2, 3, 6, 8, 7]}[opts['il']]
if opts['a3']: ORD = [0, 1, 4, 2, 3, 6, 5, 7, 8]
ORDB = [u ^ 2 if u < 8 else u for u in ORD]
RB = 100; NS = max(opts["W1"], opts["W2"], opts["W3"]) + 2
assert RB + 4*NS <= 132
NVG = 164
def ring(i): return RB + 4*(i % NS)
def guload(i):
    e(f"  global_load_dwordx4 v[{ring(i)}:{ring(i)+3}], v[4:5], off")
    if i == 17: return
    if i % 2 == 0: st = 22
    else:
        t = i//2
        dA = (16*(ORD[t+1]-ORD[t]) - 1)*9216; dB = (16*(ORDB[t+1]-ORDB[t]) - 1)*9216
        e(f"  s_mov_b32 s24, {dA & 0xffffffff:#x}")
        if dA != dB:
            e("  s_bitcmp1_b32 s20, 0")
            e(f"  s_cselect_b32 s24, {dB & 0xffffffff:#x}, s24")
        e("  s_ashr_i32 s25, s24, 31")
        st = 24
    e(f"  v_lshl_add_u64 v[4:5], v[4:5], 0, s[{st}:{st+1}]")
NOCOMB = opts["nocomb"]; NCL = 7
def gsetup():
    e("  v_and_b32 v6, 16, v0")
    e("  v_bfe_u32 v7, v0, 3, 1")
    e("  v_lshl_add_u32 v6, v7, 2, v6")
    e("  s_lshl_b32 s34, s34, 1")
    e("  v_add_u32 v6, s34, v6")
    e("  v_lshrrev_b32 v1, 5, v0")
    e("  v_lshlrev_b32 v1, 7, v1")
    e("  v_and_b32 v2, 1, v0")
    e("  v_mul_u32_u24 v92, 0xaaaa, v2")
    e("  v_add_u32 v92, 0x4444, v92")
    e("  v_lshl_add_u32 v2, v2, 6, v1")
    e("  s_lshl_b32 s33, s33, 1")
    e("  v_xor_b32 v2, s33, v2")
    e("  v_add_u32 v2, v2, v6                ; units 0-7")
    e("  v_add_u32 v6, 256, v6               ; unit 8")
    b1, b2 = (2, 4) if NOCOMB else (4, 2)
    e("  v_and_b32 v1, 3, v0")
    e(f"  v_bfe_u32 v72, v0, {b1}, 1")
    e("  v_lshl_add_u32 v1, v1, 1, v72")
    e("  v_mul_u32_u24 v1, 272, v1")
    e("  v_lshl_add_u32 v7, v7, 2, v1")
    e(f"  v_bfe_u32 v72, v0, {b2}, 1")
    e("  v_lshl_add_u32 v7, v72, 7, v7")
    e("  s_lshl_b32 s33, s3, 3")
    e(f"  s_add_u32 s33, s33, {L_PART}")
    e("  v_add_u32 v7, s33, v7")
    for r in list(range(80, 92, 2)) + list(range(132, 152, 2)):
        e(f"  v_mov_b64 v[{r}:{r+1}], 0")
    e(f"  v_mov_b32 v1, {L_WIN}")
    e("  s_mov_b32 s38, 0x00ff00ff")
    e("  s_mov_b32 s39, 0xff00ff00")
    e("  s_mov_b32 s32, 0x0f0f0f0f")
    e("  s_mov_b32 s33, 0x0f0f0f0f")
    e("  s_mov_b32 s34, 0x03030303")
    e("  s_mov_b32 s35, 0x30303030")
    e("  s_mov_b32 s36, 0x0c0c0c0c")
    e("  s_mov_b32 s37, 0xc0c0c0c0")
    roles()
    if opts["rpre"]: redsetup()
    e("  s_min_u32 s27, s80, 10")
    e("  s_lshl2_add_u32 s27, s27, s3")
    e("  s_mul_i32 s27, s27, 6912")
    e("  s_add_u32 s28, s27, 6896")
    e(f"  s_min_u32 s28, s28, {256*1152-16}")
    e(f"  s_mul_i32 s54, s81, {256*1152}")
    e("  v_lshl_add_u32 v94, v0, 4, s27")
    for t in range(NCL):
        e(f"  v_add_u32 v{152+t}, {1024*t}, v94")
        e(f"  v_cmp_ge_u32 s[{40+2*t}:{41+2*t}], s28, v{152+t}")
        e(f"  v_min_u32 v{152+t}, s28, v{152+t}")
        e(f"  v_add_u32 v{152+t}, s54, v{152+t}")
    e("  s_movk_i32 s26, 1152")
def gperm(k):
    u = ORD[k]
    for c in range(8):
        d = 8 + 8*c + 4*(u >> 2) + ((u >> 1) & 1) + 2*(u & 1) if u < 8 else 72 + c
        e(f"  v_perm_b32 v{d}, v{ring(2*k+1)+(c>>1)}, v{ring(2*k)+(c>>1)}, s{30+(c&1)}")
def wof(i):
    if i < opts["n0"]: return opts["W0"]
    if i >= opts["n3"]: return opts["W3"]
    return opts["W1"] if i < (6 if opts["a3"] else 10 if opts["il"] == 1 else 8) else opts["W2"]
done = 0; permd = 0; setup = False
for i in range(18):
    lim = wof(i) - 1
    if i - done > lim:
        if not setup and i >= opts["gs"]: gsetup(); setup = True
        e(f"  s_waitcnt vmcnt({lim})")
        done = i - lim
        if i == opts['n0']-1: stamp(9)
    while i - NS >= 2*permd:
        assert 2*permd + 2 <= done
        gperm(permd); permd += 1
    guload(i)
    if i == 0:
        e("  s_mov_b32 s30, 0x05040100")
        e("  s_mov_b32 s31, 0x07060302")
    if P1B and i + 1 == opts["p1"]: bar("P1")
    if i + 1 in XB: bar("S: keep the four waves' first-touch loads ahead of the others")
    if i + 1 == opts["p0"]: bar("P0: key wave may start")
    if SCF and SCG and i + 1 == opts["p1"]:
        scffn(); scissue()
    if i == 17:
        stamp(2)
        bar("X1: x row requested, stream issued")
    if i == 17 or i + 1 - done > wof(i + 1) - 1:
        while 2*permd + 2 <= done:
            gperm(permd); permd += 1
assert setup
LATE8 = opts["late8"] and ORD[8] == 8
while permd < (8 if LATE8 else 9):
    e(f"  s_waitcnt vmcnt({18 - 2*permd - 2})")
    gperm(permd); permd += 1
e("  s_mov_b64 exec, s[32:33]")
if SCF and SCG: e("  s_waitcnt lgkmcnt(0)")
stamp(3)
bar("X2: x row in LDS")
stamp(4)
if LATE8:
    e("  ds_read2_b32 v[80:81], v2 offset0:0 offset1:8")
    e("  ds_read2_b32 v[82:83], v2 offset0:2 offset1:10")
    e("  s_not_b64 exec, s[32:33]")
    e("  ds_read2_b32 v[84:85], v2 offset0:0 offset1:8")
    e("  ds_read2_b32 v[86:87], v2 offset0:2 offset1:10")
    e("  s_mov_b64 exec, s[34:35]")
    e("  ds_read_b32 v88, v6")
    e("  ds_read_b32 v90, v6 offset:8")
    e("  s_mov_b64 exec, s[36:37]")
    e("  ds_read_b32 v89, v6")
    e("  ds_read_b32 v91, v6 offset:8")
    e("  s_mov_b64 exec, -1")
    e("  ds_read_b32 v93, v1")
    e("  s_waitcnt lgkmcnt(7)")
    def p8(c): e(f"  v_perm_b32 v{72+c}, v{ring(17)+(c>>1)}, v{ring(16)+(c>>1)}, s{30+(c&1)}")
    for i_ in range(4):
        e(f"  v_smfmac_f32_16x16x64_bf16 v[{132+4*i_}:{135+4*i_}], v[80:83], v[{8+8*i_}:{15+8*i_}], v92")
    e("  s_waitcnt vmcnt(0) lgkmcnt(5)")
    for i_ in range(4):
        p8(2*i_); p8(2*i_+1)
        e(f"  v_smfmac_f32_16x16x64_bf16 v[{132+4*i_}:{135+4*i_}], v[84:87], v[{40+8*i_}:{47+8*i_}], v92")
    e("  s_waitcnt lgkmcnt(1)")
    e("  v_smfmac_f32_16x16x64_bf16 v[148:151], v[88:91], v[72:79], v92")
    e("  s_mov_b64 exec, s[38:39]")
    e("  v_add_f32 v96, v132, v133")
    e("  v_add_f32 v97, v136, v137")
    e("  v_add_f32 v98, v140, v141")
    e("  s_nop 1")
    e("  v_add_f32 v99, v144, v145")
    e("  s_nop 0")
    e("  v_pk_add_f32 v[96:97], v[96:97], v[148:149]")
    e("  v_pk_add_f32 v[98:99], v[98:99], v[150:151]")
    e("  ds_write2_b32 v7, v96, v97 offset0:0 offset1:8")
else:
    e("  ds_read2_b32 v[80:81], v2 offset0:0 offset1:8")
    e("  ds_read2_b32 v[82:83], v2 offset0:2 offset1:10")
    e("  s_mov_b64 exec, s[34:35]")
    e("  ds_read_b32 v88, v6")
    e("  ds_read_b32 v90, v6 offset:8")
    e("  s_mov_b64 exec, s[36:37]")
    e("  ds_read_b32 v89, v6")
    e("  ds_read_b32 v91, v6 offset:8")
    e("  s_not_b64 exec, s[32:33]")
    e("  ds_read2_b32 v[84:85], v2 offset0:0 offset1:8")
    e("  ds_read2_b32 v[86:87], v2 offset0:2 offset1:10")
    e("  s_mov_b64 exec, -1")
    e("  ds_read_b32 v93, v1")
    e("  s_waitcnt lgkmcnt(7)")
    for i_ in range(4):
        e(f"  v_smfmac_f32_16x16x64_bf16 v[{132+4*i_}:{135+4*i_}], v[80:83], v[{8+8*i_}:{15+8*i_}], v92")
    e("  s_waitcnt lgkmcnt(3)")
    e("  v_smfmac_f32_16x16x64_bf16 v[148:151], v[88:91], v[72:79], v92")
    e("  s_waitcnt lgkmcnt(1)")
    for i_ in range(4):
        e(f"  v_smfmac_f32_16x16x64_bf16 v[{132+4*i_}:{135+4*i_}], v[84:87], v[{40+8*i_}:{47+8*i_}], v92")
    e("  s_mov_b64 exec, s[38:39]")
    e("  s_nop 3")
    for i_ in range(4):
        e(f"  v_add_f32 v{96+i_}, v{132+4*i_}, v{133+4*i_}")
        e(f"  v_add_f32 v{96+i_}, v{96+i_}, v{148+i_}")
        if i_ == 1: e("  ds_write2_b32 v7, v96, v97 offset0:0 offset1:8")
e("  ds_write2_b32 v7, v98, v99 offset0:16 offset1:24")
e("  s_mov_b64 exec, -1")
e("  s_waitcnt lgkmcnt(0)")
bar("H: gate/up partial sums in LDS")
stamp(5)
is_red()
e("  s_cbranch_scc1 L_red")
not_cp()
e("  s_cbranch_scc1 L_gend")
cm("---- residual copy: out = x + x*0 for every row but the routed one")
for t in range(NCL):
    e(f"  global_load_dwordx4 v[{20+4*t}:{23+4*t}], v{152+t}, s[4:5]")
e(f"  s_waitcnt vmcnt({NCL-1})")
for t in range(NCL):
    e(f"  v_sub_u32 v95, v{152+t}, v93")
    e("  v_cmp_le_u32 vcc, s26, v95")
    e(f"  s_and_b64 s[{40+2*t}:{41+2*t}], s[{40+2*t}:{41+2*t}], vcc")
e("  v_mov_b32 v18, 0")
e("  v_mov_b32 v19, 0")
for t in range(NCL):
    if t: e(f"  s_waitcnt vmcnt({NCL-1-t})")
    for d in range(4):
        e(f"  v_dot2_f32_bf16 v18, v{20+4*t+d}, v19, v18")
e("  s_nop 2")
e("  v_cmp_u_f32 vcc, v18, v18")
e("  s_cbranch_vccnz L_cpfix")
e("L_cpst:")
stamp(8)
bar("Q: partial row stored")
stamp(6)
for t in range(NCL):
    e(f"  s_mov_b64 exec, s[{40+2*t}:{41+2*t}]")
    e(f"  s_cbranch_execz L_cs{t}")
    if not opts["nocopy"]: e(f"  global_store_dwordx4 v{152+t}, v[{20+4*t}:{23+4*t}], s[14:15] sc1")
    e(f"L_cs{t}:")
if want(7):
    e("  s_waitcnt vmcnt(0)"); stamp(7)
e("L_gend:")
fin()
role[0] = "dn"
e("L_dn:")
roles()
if opts["rpre"]: redsetup()
e("  s_cmp_ge_u32 s3, 8")
e("  s_cbranch_scc1 L_w8")
cm("---- down waves: 128 columns each (wave 7 also the last 64), one-hot sparse A picks the column inside a 16 B chunk")
e("  s_sub_u32 s33, s3, 4")
e("  s_mul_i32 s24, s20, 32*1152")
e("  s_lshl_b32 s25, s33, 8")
e("  s_add_u32 s24, s24, s25")
if NOCOMB:
    e("  v_lshrrev_b32 v1, 5, v0")
    e("  v_bfe_u32 v2, v0, 4, 1")
    e("  v_lshl_add_u32 v1, v1, 3, v2")
    e("  v_mul_u32_u24 v4, 1152, v1")
    e("  v_and_b32 v2, 15, v0")
    e("  v_lshl_add_u32 v4, v2, 4, v4")
    e("  s_add_u32 s24, s24, 3456")
else:
    e("  v_lshrrev_b32 v1, 5, v0")
    e("  v_bfe_u32 v2, v0, 3, 1")
    e("  v_lshl_add_u32 v1, v1, 1, v2")
    e("  v_bfe_u32 v2, v0, 4, 1")
    e("  v_lshl_add_u32 v1, v1, 2, v2")
    e("  v_mul_u32_u24 v4, 1152, v1")
    e("  v_lshl_add_u32 v4, v3, 4, v4")
e("  v_add_u32 v4, s24, v4")
e("  v_add_u32 v5, 16*1152, v4")
e("  s_mov_b32 s32, 0xbfb8aa3b           ; -log2(e)")
MK = 100
e("  v_bfe_u32 v6, v0, 2, 2")
e("  v_sub_u32 v1, v2, v6                ; j = m-qd")
e("  v_and_b32 v6, 1, v1")
e("  v_lshlrev_b32 v6, 4, v6")
e("  v_mov_b32 v7, 0xffff")
e("  v_lshlrev_b32 v6, v6, v7")
e("  v_bfe_u32 v102, v1, 1, 1")
e("  v_mul_u32_u24 v102, 0xaaaa, v102")
e("  v_add_u32 v102, 0x4444, v102")
e("  s_mov_b32 s36, 0x00170017")
e("  s_mov_b32 s37, 0x00170017")
e("  s_mov_b32 s38, 0x03600360")
e("  s_mov_b32 s39, 0x03600360")
e("  v_cndmask_b32 v100, 0, v6, s[36:37]")
e("  v_cndmask_b32 v101, 0, v6, s[38:39]")
e("  v_lshrrev_b32 v7, 3, v0")
e("  v_lshl_add_u32 v7, v0, 1, v7")
e("  v_lshlrev_b32 v7, 4, v7")
e(f"  v_add_u32 v7, {L_PART}, v7")
e("  v_bfe_u32 v103, v0, 3, 1")
e("  v_mul_u32_u24 v103, 3, v103")
e("  v_lshrrev_b32 v6, 4, v0")
e("  v_add_u32 v103, v103, v6")
e("  v_bfe_u32 v6, v0, 2, 1")
e("  v_lshl_add_u32 v103, v103, 1, v6")
e(f"  v_mul_u32_u24 v103, {NF*64}, v103")
e("  v_and_b32 v6, 3, v0")
e("  v_lshl_add_u32 v103, v6, 4, v103")
e("  s_lshl_b32 s26, s20, 6")
e(f"  s_mul_i32 s25, s33, {12*NF*64}")
e("  s_add_u32 s25, s25, s26")
e("  v_add_u32 v103, s25, v103")
e(f"  v_add_u32 v104, {12*NF*64}, v103")
for r in range(88, 100, 2):
    e(f"  v_mov_b64 v[{r}:{r+1}], 0")
e("  s_mov_b32 s34, 0x00ff00ff")
e("  s_mov_b32 s35, 0x00ff00ff")
e("  s_mov_b32 s40, -1")
e("  s_mov_b32 s41, 0xffff")
e("  s_waitcnt lgkmcnt(0)")
if not opts["ptr"]:
    if opts["pt"] == 8:
        e("  s_bitcmp1_b32 s20, 0")
        e("  s_cbranch_scc1 L_pw")
    e("  s_mov_b32 exec_hi, 0x1111")
    e("  s_mov_b32 exec_lo, 0x11111111")
    e("  global_load_dword v116, v103, s[18:19]   ; bring the lines this pair will write close")
    e("  s_cmp_lg_u32 s3, 7")
    e("  s_cbranch_scc1 L_pw")
    e("  s_mov_b32 exec_hi, 0x11")
    e("  s_mov_b32 exec_lo, 0x00110011")
    e("  global_load_dword v117, v104, s[18:19]")
    e("L_pw:")
    e("  s_mov_b64 exec, -1")
e(f"  v_mov_b32 v105, {L_WIN}")
if SCF: scffn()
if P1B:
    bar("P1"); scissue()
xbars()
bar("P0")
if SCF and not P1B: scissue()
def hchain():
    e("  ds_read_b128 v[108:111], v7")
    e("  ds_read_b128 v[112:115], v7 offset:16")
    e("  ds_read_b32 v105, v105 offset:4     ; tag")
    e("  s_waitcnt lgkmcnt(2)")
    e("  v_pk_add_f32 v[108:109], v[108:109], v[110:111]")
    e("  s_waitcnt lgkmcnt(1)")
    e("  v_pk_add_f32 v[112:113], v[112:113], v[114:115]")
    e("  v_pk_add_f32 v[108:109], v[108:109], v[112:113]")
    e("  v_add_f32 v108, v108, v109")
    e("  v_cvt_pk_bf16_f32 v108, 0, v108")
    e("  v_mul_f32 v109, s32, v108")
    e("  v_exp_f32 v109, v109")
    if NOCOMB: e(f"  v_mov_b32_dpp v111, v108 row_ror:8 {DPPX}")
    else: e("  s_nop 0")
    e("  v_add_f32 v109, 1.0, v109")
    e("  v_rcp_f32 v109, v109")
    e("  s_nop 0")
    e("  v_mul_f32 v109, v108, v109")
    e("  v_cvt_pk_bf16_f32 v109, 0, v109     ; silu(g) rounded to bf16")
    if NOCOMB:
        e("  v_mul_f32 v110, v111, v109")
    else:
        e("  s_nop 1")
        e("  v_mul_f32_dpp v110, v108, v109 row_shl:4 row_mask:0xf bank_mask:0x5")
        e("  s_nop 1")
        e("  v_mul_f32_dpp v110, v109, v108 row_shr:4 row_mask:0xf bank_mask:0xa")
    e("  v_cvt_pk_bf16_f32 v110, v110, v110  ; h = silu(g)*u in both halves")
    e("  s_nop 1")
def down_tail(tail):
    stamp(7)
    is_red()
    e("  s_cbranch_scc1 L_red")
    if opts["qpos"] == 0:
        not_cp()
        e(f"  s_cbranch_scc1 L_dq{int(tail)}")
        if opts["cack"]: e("  s_waitcnt vmcnt(0)")
        bar("Q")
        e(f"L_dq{int(tail)}:")
    if want(8):
        e("  s_waitcnt vmcnt(0)"); stamp(8)
    fin()
def down_nocomb(tail):
    parts = [1, 0] if tail else [0]
    seq = [(pt, V) for V in range(4) for pt in parts]
    bar("X1"); stamp(2)
    n = 0
    for pt, V in seq:
        if tail: e(f"  s_mov_b64 exec, {'s[34:35]' if pt else -1}")
        for hi in range(2):
            r = 8 + 32*pt + 8*V + 4*hi
            e(f"  global_load_dwordx4 v[{r}:{r+3}], v{4+hi}, s[12:13] offset:{2304*V-3456+256*pt}"); n += 1
            if n == opts["dsplit"]: bar("X2"); stamp(4)
    if SCF: e("  s_waitcnt lgkmcnt(0)")
    bar("H"); stamp(5)
    hchain()
    ands = [(V, p) for V in range(4) for p in range(4)]
    def emit_and(k):
        for _ in range(k):
            if ands:
                V, p = ands.pop(0)
                e(f"  v_and_b32_dpp v{72+4*V+p}, v110, v{MK+(p&1)} row_newbcast:{2*V+(p>>1)} {DPPX}")
    emit_and(5)
    for k, (pt, V) in enumerate(seq):
        e(f"  s_waitcnt vmcnt({2*(len(seq)-1-k)})")
        if k == len(seq)-1: stamp(6)
        r = 8 + 32*pt + 8*V
        e(f"  v_smfmac_f32_16x16x64_bf16 v[{88+4*pt}:{91+4*pt}], v[{72+4*V}:{75+4*V}], v[{r}:{r+7}], v102")
        had = len(ands)
        emit_and(2 if tail else 4)
        if had and not ands: e("  s_nop 0")
    if tail:
        e("  s_mov_b32 exec_lo, s34")
        e("  s_movk_i32 exec_hi, 0xff")
        e("  s_waitcnt lgkmcnt(0)")
        e("  s_nop 2")
        e("  v_mov_b32 v95, v105")
        e("  global_store_dwordx4 v104, v[92:95], s[18:19] sc1")
        e("  s_mov_b64 exec, s[40:41]")
    else:
        e("  s_mov_b64 exec, s[40:41]")
        e("  s_waitcnt lgkmcnt(0)")
        e("  s_nop 5")
    e("  v_mov_b32 v91, v105")
    e("  global_store_dwordx4 v103, v[88:91], s[18:19] sc1")
    down_tail(tail)
assert NOCOMB
body = down_nocomb
e("  s_cmp_eq_u32 s3, 7")
e("  s_cbranch_scc1 L_dnt")
body(False)
e("L_dnt:")
body(True)
role[0] = "red"
e("L_w8:")
if SCF:
    e("  s_waitcnt lgkmcnt(0)")
    scffn()
    if P1B:
        bar("P1"); scissue()
    bar("P0")
    if not P1B: scissue()
    bar("X1"); bar("X2"); bar("H")
    if XW:
        e("  s_cmp_gt_u32 s3, 9")
        e("  s_cbranch_scc1 L_end")
    is_red()
    e("  s_cbranch_scc0 L_end")
else:
    is_red()
    e("  s_cbranch_scc0 L_end")
    e("  s_waitcnt lgkmcnt(0)")
    xbars()
    bar("P0"); bar("X1"); bar("X2"); bar("H")
cm("---- reducer: wave w sums the pieces of producers 16w..16w+15 once every 16 B granule carries this launch's tag")
e("L_red:")
e("  s_mov_b64 exec, -1")
if not opts["rpre"]: redsetup()
e("  ds_read_b32 v9, v162 offset:4       ; tag")
e("  s_mov_b32 s34, 0x000f000f")
e("  s_mov_b32 s35, 0x000f000f")
e(f"  s_mov_b32 s57, {SPIN}")
e("  s_waitcnt vmcnt(0) lgkmcnt(0)")
bar("Q")
stamp(10)
e("L_red_loop:")
e("  s_mov_b64 exec, -1")
e("  global_load_dwordx4 v[12:15], v160, s[18:19] sc1")
e("  s_sub_u32 s57, s57, 1")
e("  s_cselect_b64 s[36:37], -1, 0")
e("  s_waitcnt vmcnt(0)")
e("  v_permlane32_swap_b32 v12, v14")
e("  v_permlane32_swap_b32 v13, v18")
e("  v_add_f32 v16, v12, v14")
e("  v_add_f32 v17, v13, v18")
e("  v_cmp_eq_u32 vcc, v15, v9")
e("  s_nop 0")
e("  v_permlane16_swap_b32 v16, v17")
e("  v_add_f32 v16, v16, v17")
e("  s_or_b64 vcc, vcc, s[36:37]")
e("  s_cmp_eq_u64 vcc, -1")
e(f"  v_add_f32_dpp v16, v16, v16 row_ror:4 {DPPX}")
e("  s_nop 1")
e(f"  v_add_f32_dpp v16, v16, v16 row_ror:8 {DPPX}")
e("  s_mov_b64 exec, s[34:35]")
e("  ds_write_b32 v161, v16")
e("  s_cbranch_scc0 L_red_loop")
if STAMP:
    e(f"  s_sub_u32 s72, {SPIN}, s57")
stamp(11)
e("  s_waitcnt lgkmcnt(0)")
bar("E")
if opts["ee"]:
    e("  s_lshl4_add_u32 s83, s79, s3")
    e(f"  s_cmp_lg_u32 s83, {opts['ew']*16+8}")
    e("  s_cbranch_scc1 L_noep")
    e("  s_mov_b64 exec, 1")
    e(f"  v_mov_b32 v10, {EOFF:#x}")
    e("  global_store_dword v10, v9, s[18:19]")
    e("L_noep:")
fin()
role[0] = "rt"
e("L_rt2:")
e("  s_lshl_b32 s25, s3, 2")
e("  v_mul_u32_u24 v41, 3*48, v2")
e("  v_add_u32 v41, s25, v41")
e("  s_mov_b32 s28, 0x01010101")
e("  s_mov_b32 s29, 0x01010101")
cm("prefetch addresses (one dword per 128 B line): w_down rows of this group; unit 8 of gate/up; slow-set columns")
NSC = NSW*SCF; RL_ = 288 - NSC; ND = 18*RL_; PD = -(-ND//126)
e(f"  s_mul_i32 s26, s21, {576*1152}")
if opts["dm"]:
    assert not NSC
    ND = 5184 - opts["dskip"]; PD = -(-ND//126)
    e("  s_mul_i32 s34, s3, 14")
    e("  s_add_u32 s34, s34, s33")
    e(f"  s_mul_i32 s34, s34, {PD}")
    e("  v_add_u32 v42, s34, v0")
    e(f"  v_min_u32 v42, {ND-1}, v42")
    e("  v_mul_u32_u24 v49, 58255, v42")
    e("  v_lshrrev_b32 v49, 21, v49          ; item/36")
    for it_ in range(5184): assert (it_*58255) >> 21 == it_//36
    e("  v_cmp_gt_u32 vcc, 2592, v42")
    e("  v_mad_u32_u24 v42, v49, 36, v42")
    a_, b_ = (36, -5184) if opts["dm"] == 1 else (0, -5184+36)
    e(f"  v_mov_b32 v49, {b_}")
    e(f"  v_cndmask_b32 v49, v49, {a_}, vcc")
    e("  v_add_u32 v42, v42, v49")
else:
    e("  s_mul_i32 s34, s33, 9")
    e("  s_add_u32 s34, s34, s3")
    e(f"  s_mul_i32 s34, s34, {PD}")
    e("  v_add_u32 v42, s34, v0")
    e(f"  v_min_u32 v42, {ND-1}, v42")
    if NSC:
        MD = -(-(1 << 20)//RL_)
        for it_ in range(ND): assert (it_*MD) >> 23 == it_//RL_ and it_*MD < (1 << 32)
        e(f"  v_mul_u32_u24 v49, {MD}, v42")
        e("  v_lshrrev_b32 v49, 23, v49")
        e("  v_add_u32 v49, 1, v49")
        e(f"  v_mul_u32_u24 v49, {NSC}, v49")
        e("  v_add_u32 v42, v42, v49")
e("  v_lshl_add_u32 v42, v42, 7, s26")
e("  s_mul_i32 s27, s3, 14")
e("  s_add_u32 s27, s27, s33")
NU = 3 if opts["a3"] else 1; PER = -(-NU*576//126)
e(f"  s_mul_i32 s38, s27, {PER}")
e("  v_add_u32 v49, s38, v0")
e(f"  v_min_u32 v49, {NU*576-1}, v49")
e("  v_mul_u32_u24 v50, 7282, v49")
e("  v_lshrrev_b32 v50, 16, v50          ; item/9")
for it_ in range(NU*576): assert (it_*7282) >> 16 == it_//9
e("  v_mul_u32_u24 v51, 9, v50")
e("  v_sub_u32 v51, v49, v51             ; item%9")
if NU == 1:
    e("  v_lshrrev_b32 v52, 4, v50")
    e("  v_lshl_add_u32 v50, v52, 7, v50")
    e("  v_add_u32 v50, 128, v50")
else:
    e("  v_bfe_u32 v52, v50, 4, 2")
    e("  v_mul_u32_u24 v52, 144, v52")
    e("  v_lshrrev_b32 v49, 6, v50")
    e("  v_lshlrev_b32 v49, 2, v49")
    e("  s_movk_i32 s38, 0x875")
    e("  v_bfe_u32 v49, s38, v49, 4")
    e("  v_lshl_add_u32 v52, v49, 4, v52")
    e("  v_and_b32 v50, 15, v50")
    e("  v_add_u32 v50, v50, v52")
e("  v_mul_u32_u24 v50, 9216, v50")
e("  v_lshl_add_u32 v50, v51, 7, v50")
e("  s_mul_i32 s39, s21, 1152")
e("  v_add_u32 v50, s39, v50")
if opts["ptr"]:
    e("  v_lshl_add_u32 v55, s27, 2, v0")
    e("  v_min_u32 v55, 485, v55")
    e("  v_mul_u32_u24 v56, 7282, v55")
    e("  v_lshrrev_b32 v56, 16, v56")
    e("  v_mul_u32_u24 v56, 63, v56")
    e("  v_add_u32 v55, v55, v56             ; 72*piece+pair")
    e("  v_lshl_add_u32 v55, v55, 7, s39")
C3 = opts["pf3"]
n3 = 4*2*16*C3; P3 = -(-n3//126)
OWN = [0, 1, 4] if opts['a3'] else [0, 1, 4, 5]
CU = [u for t in OWN[len(OWN)-C3:] for u in (t, t ^ 2)]
e(f"  s_mul_i32 s38, s27, {P3}")
e("  v_add_u32 v49, s38, v3")
e(f"  v_min_u32 v49, {n3-1}, v49")
e("  v_lshrrev_b32 v51, 6, v49")
e("  v_lshlrev_b32 v51, 2, v51")
e(f"  s_mov_b32 s38, {sum(u << (4*k) for k, u in enumerate(CU)):#x}")
e("  v_bfe_u32 v51, s38, v51, 4")
e("  v_bfe_u32 v52, v49, 4, 2")
e("  v_mul_u32_u24 v52, 144, v52")
e("  v_lshl_add_u32 v51, v51, 4, v52")
e("  v_and_b32 v49, 15, v49")
e("  v_add_u32 v51, v51, v49")
e("  v_mul_u32_u24 v51, 9216, v51")
e("  s_sub_u32 s38, 3, s21")
e("  s_and_b32 s38, s38, 7")
e("  s_lshl_b32 s41, s38, 7")
e("  s_add_u32 s41, s41, s39")
e("  v_add_u32 v51, s41, v51")
e("  s_cmp_eq_u32 s38, 0")
e("  s_cselect_b32 s41, 1024, 0")
e(f"  s_cselect_b32 s37, {(((1<<P3)-1)*0x101):#x}, {(1<<P3)-1}")
e("  v_add_u32 v52, s41, v51")
e("  v_cmp_eq_u32 vcc, 4, v2")
e("  s_nop 1")
e("  v_cndmask_b32 v50, v50, v51, vcc")
e("  v_cmp_eq_u32 vcc, 5, v2")
e(f"  s_mov_b32 s36, {(1<<PER)-1:#x}")
e("  s_nop 0")
e("  v_cndmask_b32 v50, v50, v52, vcc")
e("  s_waitcnt vmcnt(0)")
stamp(2)
if opts["pre"]:
    e("  s_mov_b64 exec, s[36:37]")
    e("  global_load_dword v49, v50, s[8:9]")
    if opts["pre"] >= 2: e("  global_load_dword v51, v50, s[10:11]")
    if opts["pre"] == 3:
        e("  s_mov_b64 exec, 15")
        e("  global_load_dword v57, v55, s[18:19]")
    e("  s_mov_b64 exec, -1")
for d in range(4):
    for i in range(3):
        c = "0" if d == 0 else f"v{32+i}"
        e(f"  v_dot2_f32_bf16 v{32+i}, v{16+4*i+d}, v{8+d}, {c}")
e("  s_nop 0")
for dp in ["quad_perm:[1,0,3,2]", "quad_perm:[2,3,0,1]", "row_half_mirror"]:
    for i in range(3):
        e(f"  v_add_f32_dpp v{32+i}, v{32+i}, v{32+i} {dp} {DPPX}")
e("  s_mov_b64 exec, s[28:29]")
e("  ds_write2_b32 v41, v32, v33 offset0:0 offset1:12")
e("  ds_write_b32 v41, v34 offset:96")
e("  s_mov_b64 exec, s[36:37]")
e("  s_waitcnt lgkmcnt(0)")
bar("A: row sums in LDS")
stamp(3)
bar("B: key store issued")
if not opts["pre"]: e("  global_load_dword v49, v50, s[8:9]")
if opts["pre"] < 2: e("  global_load_dword v51, v50, s[10:11]")
PE = opts["pfe"]
if opts["ptr"] == 1:
    e("  s_mov_b64 exec, 15")
    e("  global_load_dword v57, v55, s[18:19]")
if PE:
    e(f"  s_mov_b64 exec, {(1 << PE) - 1:#x}")
    e("  global_load_dword v47, v42, s[12:13]")
mm = ((1 << PD) - 1) ^ ((1 << PE) - 1)
e(f"  s_mov_b32 exec_lo, {mm & 0xffffffff:#x}")
e(f"  s_mov_b32 exec_hi, {mm >> 32:#x}")
if opts["pfw"]: e(f"  s_waitcnt vmcnt({max(0, 2 - opts['pfw'] + (1 if PE else 0))})")
else: bar("B2")
stamp(9)
if opts["ptr"] == 2:
    e("  s_mov_b64 s[30:31], exec")
    e("  s_mov_b64 exec, 15")
    e("  global_load_dword v57, v55, s[18:19]")
    e("  s_mov_b64 exec, s[30:31]")
e("  global_load_dword v48, v42, s[12:13]")
if opts["ptr"] == 3:
    e("  s_mov_b64 exec, 15")
    e("  global_load_dword v57, v55, s[18:19]")
if want(8):
    e("  s_waitcnt vmcnt(0)"); stamp(8)
fin()
e("L_w9:")
e(f"  s_cmp_ge_u32 s2, {NWG}")
e("  s_cbranch_scc1 L_end")
e(f"  v_mov_b32 v20, {EOFF:#x}")
e("  s_setprio 3")
e(f"  s_mov_b32 s40, {LCG_A}")
e("  s_waitcnt lgkmcnt(0)")
e("  global_load_dword v20, v20, s[18:19] sc1   ; epoch")
e(f"  s_cmp_ge_u32 s2, {NR}")
e("  s_cbranch_scc1 L_fpoll")
role[0] = "rw9"
cm("---- router wave 9: key = orderable(bf16 r)<<16 | (2047-row), max over the 19 rows")
first_row()
e("  s_mul_i32 s22, s21, 14")
e("  s_add_u32 s22, s22, s33")
e(f"  s_lshl_b32 s22, s22, {opts['ks']}")
e(f"  s_add_u32 s22, s22, {KOFF:#x}")
if KREP:
    e("  v_lshl_add_u32 v6, v3, 13, s22")
else:
    e("  v_mov_b32 v6, s22")
e("  global_load_dword v30, v6, s[18:19] sc1")
e("  v_and_b32 v42, 31, v0")
e("  v_mul_u32_u24 v43, 48, v42")
e("  v_cmp_gt_u32 s[46:47], 19, v42")
e("  s_sub_u32 s22, 2047, s20")
e("  v_sub_u32 v42, s22, v42")
e("  v_mov_b32 v34, 0")
e("  s_brev_b32 s41, 1")
e("  s_waitcnt vmcnt(1)")
e("  v_mul_lo_u32 v20, v20, s40")
e(f"  v_add_u32 v35, {LCG_C}, v20        ; tag")
e("  s_mov_b64 exec, s[46:47]")
bar("A")
stamp(3)
e("  ds_read_b128 v[36:39], v43")
e("  ds_read_b128 v[48:51], v43 offset:16")
e("  ds_read_b32 v52, v43 offset:32")
e("  s_waitcnt lgkmcnt(2)")
e("  v_pk_add_f32 v[36:37], v[36:37], v[38:39]")
e("  s_waitcnt lgkmcnt(1)")
e("  v_pk_add_f32 v[48:49], v[48:49], v[50:51]")
e("  v_pk_add_f32 v[36:37], v[36:37], v[48:49]")
e("  v_add_f32 v36, v36, v37")
e("  s_waitcnt lgkmcnt(0)")
e("  v_add_f32 v36, v36, v52")
e("  v_cmp_o_f32 vcc, v36, v36")
e("  v_cvt_pk_bf16_f32 v36, 0, v36       ; bf16(r)<<16")
e("  v_ashrrev_i32 v37, 31, v36")
e("  v_lshl_or_b32 v37, v37, 16, s41")
e("  v_xor_b32 v36, v36, v37")
e("  v_cndmask_b32 v36, 0, v36, vcc")
e("  v_or_b32 v34, v36, v42")
e("  s_mov_b64 exec, -1")
for k_, d in enumerate(["quad_perm:[1,0,3,2] row_mask:0xf", "quad_perm:[2,3,0,1] row_mask:0xf", "row_half_mirror row_mask:0xf",
          "row_mirror row_mask:0xf", "row_bcast:15 row_mask:0xa"]):
    e("  s_nop 0" if k_ == 0 else "  s_nop 1")
    e(f"  v_max_u32_dpp v34, v34, v34 {d} bank_mask:0xf")
e(f"  s_mov_b32 exec_lo, {0xff000000 if KREP else 0x80000000:#x}")
e("  s_mov_b32 exec_hi, 0")
e("  global_store_dwordx2 v6, v[34:35], s[18:19] sc1")
stamp(4)
if opts["ackb"]: e("  s_waitcnt vmcnt(0)")
bar("B")
if not opts["pfw"]: bar("B2")
if want(5):
    e("  s_waitcnt vmcnt(0)"); stamp(5)
fin()
role[0] = "fp"
cm("---- FFN wave 9: wait for all 112 keys, fetch x[idx] into LDS; in reducing WGs it also finishes 16 outputs")
def gflag():
    e(f"  s_cmp_lg_u32 s82, {opts['gt']}")
    e("  s_cbranch_scc1 L_nofl")
    e("  s_mov_b64 exec, 1")
    e("  global_store_dword v57, v20, s[18:19] sc1   ; this group has its x row: the copy may start soon")
    e("L_nofl:")
e("L_fpoll:")
if opts["tt"]:
    n_ = -(-2048*1152//(opts["tt"]*1024)); assert n_ <= 64
    e(f"  v_min_u32 v59, {n_-1}, v0")
    e(f"  v_mul_u32_u24 v59, {opts['tt']*1024}, v59")
    e("  global_load_dword v60, v59, s[4:5]")
    e("  global_load_dword v61, v59, s[14:15]")
    e(f"  s_sub_u32 s22, s2, {NR}")
    e("  s_lshr_b32 s22, s22, 3")
    e("  s_mul_i32 s23, s21, 18")
    e("  s_add_u32 s22, s22, s23")
    e("  s_mul_i32 s22, s22, 36864")
    e("  v_and_b32 v59, 1, v0")
    e("  v_mul_u32_u24 v59, 36800, v59")
    e("  v_add_u32 v59, s22, v59")
    e("  global_load_dword v62, v59, s[12:13]")
if KREP:
    e("  s_lshl_b32 s22, s21, 13")
    e(f"  s_add_u32 s22, s22, {KOFF:#x}")
else:
    e(f"  s_mov_b32 s22, {KOFF:#x}")
e(f"  v_lshl_add_u32 v21, v0, {opts['ks']}, s22")
e(f"  v_min_u32 v22, {NR-65}, v0")
e("  v_add_u32 v22, 64, v22")
e(f"  v_lshl_add_u32 v22, v22, {opts['ks']}, s22")
e("  v_lshlrev_b32 v7, 4, v0")
e("  s_mov_b32 m0, 0")
roles()
e("  s_mov_b32 s33, s79")
e("  s_mul_i32 s28, s33, 10923")
e("  s_lshr_b32 s28, s28, 16             ; block")
e("  s_mul_i32 s29, s28, 6")
e("  s_sub_u32 s29, s33, s29")
e("  s_lshr_b32 s30, s29, 1              ; qd")
e("  s_and_b32 s29, s29, 1")
e("  s_lshl_b32 s27, s28, 7")
e("  s_lshl_b32 s29, s29, 6")
e("  s_add_u32 s27, s27, s29")
e("  s_mul_i32 s29, s30, 6")
e("  s_add_u32 s27, s27, s29")
for j_ in range(64): assert (j_*10923) >> 16 == j_//6
e("  s_movk_i32 s48, 0x7777")
e("  s_cmp_eq_u32 s30, 2")
e("  s_cselect_b32 s48, 0x3333, s48")
e("  s_mov_b32 s49, 0")
e("  v_and_b32 v49, 15, v0")
e("  v_lshrrev_b32 v50, 2, v49")
e("  v_lshlrev_b32 v50, 4, v50")
e("  v_and_b32 v51, 3, v49")
e("  v_lshl_add_u32 v50, v51, 1, v50")
e("  v_add_u32 v50, s27, v50")
e("  v_mul_u32_u24 v54, 48, v49")
e(f"  v_add_u32 v54, {L_RED}, v54")
if opts["gq"]:
    e(f"  v_lshlrev_b32 v56, 7, v3")
    e(f"  v_add_u32 v56, {FOFF:#x}, v56")
    e("  s_lshl_b32 s22, s21, 7")
    e(f"  s_add_u32 s22, s22, {FOFF:#x}")
    e("  v_mov_b32 v57, s22")
    e(f"  s_cmp_lg_u32 s82, {opts['gt']}")
    e("  s_cbranch_scc1 L_notch")
    e("  global_load_dword v58, v57, s[18:19] sc1")
    e("L_notch:")
e(f"  v_mov_b32 v55, {EOFF:#x}")
e(f"  v_mov_b32 v9, {L_WIN}")
e(f"  s_mov_b32 s57, {SPIN}")
if opts["scp"]:
    e("  s_mul_i32 s20, s21, 18")
    e("  s_add_u32 s20, s20, s82")
    scffn()
if P1B: bar("P1")
xbars()
if opts["scp"]: scissue()
e("  s_waitcnt vmcnt(0)")
e("  v_mul_lo_u32 v20, v20, s40")
e(f"  v_add_u32 v20, {LCG_C}, v20        ; tag")
bar("P0")
if opts["gq"] == 4:
    gflag()
    e("  s_mov_b64 exec, -1")
stamp(1)
e("L_fp_loop:")
e("  global_load_dwordx2 v[24:25], v21, s[18:19] sc1")
e("  global_load_dwordx2 v[26:27], v22, s[18:19] sc1")
e("  s_sub_u32 s57, s57, 1")
e("  s_cselect_b64 s[36:37], -1, 0")
e("  s_waitcnt vmcnt(0)")
e("  v_max_u32 v24, v24, v26")
e("  v_cmp_eq_u32 vcc, v25, v20")
e("  v_cmp_eq_u32 s[42:43], v27, v20")
e(f"  v_max_u32_dpp v24, v24, v24 quad_perm:[1,0,3,2] {DPPX}")
e("  s_and_b64 vcc, vcc, s[42:43]")
e("  s_or_b64 vcc, vcc, s[36:37]")
e(f"  v_max_u32_dpp v24, v24, v24 quad_perm:[2,3,0,1] {DPPX}")
e("  s_cmp_eq_u64 vcc, -1")
e("  s_cbranch_scc0 L_fp_loop")
if STAMP: e(f"  s_sub_u32 s72, {SPIN}, s57")
stamp(2)
e(f"  v_max_u32_dpp v24, v24, v24 row_half_mirror {DPPX}")
for d in ["row_mirror row_mask:0xf", "row_bcast:15 row_mask:0xa", "row_bcast:31 row_mask:0xc"]:
    e("  s_nop 1")
    e(f"  v_max_u32_dpp v24, v24, v24 {d} bank_mask:0xf")
e("  s_nop 0")
e("  v_readlane_b32 s26, v24, 63")
e("  s_andn2_b32 s25, 0x7ff, s26         ; idx")
e("  s_mul_i32 s25, s25, 1152")
e("  v_add_u32 v5, s25, v7")
e("  global_load_lds_dwordx4 v5, s[4:5]")
e("  s_mov_b64 exec, 0xff")
e("  global_load_lds_dwordx4 v5, s[4:5] offset:1024")
if opts["gq"] == 1: gflag()
bar("X1")
e("  v_mov_b32 v8, s25")
e("  ds_write2_b32 v9, v8, v20 offset0:0 offset1:1")
if opts["gq"] == 1:
    e("  s_waitcnt vmcnt(1) lgkmcnt(0)")
    e(f"  s_cmp_eq_u32 s82, {opts['gt']}")
    e("  s_cbranch_scc1 L_w1")
    e("  s_waitcnt vmcnt(0)")
    e("L_w1:")
else:
    e("  s_waitcnt vmcnt(0) lgkmcnt(0)")
stamp(3)
bar("X2")
if opts["gq"] == 2: gflag()
e(f"  s_cmp_lt_u32 s33, {NRED}")
e("  s_cbranch_scc1 L_fin")
if opts["gq"]:
    bar("H")
    if opts["gq"] == 3: gflag()
    not_cp()
    e(f"  s_cbranch_scc1 {'L_flush' if (STAMP or ENC) else 'L_end'}")
    e("  s_mov_b64 exec, 0xff")
    e(f"  s_mov_b32 s57, {SPIN}")
    e("L_gq_loop:")
    e("  global_load_dword v58, v56, s[18:19] sc1")
    e("  s_sub_u32 s57, s57, 1")
    e("  s_cbranch_scc1 L_gq_out")
    e("  s_waitcnt vmcnt(0)")
    e("  v_cmp_ne_u32 vcc, v58, v20")
    e("  s_cbranch_vccnz L_gq_loop")
    e("L_gq_out:")
    bar("Q")
if (STAMP or ENC.startswith("fp:")) and not opts["gq"]:
    bar("H (diagnostic)")
    if opts["qpos"] == 0:
        not_cp()
        e("  s_cbranch_scc1 L_flush")
        bar("Q (diagnostic)")
fin()
e("L_fin:")
e("  s_setprio 0")
bar("H")
e("  s_mov_b64 exec, s[48:49]")
e("  ds_read_u16 v51, v50")
e("  s_and_b32 s27, s26, 0xffff0000")
e("  s_ashr_i32 s28, s27, 31")
e("  s_not_b32 s28, s28")
e("  s_or_b32 s28, s28, 0x80000000")
e("  s_xor_b32 s27, s27, s28")
e("  s_and_b32 s27, s27, 0xffff0000")
bar("Q")
e("  v_add_u32 v50, s25, v50")
e("  v_mov_b32 v52, 0xbfb8aa3b")
e("  v_mul_f32 v52, s27, v52")
e("  v_exp_f32 v52, v52")
e("  s_nop 0")
e("  v_add_f32 v52, 1.0, v52")
e("  v_rcp_f32 v52, v52")
e("  s_nop 0")
e("  v_cvt_pk_bf16_f32 v52, 0, v52")
e("  s_waitcnt lgkmcnt(0)")
e("  v_lshlrev_b32 v51, 16, v51")
e("  v_fma_f32 v51, v51, 0, v51          ; x + x*0")
e(f"  s_cmp_lg_u32 s33, {opts['ew']}")
bar("E: nine sums per column in LDS")
stamp(7)
e("  ds_read_b128 v[32:35], v54")
e("  ds_read_b128 v[36:39], v54 offset:16")
e("  ds_read_b32 v48, v54 offset:32")
e("  s_waitcnt lgkmcnt(2)")
e("  v_pk_add_f32 v[32:33], v[32:33], v[34:35]")
e("  s_waitcnt lgkmcnt(1)")
e("  v_pk_add_f32 v[36:37], v[36:37], v[38:39]")
e("  v_pk_add_f32 v[32:33], v[32:33], v[36:37]")
e("  v_add_f32 v32, v32, v33")
e("  s_waitcnt lgkmcnt(0)")
e("  v_add_f32 v32, v32, v48")
e("  v_cvt_pk_bf16_f32 v32, 0, v32       ; y")
e("  v_mul_f32 v32, v32, v52")
e("  v_cvt_pk_bf16_f32 v32, 0, v32       ; y*sigmoid(r)")
e("  v_add_f32 v32, v51, v32")
e("  v_cvt_pk_bf16_f32 v32, v32, v32")
e("  global_store_short v50, v32, s[14:15]")
stamp(8)
if not opts["ee"]:
    e("  s_cbranch_scc1 L_finend")
    e("  s_mov_b64 exec, 1")
    e("  global_store_dword v55, v20, s[18:19]")
e("L_finend:")
if ENC:
    e("L_flush:")
    e("  s_cmp_eq_u32 s78, 0")
    e("  s_cbranch_scc1 L_end")
    if opts["encwg"] >= 0:
        e(f"  s_cmp_lg_u32 s2, {opts['encwg']}")
        e("  s_cbranch_scc1 L_end")
    e("  s_add_u32 s78, s78, 3000")
    e("L_spin:")
    e("  s_memrealtime s[58:59]")
    e("  s_waitcnt lgkmcnt(0)")
    e("  s_sub_u32 s58, s58, s78")
    e("  s_cmp_lt_i32 s58, 0")
    e("  s_cbranch_scc1 L_spin")
if STAMP:
    e("L_flush:")
    e("  s_mov_b64 exec, -1")
    e("  s_sleep 40")
    e("  s_mov_b32 s60, s76")
    e(f"  s_mul_i32 s56, s2, {10+XW}")
    e("  s_add_u32 s56, s56, s3")
    e("  s_lshl_b32 s56, s56, 6")
    e("  s_add_u32 s56, s56, 0x100000")
    e("  s_getreg_b32 s75, hwreg(HW_REG_XCC_ID)")
    e("  s_getpc_b64 s[58:59]")
    e("  s_mov_b32 s73, s58")
    e("  s_mov_b32 s74, s59")
    e("  s_waitcnt vmcnt(0)")
    e("  v_mov_b32 v120, s56")
    for i in range(16): e(f"  v_mov_b32 v{100+i}, s{60+i}")
    e("  s_mov_b64 exec, 1")
    for i in range(4): e(f"  global_store_dwordx4 v120, v[{100+4*i}:{103+4*i}], s[18:19] offset:{16*i}")
e("L_end:")
e("  s_endpgm")
e("L_codeend:")
e("L_cpfix:                              ; some element is Inf/NaN: out = x + x*0 element by element")
e("  s_mov_b32 s30, 0xffff0000")
for d in range(20, 20+4*NCL):
    e(f"  v_lshlrev_b32 v18, 16, v{d}")
    e(f"  v_and_b32 v19, s30, v{d}")
    e("  v_fma_f32 v18, v18, 0, v18")
    e("  v_fma_f32 v19, v19, 0, v19")
    e(f"  v_perm_b32 v{d}, v19, v18, s31")
e("  s_branch L_cpst")
e('.section .rodata,"a"')
e(".p2align 6")
e(f".amdhsa_kernel {NAME}_kernel")
e(f"  .amdhsa_next_free_vgpr {NVG}")
e(f"  .amdhsa_next_free_sgpr {102 if SCF else 88}")
e(f"  .amdhsa_accum_offset {NVG}")
e("  .amdhsa_group_segment_fixed_size 0")
e("  .amdhsa_kernarg_size 64")
e("  .amdhsa_user_sgpr_count 2")
e("  .amdhsa_user_sgpr_kernarg_segment_ptr 1")
e("  .amdhsa_system_sgpr_workgroup_id_x 1")
e("  .amdhsa_float_denorm_mode_32 3")
e(".end_amdhsa_kernel")
print("\n".join(out))
```

```python
import sys
opts = dict(stamp=0, enc="", encwg=-1, W1=4, W2=5, p0=12, xb=8, gs=6, dsplit=6, ew=20, rs=0, bg=7, nocopy=0, rcv=2)
for a in sys.argv[1:]:
    k, _, v = a.partition("=")
    if k not in opts: raise SystemExit("bad opt " + k)
    opts[k] = int(v) if isinstance(opts[k], int) else v.replace("+", " ")
STAMP = opts["stamp"]; ENC = opts["enc"]
NAME = "standalone__moe_arch_mod__prompt"
NR, NF, NRED = 112, 144, 54
NWG = NR + NF
SPIN = 0x40000
KOFF = 0x80000
EOFF = 0xA0000
LCG_A, LCG_C = 1664525, 1013904223
L_PART, L_WIN, L_RED = 2048, 4352, 5120
out = []
e = out.append
role = ["none"]
def stamp(slot):
    if ENC:
        if ENC == f"{role[0]}:{slot}":
            e("  s_memrealtime s[58:59]"); e("  s_waitcnt lgkmcnt(0)"); e("  s_mov_b32 s78, s58")
        return
    if STAMP:
        e("  s_memrealtime s[58:59]"); e("  s_waitcnt lgkmcnt(0)"); e(f"  s_mov_b32 s{60+slot}, s58")
def want(slot): return STAMP or ENC == f"{role[0]}:{slot}"
def fin():
    if STAMP or ENC: e("  s_branch L_flush")
    else: e("  s_endpgm")
def bar(c): e(f"  s_barrier                           ; {c}")
def cm(c): e(f"; {c}")
DPPX = "row_mask:0xf bank_mask:0xf"
def first_row():
    e("  s_lshr_b32 s33, s2, 3               ; ridx")
    e("  s_mul_i32 s20, s33, 4668")
    e("  s_lshr_b32 s20, s20, 8")
    e("  s_lshl_b32 s23, s21, 8")
    e("  s_add_u32 s20, s20, s23")
st_ = [(r*4668) >> 8 for r in range(14)]
assert st_[13] == 237 and all(st_[r+1]-st_[r] in (18, 19) for r in range(13))
BG = opts["bg"]; RS = opts["rs"]
def roles():
    e(f"  s_sub_u32 s50, s2, {NR+8*RS}")
    e("  s_lshr_b32 s50, s50, 3")
    e("  s_mul_i32 s51, s21, 6")
    e("  s_cmp_ge_u32 s50, 6")
    e("  s_cselect_b32 s51, 42, s51")
    e("  s_add_u32 s51, s51, s50")
    e(f"  s_cmp_eq_u32 s21, {BG}")
    e("  s_cselect_b32 s52, 12, 6")
    e("  s_cmp_lt_u32 s50, s52")
    e("  s_cselect_b32 s51, s51, 63")
def redsetup():
    e("  s_mul_i32 s52, s51, 9")
    e("  s_add_u32 s52, s52, s3")
    e("  s_lshl_b32 s52, s52, 10")
    e("  v_lshl_add_u32 v152, v0, 4, s52")
    e("  v_and_b32 v153, 3, v0")
    e("  v_lshrrev_b32 v154, 4, v0")
    e("  v_lshl_add_u32 v153, v153, 2, v154")
    e("  v_mul_u32_u24 v153, 48, v153")
    e("  s_lshl_b32 s52, s3, 2")
    e(f"  s_add_u32 s52, s52, {L_RED}")
    e("  v_add_u32 v153, s52, v153")
    e(f"  v_mov_b32 v154, {L_WIN}")
def is_red(): e("  s_cmp_lg_u32 s51, 63")
def key_addrs():
    e(f"  s_mov_b32 s22, {KOFF:#x}")
    e("  v_lshl_add_u32 v21, v0, 6, s22")
    e(f"  v_min_u32 v22, {NR-65}, v0")
    e("  v_add_u32 v22, 64, v22")
    e("  v_lshl_add_u32 v22, v22, 6, s22")
    e(f"  v_mov_b32 v9, {L_WIN}")
    e(f"  s_mov_b32 s57, {SPIN}")
def key_wait(tag, vt):
    e(f"L_{tag}_loop:")
    e("  global_load_dwordx2 v[24:25], v21, s[18:19] sc1")
    e("  global_load_dwordx2 v[26:27], v22, s[18:19] sc1")
    e("  s_sub_u32 s57, s57, 1")
    e("  s_cselect_b64 s[36:37], -1, 0")
    e("  s_waitcnt vmcnt(0)")
    e("  v_max_u32 v24, v24, v26")
    e(f"  v_cmp_eq_u32 vcc, v25, v{vt}")
    e(f"  v_cmp_eq_u32 s[42:43], v27, v{vt}")
    e(f"  v_max_u32_dpp v24, v24, v24 quad_perm:[1,0,3,2] {DPPX}")
    e("  s_and_b64 vcc, vcc, s[42:43]")
    e("  s_or_b64 vcc, vcc, s[36:37]")
    e(f"  v_max_u32_dpp v24, v24, v24 quad_perm:[2,3,0,1] {DPPX}")
    e("  s_cmp_eq_u64 vcc, -1")
    e(f"  s_cbranch_scc0 L_{tag}_loop")
    if STAMP: e(f"  s_sub_u32 s72, {SPIN}, s57")
    stamp(2)
    e(f"  v_max_u32_dpp v24, v24, v24 row_half_mirror {DPPX}")
    for d in ["row_mirror row_mask:0xf", "row_bcast:15 row_mask:0xa", "row_bcast:31 row_mask:0xc"]:
        e("  s_nop 1")
        e(f"  v_max_u32_dpp v24, v24, v24 {d} bank_mask:0xf")
    e("  s_nop 0")
    e("  v_readlane_b32 s26, v24, 63")
    e("  s_andn2_b32 s25, 0x7ff, s26         ; idx")

e(f"; @launch grid=({NWG},1,1) block=(640,1,1) lds=8192")
cm("One launch, two roles by workgroup id (id&7 = group that shares lines, for L2 locality only):")
cm("  id <112   routers: 19 rows of x each -> r=x.w_r (bf16) -> best (score,row) key, published as {key,tag} in ws;")
cm("            they then pull weight lines into L2 and finally store their rows (all but the routed one) to out")
cm("  id>=112   FFN: 32 hidden units each. waves 0-3 gate/up, 4-7 down, 9 waits for the keys and fetches x[idx];")
cm("            partial rows go to ws as {3 floats,tag} granules, 54 of these WGs sum them (8-12 columns each)")
cm("tag = LCG(epoch word found in ws); the epoch is advanced once every workgroup has read it")
e('.amdgcn_target "amdgcn-amd-amdhsa--gfx950"')
e(".text")
e(f".globl {NAME}_kernel")
e(".p2align 8")
e(f".type {NAME}_kernel,@function")
e(f"{NAME}_kernel:")
cm("s[4:5]=x s[6:7]=w_r s[8:9]=w_gate s[10:11]=w_up s[12:13]=w_down s[14:15]=out s[16:17]=dbg s[18:19]=ws")
e("  s_load_dwordx16 s[4:19], s[0:1], 0")
if ENC:
    e("  s_mov_b32 s78, 0")
    if ENC == "start":
        e("  s_memrealtime s[58:59]"); e("  s_waitcnt lgkmcnt(0)"); e("  s_mov_b32 s78, s58")
if STAMP:
    e("  s_memrealtime s[76:77]")
    for i in range(0, 16, 2): e(f"  s_mov_b64 s[{60+i}:{61+i}], 0")
e("  v_lshrrev_b32 v1, 6, v0")
e("  v_and_b32 v0, 63, v0")
e("  v_readfirstlane_b32 s3, v1")
e("  v_and_b32 v3, 7, v0                 ; chi")
e("  v_lshrrev_b32 v2, 3, v0             ; g")
e("  s_and_b32 s21, s2, 7                ; group")
e("  s_cmp_eq_u32 s3, 9")
e("  s_cbranch_scc0 L_notw9")
e("  s_getpc_b64 s[44:45]")
e("L_pc:")
e("  v_min_u32 v28, (L_codeend-L_pc-4)/128, v0")
e("  v_lshlrev_b32 v28, 7, v28")
e("  global_load_dword v29, v28, s[44:45]")
e("  s_branch L_w9")
e("L_notw9:")
e(f"  s_cmp_ge_u32 s2, {NR}")
e("  s_cbranch_scc1 L_ffn")
role[0] = "rt"
cm("---- router waves 0-8: wave w owns columns 64w..64w+63, lane (g,chi) rows 3g..3g+2")
e("  s_lshl_b32 s22, s3, 7")
e("  v_lshl_add_u32 v4, v3, 4, s22")
first_row()
e("  s_mul_i32 s23, s20, 1152")
e("  v_mul_u32_u24 v5, 3*1152, v2")
e("  v_add3_u32 v5, v5, v4, s23          ; x off")
e("  s_waitcnt lgkmcnt(0)")
stamp(1)
e("  global_load_dwordx4 v[8:11], v4, s[6:7]")
e("  s_mov_b32 exec_hi, 0x00ffffff")
e("  global_load_dwordx4 v[16:19], v5, s[4:5]")
e("  s_mov_b32 exec_hi, 0x0000ffff")
e("  global_load_dwordx4 v[20:23], v5, s[4:5] offset:1152")
e("  global_load_dwordx4 v[24:27], v5, s[4:5] offset:2304")
e("  s_mov_b32 exec_hi, -1")
e("  s_branch L_rt2")
role[0] = "ffn"
e("L_ffn:")
e(f"  s_cmp_ge_u32 s2, {NWG}")
e("  s_cbranch_scc1 L_end")
e(f"  s_sub_u32 s20, s2, {NR}")
e("  s_lshr_b32 s20, s20, 3")
e("  s_mul_i32 s22, s21, 18")
e("  s_add_u32 s20, s20, s22             ; slice 0..143")
e("  s_cmp_ge_u32 s3, 4")
e("  s_cbranch_scc1 L_dn")
cm("---- gate/up waves: 144 rows each = 9 units of 16 rows; lane (g,chi): rows 2g,2g+1, chi<4 gate / chi>=4 up, 8 columns")
e("  s_movk_i32 s22, 9216")
e("  s_mov_b32 s23, 0")
e("  s_and_b32 s33, s20, 1")
e("  s_lshl_b32 s33, s33, 5")
e("  s_mul_i32 s34, s3, 144")
e("  s_add_u32 s35, s34, s33")
e("  s_mul_i32 s36, s35, s22")
e("  s_lshl_b32 s37, s20, 6")
e("  s_add_u32 s36, s36, s37")
e("  v_mul_u32_u24 v4, 2*9216, v2")
e("  v_and_b32 v5, 3, v0")
e("  v_lshlrev_b32 v5, 4, v5")
e("  v_add3_u32 v4, v4, v5, s36")
e("  v_mov_b32 v5, 0")
e("  s_mov_b32 exec_lo, 0x0f0f0f0f")
e("  s_mov_b32 exec_hi, 0x0f0f0f0f")
e("  s_waitcnt lgkmcnt(0)")
stamp(1)
e("  v_lshl_add_u64 v[4:5], v[4:5], 0, s[8:9]")
e("  s_not_b64 exec, exec")
e("  v_lshl_add_u64 v[4:5], v[4:5], 0, s[10:11]")
e("  s_mov_b64 exec, -1")
ORD = [0, 1, 4, 5, 2, 3, 6, 7, 8]
ORDB = [u ^ 2 if u < 8 else u for u in ORD]
RB = 100; NS = max(opts["W1"], opts["W2"]) + 2
assert RB + 4*NS <= 132
NVG = 156
def ring(i): return RB + 4*(i % NS)
def guload(i):
    e(f"  global_load_dwordx4 v[{ring(i)}:{ring(i)+3}], v[4:5], off")
    if i == 17: return
    if i % 2 == 0: st = 22
    else:
        t = i//2
        dA = (16*(ORD[t+1]-ORD[t]) - 1)*9216; dB = (16*(ORDB[t+1]-ORDB[t]) - 1)*9216
        e(f"  s_mov_b32 s24, {dA & 0xffffffff:#x}")
        if dA != dB:
            e("  s_bitcmp1_b32 s20, 0")
            e(f"  s_cselect_b32 s24, {dB & 0xffffffff:#x}, s24")
        e("  s_ashr_i32 s25, s24, 31")
        st = 24
    e(f"  v_lshl_add_u64 v[4:5], v[4:5], 0, s[{st}:{st+1}]")
def gsetup():
    e("  v_and_b32 v6, 16, v0")
    e("  v_bfe_u32 v7, v0, 3, 1")
    e("  v_lshl_add_u32 v6, v7, 2, v6")
    e("  s_lshl_b32 s34, s34, 1")
    e("  v_add_u32 v6, s34, v6")
    e("  v_lshrrev_b32 v1, 5, v0")
    e("  v_lshlrev_b32 v1, 7, v1")
    e("  v_and_b32 v2, 1, v0")
    e("  v_mul_u32_u24 v92, 0xaaaa, v2")
    e("  v_add_u32 v92, 0x4444, v92")
    e("  v_lshl_add_u32 v2, v2, 6, v1")
    e("  s_lshl_b32 s33, s33, 1")
    e("  v_xor_b32 v2, s33, v2")
    e("  v_add_u32 v2, v2, v6                ; units 0-7")
    e("  v_add_u32 v6, 256, v6               ; unit 8")
    e("  v_and_b32 v1, 3, v0")
    e("  v_bfe_u32 v72, v0, 2, 1")
    e("  v_lshl_add_u32 v1, v1, 1, v72")
    e("  v_mul_u32_u24 v1, 272, v1")
    e("  v_lshl_add_u32 v7, v7, 2, v1")
    e("  v_bfe_u32 v72, v0, 4, 1")
    e("  v_lshl_add_u32 v7, v72, 7, v7")
    e("  s_lshl_b32 s33, s3, 3")
    e(f"  s_add_u32 s33, s33, {L_PART}")
    e("  v_add_u32 v7, s33, v7")
    for r in list(range(80, 92, 2)) + list(range(132, 152, 2)):
        e(f"  v_mov_b64 v[{r}:{r+1}], 0")
    e("  s_mov_b32 s38, 0x00ff00ff")
    e("  s_mov_b32 s39, 0xff00ff00")
    e("  s_mov_b32 s32, 0x0f0f0f0f")
    e("  s_mov_b32 s33, 0x0f0f0f0f")
    e("  s_mov_b32 s34, 0x03030303")
    e("  s_mov_b32 s35, 0x30303030")
    e("  s_mov_b32 s36, 0x0c0c0c0c")
    e("  s_mov_b32 s37, 0xc0c0c0c0")
    roles(); redsetup()
def gperm(k):
    u = ORD[k]
    for c in range(8):
        d = 8 + 8*c + 4*(u >> 2) + ((u >> 1) & 1) + 2*(u & 1)
        e(f"  v_perm_b32 v{d}, v{ring(2*k+1)+(c>>1)}, v{ring(2*k)+(c>>1)}, s{30+(c&1)}")
def wof(i): return opts["W1"] if i < 8 else opts["W2"]
done = 0; permd = 0; setup = False
XB = opts["xb"]
for i in range(18):
    lim = wof(i) - 1
    if i - done > lim:
        if not setup and i >= opts["gs"]: gsetup(); setup = True
        e(f"  s_waitcnt vmcnt({lim})")
        done = i - lim
    while i - NS >= 2*permd:
        assert 2*permd + 2 <= done
        gperm(permd); permd += 1
    guload(i)
    if i == 0:
        e("  s_mov_b32 s30, 0x05040100")
        e("  s_mov_b32 s31, 0x07060302")
    if i + 1 == XB: bar("S: keep the four waves' first-touch loads ahead of the others")
    if i + 1 == opts["p0"]: bar("P0: key wave may start")
    if i == 17:
        stamp(2)
        bar("X1: x row requested, stream issued")
    if i == 17 or i + 1 - done > wof(i + 1) - 1:
        while 2*permd + 2 <= done:
            gperm(permd); permd += 1
assert setup
while permd < 8:
    e(f"  s_waitcnt vmcnt({18 - 2*permd - 2})")
    gperm(permd); permd += 1
e("  s_mov_b64 exec, s[32:33]")
stamp(3)
bar("X2: x row in LDS")
stamp(4)
e("  ds_read2_b32 v[80:81], v2 offset0:0 offset1:8")
e("  ds_read2_b32 v[82:83], v2 offset0:2 offset1:10")
e("  s_not_b64 exec, s[32:33]")
e("  ds_read2_b32 v[84:85], v2 offset0:0 offset1:8")
e("  ds_read2_b32 v[86:87], v2 offset0:2 offset1:10")
e("  s_mov_b64 exec, s[34:35]")
e("  ds_read_b32 v88, v6")
e("  ds_read_b32 v90, v6 offset:8")
e("  s_mov_b64 exec, s[36:37]")
e("  ds_read_b32 v89, v6")
e("  ds_read_b32 v91, v6 offset:8")
e("  s_mov_b64 exec, -1")
e("  s_waitcnt lgkmcnt(6)")
def p8(c): e(f"  v_perm_b32 v{72+c}, v{ring(17)+(c>>1)}, v{ring(16)+(c>>1)}, s{30+(c&1)}")
for i_ in range(4):
    e(f"  v_smfmac_f32_16x16x64_bf16 v[{132+4*i_}:{135+4*i_}], v[80:83], v[{8+8*i_}:{15+8*i_}], v92")
e("  s_waitcnt vmcnt(0) lgkmcnt(4)")
for i_ in range(4):
    p8(2*i_); p8(2*i_+1)
    e(f"  v_smfmac_f32_16x16x64_bf16 v[{132+4*i_}:{135+4*i_}], v[84:87], v[{40+8*i_}:{47+8*i_}], v92")
e("  s_waitcnt lgkmcnt(0)")
e("  v_smfmac_f32_16x16x64_bf16 v[148:151], v[88:91], v[72:79], v92")
e("  s_mov_b64 exec, s[38:39]")
e("  v_add_f32 v96, v132, v133")
e("  v_add_f32 v97, v136, v137")
e("  v_add_f32 v98, v140, v141")
e("  s_nop 1")
e("  v_add_f32 v99, v144, v145")
is_red()
e("  v_pk_add_f32 v[96:97], v[96:97], v[148:149]")
e("  v_pk_add_f32 v[98:99], v[98:99], v[150:151]")
e("  ds_write2_b32 v7, v96, v97 offset0:0 offset1:8")
e("  ds_write2_b32 v7, v98, v99 offset0:16 offset1:24")
e("  s_waitcnt lgkmcnt(0)")
bar("H: gate/up partial sums in LDS")
stamp(5)
e("  s_cbranch_scc1 L_red")
fin()
role[0] = "dn"
e("L_dn:")
roles(); redsetup()
e("  s_cmp_eq_u32 s3, 8")
e("  s_cbranch_scc1 L_w8")
cm("---- down waves: 128 columns each (wave 7 also the last 64), one-hot sparse A picks the column inside a 16 B chunk")
e("  s_sub_u32 s33, s3, 4")
e("  s_mul_i32 s24, s20, 32*1152")
e("  s_lshl_b32 s25, s33, 8")
e("  s_add_u32 s24, s24, s25")
e("  v_lshrrev_b32 v1, 5, v0")
e("  v_bfe_u32 v2, v0, 4, 1")
e("  v_lshl_add_u32 v1, v1, 3, v2")
e("  v_mul_u32_u24 v4, 1152, v1")
e("  v_and_b32 v2, 15, v0")
e("  v_lshl_add_u32 v4, v2, 4, v4")
e("  s_add_u32 s24, s24, 3456")
e("  v_add_u32 v4, s24, v4")
e("  v_add_u32 v5, 16*1152, v4")
e("  s_mov_b32 s32, 0xbfb8aa3b           ; -log2(e)")
e("  v_bfe_u32 v6, v0, 2, 2")
e("  v_sub_u32 v1, v2, v6")
e("  v_and_b32 v6, 1, v1")
e("  v_lshlrev_b32 v6, 4, v6")
e("  v_mov_b32 v7, 0xffff")
e("  v_lshlrev_b32 v6, v6, v7")
e("  v_bfe_u32 v102, v1, 1, 1")
e("  v_mul_u32_u24 v102, 0xaaaa, v102")
e("  v_add_u32 v102, 0x4444, v102")
e("  s_mov_b32 s36, 0x00170017")
e("  s_mov_b32 s37, 0x00170017")
e("  s_mov_b32 s38, 0x03600360")
e("  s_mov_b32 s39, 0x03600360")
e("  v_cndmask_b32 v100, 0, v6, s[36:37]")
e("  v_cndmask_b32 v101, 0, v6, s[38:39]")
e("  v_lshrrev_b32 v7, 3, v0")
e("  v_lshl_add_u32 v7, v0, 1, v7")
e("  v_lshlrev_b32 v7, 4, v7")
e(f"  v_add_u32 v7, {L_PART}, v7")
e("  v_bfe_u32 v103, v0, 3, 1")
e("  v_mul_u32_u24 v103, 3, v103")
e("  v_lshrrev_b32 v6, 4, v0")
e("  v_add_u32 v103, v103, v6")
e("  v_bfe_u32 v6, v0, 2, 1")
e("  v_lshl_add_u32 v103, v103, 1, v6")
e(f"  v_mul_u32_u24 v103, {NF*64}, v103")
e("  v_and_b32 v6, 3, v0")
e("  v_lshl_add_u32 v103, v6, 4, v103")
e("  s_lshl_b32 s26, s20, 6")
e(f"  s_mul_i32 s25, s33, {12*NF*64}")
e("  s_add_u32 s25, s25, s26")
e("  v_add_u32 v103, s25, v103")
e(f"  v_add_u32 v104, {12*NF*64}, v103")
for r in range(88, 96, 2):
    e(f"  v_mov_b64 v[{r}:{r+1}], 0")
e("  s_mov_b32 s34, 0x00ff00ff")
e("  s_mov_b32 s35, 0x00ff00ff")
e("  s_mov_b32 s40, -1")
e("  s_mov_b32 s41, 0xffff")
e("  s_waitcnt lgkmcnt(0)")
if XB: bar("S")
bar("P0")
def down(tail):
    parts = [1, 0] if tail else [0]
    seq = [(pt, V) for V in range(4) for pt in parts]
    bar("X1"); stamp(2)
    n = 0
    for pt, V in seq:
        if tail: e(f"  s_mov_b64 exec, {'s[34:35]' if pt else -1}")
        for hi in range(2):
            r = 8 + 32*pt + 8*V + 4*hi
            e(f"  global_load_dwordx4 v[{r}:{r+3}], v{4+hi}, s[12:13] offset:{2304*V-3456+256*pt}"); n += 1
            if n == opts["dsplit"]: bar("X2"); stamp(4)
    e("  ds_read_b32 v105, v154              ; tag")
    is_red()
    bar("H"); stamp(5)
    e("  ds_read_b128 v[108:111], v7")
    e("  ds_read_b128 v[112:115], v7 offset:16")
    e("  s_waitcnt lgkmcnt(1)")
    e("  v_pk_add_f32 v[108:109], v[108:109], v[110:111]")
    e("  s_waitcnt lgkmcnt(0)")
    e("  v_pk_add_f32 v[112:113], v[112:113], v[114:115]")
    e("  v_pk_add_f32 v[108:109], v[108:109], v[112:113]")
    e("  v_add_f32 v108, v108, v109")
    e("  v_cvt_pk_bf16_f32 v108, 0, v108")
    e("  v_mul_f32 v109, s32, v108")
    e("  v_exp_f32 v109, v109")
    e(f"  v_mov_b32_dpp v111, v108 row_ror:8 {DPPX}")
    e("  v_add_f32 v109, 1.0, v109")
    e("  v_rcp_f32 v109, v109")
    e("  s_nop 0")
    e("  v_mul_f32 v109, v108, v109")
    e("  v_cvt_pk_bf16_f32 v109, 0, v109")
    e("  v_mul_f32 v110, v111, v109")
    e("  v_cvt_pk_bf16_f32 v110, v110, v110")
    e("  s_nop 1")
    ands = [(V, p) for V in range(4) for p in range(4)]
    def emit_and(k):
        for _ in range(k):
            if ands:
                V, p = ands.pop(0)
                e(f"  v_and_b32_dpp v{72+4*V+p}, v110, v{100+(p&1)} row_newbcast:{2*V+(p>>1)} {DPPX}")
    emit_and(5)
    for k, (pt, V) in enumerate(seq):
        e(f"  s_waitcnt vmcnt({2*(len(seq)-1-k)})")
        if k == len(seq)-1: stamp(6)
        r = 8 + 32*pt + 8*V
        e(f"  v_smfmac_f32_16x16x64_bf16 v[{88+4*pt}:{91+4*pt}], v[{72+4*V}:{75+4*V}], v[{r}:{r+7}], v102")
        had = len(ands)
        emit_and(2 if tail else 4)
        if had and not ands: e("  s_nop 0")
    if tail:
        e("  s_mov_b32 exec_lo, s34")
        e("  s_movk_i32 exec_hi, 0xff")
        e("  s_nop 3")
        e("  v_mov_b32 v95, v105")
        e("  global_store_dwordx4 v104, v[92:95], s[18:19] sc1")
        e("  s_mov_b64 exec, s[40:41]")
    else:
        e("  s_mov_b64 exec, s[40:41]")
        e("  s_nop 6")
    e("  v_mov_b32 v91, v105")
    e("  global_store_dwordx4 v103, v[88:91], s[18:19] sc1")
    stamp(7)
    e("  s_cbranch_scc1 L_red")
    if want(8):
        e("  s_waitcnt vmcnt(0)"); stamp(8)
    fin()
e("  s_cmp_eq_u32 s3, 7")
e("  s_cbranch_scc1 L_dnt")
down(False)
e("L_dnt:")
down(True)
role[0] = "red"
e("L_w8:")
is_red()
e("  s_cbranch_scc0 L_end")
e("  s_waitcnt lgkmcnt(0)")
if XB: bar("S")
bar("P0"); bar("X1"); bar("X2"); bar("H")
cm("---- reducer: wave w sums the pieces of producers 16w..16w+15 once every 16 B granule carries this launch's tag")
e("L_red:")
e("  s_mov_b64 exec, -1")
e("  ds_read_b32 v9, v154                ; tag")
e("  s_mov_b32 s34, 0x000f000f")
e("  s_mov_b32 s35, 0x000f000f")
e(f"  s_mov_b32 s57, {SPIN}")
e("  s_waitcnt vmcnt(0) lgkmcnt(0)")
bar("Q: this workgroup's own pieces have landed")
stamp(10)
e("L_red_loop:")
e("  s_mov_b64 exec, -1")
e("  global_load_dwordx4 v[12:15], v152, s[18:19] sc1")
e("  s_sub_u32 s57, s57, 1")
e("  s_cselect_b64 s[36:37], -1, 0")
e("  s_waitcnt vmcnt(0)")
e("  v_permlane32_swap_b32 v12, v14")
e("  v_permlane32_swap_b32 v13, v18")
e("  v_add_f32 v16, v12, v14")
e("  v_add_f32 v17, v13, v18")
e("  v_cmp_eq_u32 vcc, v15, v9")
e("  s_nop 0")
e("  v_permlane16_swap_b32 v16, v17")
e("  v_add_f32 v16, v16, v17")
e("  s_or_b64 vcc, vcc, s[36:37]")
e("  s_cmp_eq_u64 vcc, -1")
e(f"  v_add_f32_dpp v16, v16, v16 row_ror:4 {DPPX}")
e("  s_nop 1")
e(f"  v_add_f32_dpp v16, v16, v16 row_ror:8 {DPPX}")
e("  s_mov_b64 exec, s[34:35]")
e("  ds_write_b32 v153, v16")
e("  s_cbranch_scc0 L_red_loop")
if STAMP: e(f"  s_sub_u32 s72, {SPIN}, s57")
stamp(11)
e("  s_waitcnt lgkmcnt(0)")
bar("E")
e("  s_lshl4_add_u32 s52, s51, s3")
e(f"  s_cmp_lg_u32 s52, {opts['ew']*16+8}")
e("  s_cbranch_scc1 L_noep")
e("  s_mov_b64 exec, 1")
e(f"  v_mov_b32 v10, {EOFF:#x}")
e("  global_store_dword v10, v9, s[18:19]")
e("L_noep:")
fin()
role[0] = "rt"
e("L_rt2:")
e("  s_lshl_b32 s25, s3, 2")
e("  v_mul_u32_u24 v41, 3*48, v2")
e("  v_add_u32 v41, s25, v41")
e("  s_mov_b32 s28, 0x01010101")
e("  s_mov_b32 s29, 0x01010101")
cm("prefetch addresses (one dword per 128 B line): w_down rows of this group; unit 8 of gate/up; slow-set columns; partial lines")
e("  s_mul_i32 s27, s3, 14")
e("  s_add_u32 s27, s27, s33")
e(f"  s_mul_i32 s26, s21, {576*1152}")
e("  s_mul_i32 s34, s27, 42")
e("  v_add_u32 v42, s34, v0")
e("  v_min_u32 v42, 5183, v42")
e("  v_mul_u32_u24 v49, 58255, v42")
e("  v_lshrrev_b32 v49, 21, v49          ; item/36")
for it_ in range(5184): assert (it_*58255) >> 21 == it_//36
e("  v_cmp_gt_u32 vcc, 2592, v42")
e("  v_mad_u32_u24 v42, v49, 36, v42")
e("  v_mov_b32 v49, -5184")
e("  v_cndmask_b32 v49, v49, 36, vcc")
e("  v_add_u32 v42, v42, v49")
e("  v_lshl_add_u32 v42, v42, 7, s26")
e("  s_mul_i32 s38, s27, 5")
e("  v_add_u32 v49, s38, v0")
e("  v_min_u32 v49, 575, v49")
e("  v_mul_u32_u24 v50, 7282, v49")
e("  v_lshrrev_b32 v50, 16, v50          ; item/9")
for it_ in range(576): assert (it_*7282) >> 16 == it_//9
e("  v_mul_u32_u24 v51, 9, v50")
e("  v_sub_u32 v51, v49, v51             ; item%9")
e("  v_lshrrev_b32 v52, 4, v50")
e("  v_lshl_add_u32 v50, v52, 7, v50")
e("  v_add_u32 v50, 128, v50")
e("  v_mul_u32_u24 v50, 9216, v50")
e("  v_lshl_add_u32 v50, v51, 7, v50")
e("  s_mul_i32 s39, s21, 1152")
e("  v_add_u32 v50, s39, v50")
e("  v_lshl_add_u32 v55, s27, 2, v0")
e("  v_min_u32 v55, 485, v55")
e("  v_mul_u32_u24 v56, 7282, v55")
e("  v_lshrrev_b32 v56, 16, v56")
e("  v_mul_u32_u24 v56, 63, v56")
e("  v_add_u32 v55, v55, v56             ; 72*piece+pair")
e("  v_lshl_add_u32 v55, v55, 7, s39")
e("  s_mul_i32 s38, s27, 3")
e("  v_add_u32 v49, s38, v3")
e("  v_min_u32 v49, 255, v49")
e("  v_lshrrev_b32 v51, 6, v49")
e("  v_lshlrev_b32 v51, 2, v51")
e("  s_movk_i32 s38, 0x7564")
e("  v_bfe_u32 v51, s38, v51, 4          ; units 4,6,5,7")
e("  v_bfe_u32 v52, v49, 4, 2")
e("  v_mul_u32_u24 v52, 144, v52")
e("  v_lshl_add_u32 v51, v51, 4, v52")
e("  v_and_b32 v49, 15, v49")
e("  v_add_u32 v51, v51, v49")
e("  v_mul_u32_u24 v51, 9216, v51")
e("  s_sub_u32 s38, 3, s21")
e("  s_and_b32 s38, s38, 7")
e("  s_lshl_b32 s41, s38, 7")
e("  s_add_u32 s41, s41, s39")
e("  v_add_u32 v51, s41, v51")
e("  s_cmp_eq_u32 s38, 0")
e("  s_cselect_b32 s41, 1024, 0")
e("  s_cselect_b32 s37, 0x707, 7")
e("  v_add_u32 v52, s41, v51")
e("  v_cmp_eq_u32 vcc, 4, v2")
e("  s_nop 1")
e("  v_cndmask_b32 v50, v50, v51, vcc")
e("  v_cmp_eq_u32 vcc, 5, v2")
e("  s_mov_b32 s36, 0x1f")
e("  s_nop 0")
e("  v_cndmask_b32 v50, v50, v52, vcc")
e("  s_mov_b64 exec, s[36:37]")
e("  s_waitcnt vmcnt(0)")
stamp(2)
e("  global_load_dword v49, v50, s[8:9]")
e("  global_load_dword v51, v50, s[10:11]")
e("  s_mov_b64 exec, -1")
for d in range(4):
    for i in range(3):
        c = "0" if d == 0 else f"v{32+i}"
        e(f"  v_dot2_f32_bf16 v{32+i}, v{16+4*i+d}, v{8+d}, {c}")
e("  s_nop 0")
for dp in ["quad_perm:[1,0,3,2]", "quad_perm:[2,3,0,1]", "row_half_mirror"]:
    for i in range(3):
        e(f"  v_add_f32_dpp v{32+i}, v{32+i}, v{32+i} {dp} {DPPX}")
e("  s_mov_b64 exec, s[28:29]")
e("  ds_write2_b32 v41, v32, v33 offset0:0 offset1:12")
e("  ds_write_b32 v41, v34 offset:96")
e("  s_mov_b64 exec, 15")
e("  s_waitcnt lgkmcnt(0)")
bar("A: row sums in LDS")
stamp(3)
bar("B: key store issued")
e("  s_waitcnt vmcnt(0)")
stamp(9)
e("  global_load_dword v57, v55, s[18:19]")
e("  s_mov_b32 exec_lo, -1")
e("  s_movk_i32 exec_hi, 0x3ff")
e("  global_load_dword v48, v42, s[12:13]")
cm("---- residual copy from the registers: out = x + x*0 for every row but the routed one")
e("  s_mov_b64 exec, -1")
e("  s_add_u32 s24, s33, 1")
e("  s_mul_i32 s24, s24, 4668")
e("  s_lshr_b32 s24, s24, 8")
e("  s_and_b32 s25, s20, 255")
e("  s_sub_u32 s24, s24, s25             ; rows this router stores (the next one starts there)")
e("  s_cmp_eq_u32 s33, 13")
e("  s_cselect_b32 s24, 19, s24")
e("  s_mov_b32 s25, 0x0000ffff")
e("  s_cmp_eq_u32 s24, 19")
e("  s_cselect_b32 s24, 0x00ffffff, s25")
e("  v_mul_u32_u24 v34, 3, v2")
e(f"  v_mov_b32 v35, {L_WIN}")
e("  s_mov_b32 s30, 0xffff0000")
e("  s_mov_b32 s31, 0x07060302")
def conv(lo, hi):
    for d in range(lo, hi):
        e(f"  v_lshlrev_b32 v32, 16, v{d}")
        e(f"  v_and_b32 v33, s30, v{d}")
        e("  v_fma_f32 v32, v32, 0, v32")
        e("  v_fma_f32 v33, v33, 0, v33")
        e(f"  v_perm_b32 v{d}, v33, v32, s31")
e("  s_waitcnt vmcnt(0)")
stamp(8)
bar("C: this router's reads are done")
if opts["rcv"] == 1: conv(16, 28)
bar("D: routed row known")
stamp(4)
e("  ds_read_b32 v35, v35")
if opts["rcv"] == 2: conv(16, 28)
e("  s_waitcnt lgkmcnt(0)")
e("  v_sub_u32 v35, v35, v34")
for i in range(3):
    e(f"  v_cmp_ne_u32 vcc, {i}, v35")
    e(f"  s_and_b32 vcc_hi, vcc_hi, s{24 if i == 0 else 25}")
    e("  s_mov_b64 exec, vcc")
    if not opts["nocopy"]: e(f"  global_store_dwordx4 v5, v[{16+4*i}:{19+4*i}], s[14:15] offset:{1152*i} sc1")
    if i < 2: e("  s_mov_b64 exec, -1")
stamp(6)
if want(7):
    e("  s_waitcnt vmcnt(0)"); stamp(7)
fin()
e("L_w9:")
e(f"  s_cmp_ge_u32 s2, {NWG}")
e("  s_cbranch_scc1 L_end")
e(f"  v_mov_b32 v20, {EOFF:#x}")
e("  s_setprio 3")
e(f"  s_mov_b32 s40, {LCG_A}")
e("  s_waitcnt lgkmcnt(0)")
e("  global_load_dword v20, v20, s[18:19] sc1   ; epoch")
key_addrs()
e(f"  s_cmp_ge_u32 s2, {NR}")
e("  s_cbranch_scc1 L_fpoll")
role[0] = "rw9"
cm("---- router wave 9: key = orderable(bf16 r)<<16 | (2047-row), max over the 19 rows")
first_row()
e("  s_mul_i32 s22, s21, 14")
e("  s_add_u32 s22, s22, s33")
e("  s_lshl_b32 s22, s22, 6")
e(f"  s_add_u32 s22, s22, {KOFF:#x}")
e("  v_mov_b32 v6, s22")
e("  global_load_dword v30, v6, s[18:19] sc1")
e("  v_and_b32 v42, 31, v0")
e("  v_mul_u32_u24 v43, 48, v42")
e("  v_cmp_gt_u32 s[46:47], 19, v42")
e("  s_sub_u32 s22, 2047, s20")
e("  v_sub_u32 v42, s22, v42")
e("  v_mov_b32 v34, 0")
e("  s_brev_b32 s41, 1")
e("  s_waitcnt vmcnt(1)")
e("  v_mul_lo_u32 v20, v20, s40")
e(f"  v_add_u32 v35, {LCG_C}, v20        ; tag")
e("  s_mov_b64 exec, s[46:47]")
bar("A")
stamp(3)
e("  ds_read_b128 v[36:39], v43")
e("  ds_read_b128 v[48:51], v43 offset:16")
e("  ds_read_b32 v52, v43 offset:32")
e("  s_waitcnt lgkmcnt(2)")
e("  v_pk_add_f32 v[36:37], v[36:37], v[38:39]")
e("  s_waitcnt lgkmcnt(1)")
e("  v_pk_add_f32 v[48:49], v[48:49], v[50:51]")
e("  v_pk_add_f32 v[36:37], v[36:37], v[48:49]")
e("  v_add_f32 v36, v36, v37")
e("  s_waitcnt lgkmcnt(0)")
e("  v_add_f32 v36, v36, v52")
e("  v_cmp_o_f32 vcc, v36, v36")
e("  v_cvt_pk_bf16_f32 v36, 0, v36       ; bf16(r)<<16")
e("  v_ashrrev_i32 v37, 31, v36")
e("  v_lshl_or_b32 v37, v37, 16, s41")
e("  v_xor_b32 v36, v36, v37")
e("  v_cndmask_b32 v36, 0, v36, vcc")
e("  v_or_b32 v34, v36, v42")
e("  s_mov_b64 exec, -1")
for k_, d in enumerate(["quad_perm:[1,0,3,2] row_mask:0xf", "quad_perm:[2,3,0,1] row_mask:0xf", "row_half_mirror row_mask:0xf",
          "row_mirror row_mask:0xf", "row_bcast:15 row_mask:0xa"]):
    e("  s_nop 0" if k_ == 0 else "  s_nop 1")
    e(f"  v_max_u32_dpp v34, v34, v34 {d} bank_mask:0xf")
e("  s_mov_b32 exec_lo, s41")
e("  s_mov_b32 exec_hi, 0")
e("  global_store_dwordx2 v6, v[34:35], s[18:19] sc1")
stamp(4)
bar("B")
e("  s_mov_b64 exec, -1")
bar("C")
key_wait("rp", 35)
e("  s_sub_u32 s25, s25, s20")
e("  v_mov_b32 v8, s25")
e("  ds_write_b32 v9, v8")
e("  s_waitcnt lgkmcnt(0)")
bar("D")
fin()
role[0] = "fp"
cm("---- FFN wave 9: wait for all 112 keys, fetch x[idx] into LDS; in reducing WGs it also finishes the outputs")
e("L_fpoll:")
e("  v_lshlrev_b32 v7, 4, v0")
e("  s_mov_b32 m0, 0")
roles()
e("  s_mul_i32 s28, s51, 10923")
e("  s_lshr_b32 s28, s28, 16             ; block = j/6")
for j_ in range(64): assert (j_*10923) >> 16 == j_//6
e("  s_mul_i32 s29, s28, 6")
e("  s_sub_u32 s29, s51, s29")
e("  s_lshr_b32 s30, s29, 1              ; qd")
e("  s_and_b32 s29, s29, 1")
e("  s_lshl_b32 s27, s28, 7")
e("  s_lshl_b32 s29, s29, 6")
e("  s_add_u32 s27, s27, s29")
e("  s_mul_i32 s29, s30, 6")
e("  s_add_u32 s27, s27, s29")
e("  s_movk_i32 s48, 0x7777")
e("  s_cmp_eq_u32 s30, 2")
e("  s_cselect_b32 s48, 0x3333, s48")
e("  s_mov_b32 s49, 0")
e("  v_and_b32 v49, 15, v0")
e("  v_lshrrev_b32 v50, 2, v49")
e("  v_lshlrev_b32 v50, 4, v50")
e("  v_and_b32 v51, 3, v49")
e("  v_lshl_add_u32 v50, v51, 1, v50")
e("  v_add_u32 v50, s27, v50")
e("  v_mul_u32_u24 v54, 48, v49")
e(f"  v_add_u32 v54, {L_RED}, v54")
if XB: bar("S")
e("  s_waitcnt vmcnt(0)")
e("  v_mul_lo_u32 v20, v20, s40")
e(f"  v_add_u32 v20, {LCG_C}, v20        ; tag")
e("  ds_write_b32 v9, v20")
e("  s_waitcnt lgkmcnt(0)")
bar("P0")
stamp(1)
key_wait("fp", 20)
e("  s_mul_i32 s25, s25, 1152")
e("  v_add_u32 v5, s25, v7")
e("  global_load_lds_dwordx4 v5, s[4:5]")
e("  s_mov_b64 exec, 0xff")
e("  global_load_lds_dwordx4 v5, s[4:5] offset:1024")
bar("X1")
is_red()
e("  s_waitcnt vmcnt(0)")
stamp(3)
bar("X2")
e("  s_cbranch_scc1 L_fin")
if STAMP or ENC.startswith("fp:"): bar("H (diagnostic)")
fin()
e("L_fin:")
e("  s_setprio 0")
bar("H")
e("  s_mov_b64 exec, s[48:49]")
e("  ds_read_u16 v51, v50")
e("  s_and_b32 s27, s26, 0xffff0000")
e("  s_ashr_i32 s28, s27, 31")
e("  s_not_b32 s28, s28")
e("  s_or_b32 s28, s28, 0x80000000")
e("  s_xor_b32 s27, s27, s28")
e("  s_and_b32 s27, s27, 0xffff0000")
bar("Q")
e("  v_add_u32 v50, s25, v50")
e("  v_mov_b32 v52, 0xbfb8aa3b")
e("  v_mul_f32 v52, s27, v52")
e("  v_exp_f32 v52, v52")
e("  s_nop 0")
e("  v_add_f32 v52, 1.0, v52")
e("  v_rcp_f32 v52, v52")
e("  s_nop 0")
e("  v_cvt_pk_bf16_f32 v52, 0, v52")
e("  s_waitcnt lgkmcnt(0)")
e("  v_lshlrev_b32 v51, 16, v51")
e("  v_fma_f32 v51, v51, 0, v51          ; x + x*0")
bar("E: nine sums per column in LDS")
stamp(7)
e("  ds_read_b128 v[32:35], v54")
e("  ds_read_b128 v[36:39], v54 offset:16")
e("  ds_read_b32 v48, v54 offset:32")
e("  s_waitcnt lgkmcnt(2)")
e("  v_pk_add_f32 v[32:33], v[32:33], v[34:35]")
e("  s_waitcnt lgkmcnt(1)")
e("  v_pk_add_f32 v[36:37], v[36:37], v[38:39]")
e("  v_pk_add_f32 v[32:33], v[32:33], v[36:37]")
e("  v_add_f32 v32, v32, v33")
e("  s_waitcnt lgkmcnt(0)")
e("  v_add_f32 v32, v32, v48")
e("  v_cvt_pk_bf16_f32 v32, 0, v32       ; y")
e("  v_mul_f32 v32, v32, v52")
e("  v_cvt_pk_bf16_f32 v32, 0, v32       ; y*sigmoid(r)")
e("  v_add_f32 v32, v51, v32")
e("  v_cvt_pk_bf16_f32 v32, v32, v32")
e("  global_store_short v50, v32, s[14:15]")
stamp(8)
if ENC:
    e("L_flush:")
    e("  s_cmp_eq_u32 s78, 0")
    e("  s_cbranch_scc1 L_end")
    if opts["encwg"] >= 0:
        e(f"  s_cmp_lg_u32 s2, {opts['encwg']}")
        e("  s_cbranch_scc1 L_end")
    e("  s_add_u32 s78, s78, 3000")
    e("L_spin:")
    e("  s_memrealtime s[58:59]")
    e("  s_waitcnt lgkmcnt(0)")
    e("  s_sub_u32 s58, s58, s78")
    e("  s_cmp_lt_i32 s58, 0")
    e("  s_cbranch_scc1 L_spin")
if STAMP:
    e("L_flush:")
    e("  s_mov_b64 exec, -1")
    e("  s_sleep 40")
    e("  s_mov_b32 s60, s76")
    e("  s_mul_i32 s56, s2, 10")
    e("  s_add_u32 s56, s56, s3")
    e("  s_lshl_b32 s56, s56, 6")
    e("  s_add_u32 s56, s56, 0x100000")
    e("  s_getreg_b32 s75, hwreg(HW_REG_XCC_ID)")
    e("  s_waitcnt vmcnt(0)")
    e("  v_mov_b32 v120, s56")
    for i in range(16): e(f"  v_mov_b32 v{100+i}, s{60+i}")
    e("  s_mov_b64 exec, 1")
    for i in range(4): e(f"  global_store_dwordx4 v120, v[{100+4*i}:{103+4*i}], s[18:19] offset:{16*i}")
e("L_end:")
e("  s_endpgm")
e("L_codeend:")
e('.section .rodata,"a"')
e(".p2align 6")
e(f".amdhsa_kernel {NAME}_kernel")
e(f"  .amdhsa_next_free_vgpr {NVG}")
e("  .amdhsa_next_free_sgpr 80")
e(f"  .amdhsa_accum_offset {NVG}")
e("  .amdhsa_group_segment_fixed_size 0")
e("  .amdhsa_kernarg_size 64")
e("  .amdhsa_user_sgpr_count 2")
e("  .amdhsa_user_sgpr_kernarg_segment_ptr 1")
e("  .amdhsa_system_sgpr_workgroup_id_x 1")
e("  .amdhsa_float_denorm_mode_32 3")
e(".end_amdhsa_kernel")
print("\n".join(out))
```

```python
import sys, subprocess, re
gen, sel, stat = sys.argv[1], sys.argv[2], sys.argv[3]
src = subprocess.run(["python3", gen, f"enc={sel}"] + sys.argv[4:], capture_output=True, text=True); assert src.returncode == 0, src.stderr
s = src.stdout
s = s.replace("  s_mov_b32 s78, 0\n", "  s_mov_b32 s78, 0\n  s_memrealtime s[76:77]\n", 1)
i = s.index("L_flush:"); j = s.index("L_end:")
o = []; e = o.append
e("L_flush:")
e("  s_mov_b64 exec, -1")
e("  s_cmp_eq_u32 s3, 8")
e("  s_cbranch_scc1 L_end")
e("  s_waitcnt vmcnt(0) lgkmcnt(0)")
if sel == "end":
    e("  s_memrealtime s[78:79]"); e("  s_waitcnt lgkmcnt(0)")
if stat.startswith("x"):
    e("  s_getreg_b32 s75, hwreg(HW_REG_XCC_ID)")
    e("  s_and_b32 s75, s75, 15")
    e(f"  s_cmp_eq_u32 s75, {int(stat[1:])}")
    e("  s_cselect_b32 s78, s78, 0")
e("  s_mul_i32 s56, s2, 9")
e("  s_min_u32 s74, s3, 8")
e("  s_add_u32 s56, s56, s74")
e("  s_lshl_b32 s74, s56, 3")
e("  s_add_u32 s74, s74, 0x100000")
e("  v_mov_b32 v1, s74")
e("  v_mov_b32 v2, s76")
e("  v_mov_b32 v3, s78")
e("  s_add_u32 s73, s76, 1200")
e("L_w0:")
e("  s_sleep 8")
e("  s_memrealtime s[58:59]"); e("  s_waitcnt lgkmcnt(0)"); e("  s_sub_u32 s58, s58, s73"); e("  s_cmp_lt_i32 s58, 0"); e("  s_cbranch_scc1 L_w0")
e("  s_mov_b64 exec, 1")
e("  global_store_dwordx2 v1, v[2:3], s[18:19] sc1")
e("  s_cmp_lg_u32 s56, 0")
e("  s_cbranch_scc1 L_end")
e("  s_mov_b64 exec, -1")
e("  s_add_u32 s78, s76, 2500")
e("L_w1:")
e("  s_memrealtime s[58:59]"); e("  s_waitcnt lgkmcnt(0)"); e("  s_sub_u32 s58, s58, s78"); e("  s_cmp_lt_i32 s58, 0"); e("  s_cbranch_scc1 L_w1")
e("  v_lshlrev_b32 v1, 3, v0")
e("  v_add_u32 v1, 0x100000, v1")
e("  s_sub_u32 s74, s76, 1000            ; reference")
e("  v_mov_b32 v6, -1")
e(f"  v_mov_b32 v7, {-1 if stat == 'min' else 0}")
e("  s_mov_b32 s73, 36")
e("L_ag:")
e("  global_load_dwordx2 v[2:3], v1, s[18:19] sc1")
e("  v_add_u32 v1, 512, v1")
e("  s_waitcnt vmcnt(0)")
e("  v_cmp_ne_u32 vcc, 0, v3")
e("  v_subrev_u32 v2, s74, v2")
e("  v_subrev_u32 v3, s74, v3")
e("  v_min_u32 v6, v6, v2")
e(f"  v_cndmask_b32 v3, {-1 if stat == 'min' else 0}, v3, vcc")
e(f"  v_{'min' if stat == 'min' else 'max'}_u32 v7, v7, v3")
e("  s_sub_u32 s73, s73, 1")
e("  s_cmp_lg_u32 s73, 0")
e("  s_cbranch_scc1 L_ag")
for d in ["quad_perm:[1,0,3,2] row_mask:0xf", "quad_perm:[2,3,0,1] row_mask:0xf", "row_half_mirror row_mask:0xf", "row_mirror row_mask:0xf", "row_bcast:15 row_mask:0xa", "row_bcast:31 row_mask:0xc"]:
    e("  s_nop 1")
    e(f"  v_min_u32_dpp v6, v6, v6 {d} bank_mask:0xf")
    e(f"  v_{'min' if stat == 'min' else 'max'}_u32_dpp v7, v7, v7 {d} bank_mask:0xf")
e("  s_nop 1")
e("  v_readlane_b32 s72, v6, 63")
e("  v_readlane_b32 s73, v7, 63")
e("  s_sub_u32 s73, s73, s72")
e("  s_min_u32 s73, s73, 2000")
e("  s_mul_i32 s73, s73, 10")
e("  s_add_u32 s78, s76, 4000")
e("  s_add_u32 s78, s78, s73")
e("L_w2:")
e("  s_memrealtime s[58:59]"); e("  s_waitcnt lgkmcnt(0)"); e("  s_sub_u32 s58, s58, s78"); e("  s_cmp_lt_i32 s58, 0"); e("  s_cbranch_scc1 L_w2")
print(s[:i] + "\n".join(o) + "\n" + s[j:])
```

```python
import sys, subprocess, re
gen, sel, stat = sys.argv[1], sys.argv[2], sys.argv[3]
src = subprocess.run(["python3", gen, f"enc={sel}"] + sys.argv[4:], capture_output=True, text=True); assert src.returncode == 0, src.stderr
s = src.stdout
s = s.replace("  s_mov_b32 s78, 0\n", "  s_mov_b32 s78, 0\n  s_memrealtime s[76:77]\n", 1)
i = s.index("L_flush:"); j = s.index("L_end:")
o = []; e = o.append
e("L_flush:")
e("  s_mov_b64 exec, -1")
e("  s_cmp_eq_u32 s3, 8")
e("  s_cbranch_scc1 L_end")
e("  s_waitcnt vmcnt(0) lgkmcnt(0)")
if sel == "end":
    e("  s_memrealtime s[78:79]"); e("  s_waitcnt lgkmcnt(0)")
if stat.startswith("g"):
    e("  s_and_b32 s75, s2, 7")
    e(f"  s_cmp_eq_u32 s75, {int(stat[1:])}")
    e("  s_cselect_b32 s78, s78, 0")
if stat.startswith("x"):
    e("  s_getreg_b32 s75, hwreg(HW_REG_XCC_ID)")
    e("  s_and_b32 s75, s75, 15")
    e(f"  s_cmp_eq_u32 s75, {int(stat[1:])}")
    e("  s_cselect_b32 s78, s78, 0")
e("  s_mul_i32 s56, s2, 9")
e("  s_min_u32 s74, s3, 8")
e("  s_add_u32 s56, s56, s74")
e("  s_lshl_b32 s74, s56, 3")
e("  s_add_u32 s74, s74, 0x100000")
e("  v_mov_b32 v1, s74")
e("  v_mov_b32 v2, s76")
e("  v_mov_b32 v3, s78")
e("  s_add_u32 s73, s76, 1200")
e("L_w0:")
e("  s_sleep 8")
e("  s_memrealtime s[58:59]"); e("  s_waitcnt lgkmcnt(0)"); e("  s_sub_u32 s58, s58, s73"); e("  s_cmp_lt_i32 s58, 0"); e("  s_cbranch_scc1 L_w0")
e("  s_mov_b64 exec, 1")
e("  global_store_dwordx2 v1, v[2:3], s[18:19] sc1")
e("  s_cmp_lg_u32 s56, 0")
e("  s_cbranch_scc1 L_end")
e("  s_mov_b64 exec, -1")
e("  s_add_u32 s78, s76, 2500")
e("L_w1:")
e("  s_memrealtime s[58:59]"); e("  s_waitcnt lgkmcnt(0)"); e("  s_sub_u32 s58, s58, s78"); e("  s_cmp_lt_i32 s58, 0"); e("  s_cbranch_scc1 L_w1")
e("  v_lshlrev_b32 v1, 3, v0")
e("  v_add_u32 v1, 0x100000, v1")
e("  s_sub_u32 s74, s76, 1000            ; reference")
e("  v_mov_b32 v6, -1")
e(f"  v_mov_b32 v7, {-1 if stat == 'min' else 0}")
e("  s_mov_b32 s73, 36")
e("L_ag:")
e("  global_load_dwordx2 v[2:3], v1, s[18:19] sc1")
e("  v_add_u32 v1, 512, v1")
e("  s_waitcnt vmcnt(0)")
e("  v_cmp_ne_u32 vcc, 0, v3")
e("  v_subrev_u32 v2, s74, v2")
e("  v_subrev_u32 v3, s74, v3")
e("  v_min_u32 v6, v6, v2")
e(f"  v_cndmask_b32 v3, {-1 if stat == 'min' else 0}, v3, vcc")
e(f"  v_{'min' if stat == 'min' else 'max'}_u32 v7, v7, v3")
e("  s_sub_u32 s73, s73, 1")
e("  s_cmp_lg_u32 s73, 0")
e("  s_cbranch_scc1 L_ag")
for d in ["quad_perm:[1,0,3,2] row_mask:0xf", "quad_perm:[2,3,0,1] row_mask:0xf", "row_half_mirror row_mask:0xf", "row_mirror row_mask:0xf", "row_bcast:15 row_mask:0xa", "row_bcast:31 row_mask:0xc"]:
    e("  s_nop 1")
    e(f"  v_min_u32_dpp v6, v6, v6 {d} bank_mask:0xf")
    e(f"  v_{'min' if stat == 'min' else 'max'}_u32_dpp v7, v7, v7 {d} bank_mask:0xf")
e("  s_nop 1")
e("  v_readlane_b32 s72, v6, 63")
e("  v_readlane_b32 s73, v7, 63")
e("  s_sub_u32 s73, s73, s72")
e("  s_min_u32 s73, s73, 2000")
e("  s_mul_i32 s73, s73, 10")
e("  s_add_u32 s78, s76, 4000")
e("  s_add_u32 s78, s78, s73")
e("L_w2:")
e("  s_memrealtime s[58:59]"); e("  s_waitcnt lgkmcnt(0)"); e("  s_sub_u32 s58, s58, s78"); e("  s_cmp_lt_i32 s58, 0"); e("  s_cbranch_scc1 L_w2")
print(s[:i] + "\n".join(o) + "\n" + s[j:])
```

```python
import sys, subprocess, re
gen, sel, stat = sys.argv[1], sys.argv[2], sys.argv[3]
src = subprocess.run(["python3", gen, f"enc={sel}"] + sys.argv[4:], capture_output=True, text=True); assert src.returncode == 0, src.stderr
s = src.stdout
DIFF = any(a.startswith("enc2=") for a in sys.argv)
s = s.replace("  s_mov_b32 s78, 0\n", "  s_mov_b32 s78, 0\n  s_mov_b32 s71, 0\n  s_memrealtime s[76:77]\n", 1)
i = s.index("L_flush:"); j = s.index("L_end:")
o = []; e = o.append
e("L_flush:")
e("  s_mov_b64 exec, -1")
e("  s_cmp_eq_u32 s3, 8")
e("  s_cbranch_scc1 L_end")
e("  s_waitcnt vmcnt(0) lgkmcnt(0)")
if sel == "end":
    e("  s_memrealtime s[78:79]"); e("  s_waitcnt lgkmcnt(0)")
if stat.startswith("g"):
    e("  s_and_b32 s75, s2, 7")
    e(f"  s_cmp_eq_u32 s75, {int(stat[1:])}")
    e("  s_cselect_b32 s78, s78, 0")
if stat.startswith("x"):
    e("  s_getreg_b32 s75, hwreg(HW_REG_XCC_ID)")
    e("  s_and_b32 s75, s75, 15")
    e(f"  s_cmp_eq_u32 s75, {int(stat[1:])}")
    e("  s_cselect_b32 s78, s78, 0")
e("  s_mul_i32 s56, s2, 9")
e("  s_min_u32 s74, s3, 8")
e("  s_add_u32 s56, s56, s74")
e("  s_lshl_b32 s74, s56, 3")
e("  s_add_u32 s74, s74, 0x100000")
e("  v_mov_b32 v1, s74")
e("  v_mov_b32 v2, s71" if DIFF else "  v_mov_b32 v2, s76")
e("  v_mov_b32 v3, s78")
e("  s_add_u32 s73, s76, 1200")
e("L_w0:")
e("  s_sleep 8")
e("  s_memrealtime s[58:59]"); e("  s_waitcnt lgkmcnt(0)"); e("  s_sub_u32 s58, s58, s73"); e("  s_cmp_lt_i32 s58, 0"); e("  s_cbranch_scc1 L_w0")
e("  s_mov_b64 exec, 1")
e("  global_store_dwordx2 v1, v[2:3], s[18:19] sc1")
e("  s_cmp_lg_u32 s56, 0")
e("  s_cbranch_scc1 L_end")
e("  s_mov_b64 exec, -1")
e("  s_add_u32 s78, s76, 2500")
e("L_w1:")
e("  s_memrealtime s[58:59]"); e("  s_waitcnt lgkmcnt(0)"); e("  s_sub_u32 s58, s58, s78"); e("  s_cmp_lt_i32 s58, 0"); e("  s_cbranch_scc1 L_w1")
e("  v_lshlrev_b32 v1, 3, v0")
e("  v_add_u32 v1, 0x100000, v1")
e("  s_sub_u32 s74, s76, 1000            ; reference")
e("  v_mov_b32 v6, 0" if DIFF else "  v_mov_b32 v6, -1")
e(f"  v_mov_b32 v7, {-1 if stat == 'min' else 0}")
e("  s_mov_b32 s73, 36")
e("L_ag:")
e("  global_load_dwordx2 v[2:3], v1, s[18:19] sc1")
e("  v_add_u32 v1, 512, v1")
e("  s_waitcnt vmcnt(0)")
e("  v_cmp_ne_u32 vcc, 0, v2")
e("  v_subrev_u32 v2, s74, v2")
e("  s_nop 1")
e("  v_cndmask_b32 v2, 0, v2, vcc")
e("  v_cmp_ne_u32 vcc, 0, v3")
e("  v_subrev_u32 v3, s74, v3")
e("  v_max_u32 v6, v6, v2" if DIFF else "  v_min_u32 v6, v6, v2")
e(f"  v_cndmask_b32 v3, {-1 if stat == 'min' else 0}, v3, vcc")
e(f"  v_{'min' if stat == 'min' else 'max'}_u32 v7, v7, v3")
e("  s_sub_u32 s73, s73, 1")
e("  s_cmp_lg_u32 s73, 0")
e("  s_cbranch_scc1 L_ag")
for d in ["quad_perm:[1,0,3,2] row_mask:0xf", "quad_perm:[2,3,0,1] row_mask:0xf", "row_half_mirror row_mask:0xf", "row_mirror row_mask:0xf", "row_bcast:15 row_mask:0xa", "row_bcast:31 row_mask:0xc"]:
    e("  s_nop 1")
    e(f"  v_{'max' if DIFF else 'min'}_u32_dpp v6, v6, v6 {d} bank_mask:0xf")
    e(f"  v_{'min' if stat == 'min' else 'max'}_u32_dpp v7, v7, v7 {d} bank_mask:0xf")
e("  s_nop 1")
e("  v_readlane_b32 s72, v6, 63")
e("  v_readlane_b32 s73, v7, 63")
e("  s_sub_u32 s73, s73, s72")
if DIFF: e("  s_add_u32 s73, s73, 100")
e("  s_min_u32 s73, s73, 2000")
e("  s_mul_i32 s73, s73, 10")
e("  s_add_u32 s78, s76, 4000")
e("  s_add_u32 s78, s78, s73")
e("L_w2:")
e("  s_memrealtime s[58:59]"); e("  s_waitcnt lgkmcnt(0)"); e("  s_sub_u32 s58, s58, s78"); e("  s_cmp_lt_i32 s58, 0"); e("  s_cbranch_scc1 L_w2")
print(s[:i] + "\n".join(o) + "\n" + s[j:])
```

```python
import sys, subprocess, re
gen, sel, stat = sys.argv[1], sys.argv[2], sys.argv[3]
flt = stat
if stat.endswith("min") and stat != "min": flt = stat[:-3]; stat = "min"
src = subprocess.run(["python3", gen, f"enc={sel}"] + sys.argv[4:], capture_output=True, text=True); assert src.returncode == 0, src.stderr
s = src.stdout
DIFF = any(a.startswith("enc2=") for a in sys.argv)
s = s.replace("  s_mov_b32 s78, 0\n", "  s_mov_b32 s78, 0\n  s_mov_b32 s71, 0\n  s_memrealtime s[76:77]\n", 1)
i = s.index("L_flush:"); j = s.index("L_end:")
o = []; e = o.append
e("L_flush:")
e("  s_mov_b64 exec, -1")
e("  s_cmp_eq_u32 s3, 8")
e("  s_cbranch_scc1 L_end")
e("  s_waitcnt vmcnt(0) lgkmcnt(0)")
if sel == "end":
    e("  s_memrealtime s[78:79]"); e("  s_waitcnt lgkmcnt(0)")
if flt.startswith("w"):
    e(f"  s_cmp_eq_u32 s2, {int(flt[1:])}")
    e("  s_cselect_b32 s78, s78, 0")
if flt.startswith("g"):
    e("  s_and_b32 s75, s2, 7")
    e(f"  s_cmp_eq_u32 s75, {int(flt[1:])}")
    e("  s_cselect_b32 s78, s78, 0")
if stat.startswith("x"):
    e("  s_getreg_b32 s75, hwreg(HW_REG_XCC_ID)")
    e("  s_and_b32 s75, s75, 15")
    e(f"  s_cmp_eq_u32 s75, {int(stat[1:])}")
    e("  s_cselect_b32 s78, s78, 0")
e("  s_mul_i32 s56, s2, 9")
e("  s_min_u32 s74, s3, 8")
e("  s_add_u32 s56, s56, s74")
e("  s_lshl_b32 s74, s56, 3")
e("  s_add_u32 s74, s74, 0x100000")
e("  v_mov_b32 v1, s74")
e("  v_mov_b32 v2, s71" if DIFF else "  v_mov_b32 v2, s76")
e("  v_mov_b32 v3, s78")
e("  s_add_u32 s73, s76, 1200")
e("L_w0:")
e("  s_sleep 8")
e("  s_memrealtime s[58:59]"); e("  s_waitcnt lgkmcnt(0)"); e("  s_sub_u32 s58, s58, s73"); e("  s_cmp_lt_i32 s58, 0"); e("  s_cbranch_scc1 L_w0")
e("  s_mov_b64 exec, 1")
e("  global_store_dwordx2 v1, v[2:3], s[18:19] sc1")
e("  s_cmp_lg_u32 s56, 0")
e("  s_cbranch_scc1 L_end")
e("  s_mov_b64 exec, -1")
e("  s_add_u32 s78, s76, 2500")
e("L_w1:")
e("  s_memrealtime s[58:59]"); e("  s_waitcnt lgkmcnt(0)"); e("  s_sub_u32 s58, s58, s78"); e("  s_cmp_lt_i32 s58, 0"); e("  s_cbranch_scc1 L_w1")
e("  v_lshlrev_b32 v1, 3, v0")
e("  v_add_u32 v1, 0x100000, v1")
e("  s_sub_u32 s74, s76, 1000            ; reference")
e("  v_mov_b32 v6, 0" if DIFF else "  v_mov_b32 v6, -1")
e(f"  v_mov_b32 v7, {-1 if stat == 'min' else 0}")
e("  s_mov_b32 s73, 36")
e("L_ag:")
e("  global_load_dwordx2 v[2:3], v1, s[18:19] sc1")
e("  v_add_u32 v1, 512, v1")
e("  s_waitcnt vmcnt(0)")
e("  v_cmp_ne_u32 vcc, 0, v2")
e("  v_subrev_u32 v2, s74, v2")
e("  s_nop 1")
e("  v_cndmask_b32 v2, 0, v2, vcc")
e("  v_cmp_ne_u32 vcc, 0, v3")
e("  v_subrev_u32 v3, s74, v3")
e("  v_max_u32 v6, v6, v2" if DIFF else "  v_min_u32 v6, v6, v2")
e(f"  v_cndmask_b32 v3, {-1 if stat == 'min' else 0}, v3, vcc")
e(f"  v_{'min' if stat == 'min' else 'max'}_u32 v7, v7, v3")
e("  s_sub_u32 s73, s73, 1")
e("  s_cmp_lg_u32 s73, 0")
e("  s_cbranch_scc1 L_ag")
for d in ["quad_perm:[1,0,3,2] row_mask:0xf", "quad_perm:[2,3,0,1] row_mask:0xf", "row_half_mirror row_mask:0xf", "row_mirror row_mask:0xf", "row_bcast:15 row_mask:0xa", "row_bcast:31 row_mask:0xc"]:
    e("  s_nop 1")
    e(f"  v_{'max' if DIFF else 'min'}_u32_dpp v6, v6, v6 {d} bank_mask:0xf")
    e(f"  v_{'min' if stat == 'min' else 'max'}_u32_dpp v7, v7, v7 {d} bank_mask:0xf")
e("  s_nop 1")
e("  v_readlane_b32 s72, v6, 63")
e("  v_readlane_b32 s73, v7, 63")
e("  s_sub_u32 s73, s73, s72")
if DIFF: e("  s_add_u32 s73, s73, 100")
e("  s_min_u32 s73, s73, 2000")
e("  s_mul_i32 s73, s73, 10")
e("  s_add_u32 s78, s76, 4000")
e("  s_add_u32 s78, s78, s73")
e("L_w2:")
e("  s_memrealtime s[58:59]"); e("  s_waitcnt lgkmcnt(0)"); e("  s_sub_u32 s58, s58, s78"); e("  s_cmp_lt_i32 s58, 0"); e("  s_cbranch_scc1 L_w2")
print(s[:i] + "\n".join(o) + "\n" + s[j:])
```

```python
import sys
opts = dict(stamp=0, enc="", enc2="", encwg=-1, W1=4, W2=5, p0=12, xb=8, gs=6, dsplit=6, ew=20, rs=0, bg=7, nocopy=0, rcv=4, p00=12, dly=0, tw=2, tn=0, ta=0, tp=0, nw0=0, ps=0, rcd=0)
for a in sys.argv[1:]:
    k, _, v = a.partition("=")
    if k not in opts: raise SystemExit("bad opt " + k)
    opts[k] = int(v) if isinstance(opts[k], int) else v.replace("+", " ")
STAMP = opts["stamp"]; ENC = opts["enc"]
NAME = "standalone__moe_arch_mod__prompt"
NR, NF, NRED = 112, 144, 54
NWG = NR + NF
SPIN = 0x40000
KOFF = 0x80000
EOFF = 0xA0000
LCG_A, LCG_C = 1664525, 1013904223
L_PART, L_WIN, L_RED = 2048, 4352, 5120
out = []
e = out.append
role = ["none"]
def stamp(slot):
    if ENC:
        if ENC == f"{role[0]}:{slot}":
            e("  s_memrealtime s[58:59]"); e("  s_waitcnt lgkmcnt(0)"); e("  s_mov_b32 s78, s58")
        if opts["enc2"] == f"{role[0]}:{slot}":
            e("  s_memrealtime s[58:59]"); e("  s_waitcnt lgkmcnt(0)"); e("  s_mov_b32 s71, s58")
        return
    if STAMP:
        e("  s_memrealtime s[58:59]"); e("  s_waitcnt lgkmcnt(0)"); e(f"  s_mov_b32 s{60+slot}, s58")
def want(slot): return STAMP or ENC == f"{role[0]}:{slot}" or opts["enc2"] == f"{role[0]}:{slot}"
def fin():
    if STAMP or ENC: e("  s_branch L_flush")
    else: e("  s_endpgm")
def bar(c): e(f"  s_barrier                           ; {c}")
def cm(c): e(f"; {c}")
DPPX = "row_mask:0xf bank_mask:0xf"
def first_row():
    e("  s_lshr_b32 s33, s2, 3               ; ridx")
    e("  s_mul_i32 s20, s33, 4668")
    e("  s_lshr_b32 s20, s20, 8")
    e("  s_lshl_b32 s23, s21, 8")
    e("  s_add_u32 s20, s20, s23")
st_ = [(r*4668) >> 8 for r in range(14)]
assert st_[13] == 237 and all(st_[r+1]-st_[r] in (18, 19) for r in range(13))
BG = opts["bg"]; RS = opts["rs"]
def roles():
    e(f"  s_sub_u32 s50, s2, {NR+8*RS}")
    e("  s_lshr_b32 s50, s50, 3")
    e("  s_mul_i32 s51, s21, 6")
    e("  s_cmp_ge_u32 s50, 6")
    e("  s_cselect_b32 s51, 42, s51")
    e("  s_add_u32 s51, s51, s50")
    e(f"  s_cmp_eq_u32 s21, {BG}")
    e("  s_cselect_b32 s52, 12, 6")
    e("  s_cmp_lt_u32 s50, s52")
    e("  s_cselect_b32 s51, s51, 63")
def redsetup():
    e("  s_mul_i32 s52, s51, 9")
    e("  s_add_u32 s52, s52, s3")
    e("  s_lshl_b32 s52, s52, 10")
    e("  v_lshl_add_u32 v152, v0, 4, s52")
    e("  v_and_b32 v153, 3, v0")
    e("  v_lshrrev_b32 v154, 4, v0")
    e("  v_lshl_add_u32 v153, v153, 2, v154")
    e("  v_mul_u32_u24 v153, 48, v153")
    e("  s_lshl_b32 s52, s3, 2")
    e(f"  s_add_u32 s52, s52, {L_RED}")
    e("  v_add_u32 v153, s52, v153")
    e(f"  v_mov_b32 v154, {L_WIN}")
def is_red(): e("  s_cmp_lg_u32 s51, 63")
def key_addrs():
    e(f"  s_mov_b32 s22, {KOFF:#x}")
    e("  v_lshl_add_u32 v21, v0, 6, s22")
    e(f"  v_min_u32 v22, {NR-65}, v0")
    e("  v_add_u32 v22, 64, v22")
    e("  v_lshl_add_u32 v22, v22, 6, s22")
    e(f"  v_mov_b32 v9, {L_WIN}")
    e(f"  s_mov_b32 s57, {SPIN}")
def key_wait(tag, vt):
    e(f"L_{tag}_loop:")
    e("  global_load_dwordx2 v[24:25], v21, s[18:19] sc1")
    e("  global_load_dwordx2 v[26:27], v22, s[18:19] sc1")
    e("  s_sub_u32 s57, s57, 1")
    e("  s_cselect_b64 s[36:37], -1, 0")
    e("  s_waitcnt vmcnt(0)")
    e("  v_max_u32 v24, v24, v26")
    e(f"  v_cmp_eq_u32 vcc, v25, v{vt}")
    e(f"  v_cmp_eq_u32 s[42:43], v27, v{vt}")
    e(f"  v_max_u32_dpp v24, v24, v24 quad_perm:[1,0,3,2] {DPPX}")
    e("  s_and_b64 vcc, vcc, s[42:43]")
    e("  s_or_b64 vcc, vcc, s[36:37]")
    e(f"  v_max_u32_dpp v24, v24, v24 quad_perm:[2,3,0,1] {DPPX}")
    e("  s_cmp_eq_u64 vcc, -1")
    e(f"  s_cbranch_scc0 L_{tag}_loop")
    if STAMP: e(f"  s_sub_u32 s72, {SPIN}, s57")
    stamp(2)
    e(f"  v_max_u32_dpp v24, v24, v24 row_half_mirror {DPPX}")
    for d in ["row_mirror row_mask:0xf", "row_bcast:15 row_mask:0xa", "row_bcast:31 row_mask:0xc"]:
        e("  s_nop 1")
        e(f"  v_max_u32_dpp v24, v24, v24 {d} bank_mask:0xf")
    e("  s_nop 0")
    e("  v_readlane_b32 s26, v24, 63")
    e("  s_andn2_b32 s25, 0x7ff, s26         ; idx")

e(f"; @launch grid=({NWG},1,1) block=(640,1,1) lds=8192")
cm("One launch, two roles by workgroup id (id&7 = group that shares lines, for L2 locality only):")
cm("  id <112   routers: 19 rows of x each -> r=x.w_r (bf16) -> best (score,row) key, published as {key,tag} in ws;")
cm("            they then pull weight lines into L2 and finally store their rows (all but the routed one) to out")
cm("  id>=112   FFN: 32 hidden units each. waves 0-3 gate/up, 4-7 down, 9 waits for the keys and fetches x[idx];")
cm("            partial rows go to ws as {3 floats,tag} granules, 54 of these WGs sum them (8-12 columns each)")
cm("tag = LCG(epoch word found in ws); the epoch is advanced once every workgroup has read it")
e('.amdgcn_target "amdgcn-amd-amdhsa--gfx950"')
e(".text")
e(f".globl {NAME}_kernel")
e(".p2align 8")
e(f".type {NAME}_kernel,@function")
e(f"{NAME}_kernel:")
cm("s[4:5]=x s[6:7]=w_r s[8:9]=w_gate s[10:11]=w_up s[12:13]=w_down s[14:15]=out s[16:17]=dbg s[18:19]=ws")
e("  s_load_dwordx16 s[4:19], s[0:1], 0")
if ENC:
    e("  s_mov_b32 s78, 0")
    if ENC == "start":
        e("  s_memrealtime s[58:59]"); e("  s_waitcnt lgkmcnt(0)"); e("  s_mov_b32 s78, s58")
if STAMP:
    e("  s_memrealtime s[76:77]")
    for i in range(0, 16, 2): e(f"  s_mov_b64 s[{60+i}:{61+i}], 0")
if opts["dly"]:
    e("  s_and_b32 s21, s2, 7")
    e("  s_cbranch_scc1 L_nodly")
    e("  s_memrealtime s[54:55]")
    e("  s_waitcnt lgkmcnt(0)")
    e(f"  s_add_u32 s56, s54, {opts['dly']}")
    e("L_dly:")
    e("  s_memrealtime s[54:55]")
    e("  s_waitcnt lgkmcnt(0)")
    e("  s_cmp_lt_u32 s54, s56")
    e("  s_cbranch_scc1 L_dly")
    e("L_nodly:")
e("  v_lshrrev_b32 v1, 6, v0")
e("  v_and_b32 v0, 63, v0")
e("  v_readfirstlane_b32 s3, v1")
e("  v_and_b32 v3, 7, v0                 ; chi")
e("  v_lshrrev_b32 v2, 3, v0             ; g")
e("  s_and_b32 s21, s2, 7                ; group")
e("  s_cmp_eq_u32 s3, 9")
e("  s_cbranch_scc0 L_notw9")
e("  s_getpc_b64 s[44:45]")
e("L_pc:")
e("  v_min_u32 v28, (L_codeend-L_pc-4)/128, v0")
e("  v_lshlrev_b32 v28, 7, v28")
e("  global_load_dword v29, v28, s[44:45]")
e("  s_branch L_w9")
e("L_notw9:")
e(f"  s_cmp_ge_u32 s2, {NR}")
e("  s_cbranch_scc1 L_ffn")
role[0] = "rt"
cm("---- router waves 0-8: wave w owns columns 64w..64w+63, lane (g,chi) rows 3g..3g+2")
e("  s_lshl_b32 s22, s3, 7")
e("  v_lshl_add_u32 v4, v3, 4, s22")
first_row()
e("  s_mul_i32 s23, s20, 1152")
e("  v_mul_u32_u24 v5, 3*1152, v2")
e("  v_add3_u32 v5, v5, v4, s23          ; x off")
e("  s_waitcnt lgkmcnt(0)")
stamp(1)
e("  global_load_dwordx4 v[8:11], v4, s[6:7]")
e("  s_mov_b32 exec_hi, 0x00ffffff")
e("  global_load_dwordx4 v[16:19], v5, s[4:5]")
e("  s_mov_b32 exec_hi, 0x0000ffff")
e("  global_load_dwordx4 v[20:23], v5, s[4:5] offset:1152")
e("  global_load_dwordx4 v[24:27], v5, s[4:5] offset:2304")
e("  s_mov_b32 exec_hi, -1")
e("  s_branch L_rt2")
role[0] = "ffn"
e("L_ffn:")
e(f"  s_cmp_ge_u32 s2, {NWG}")
e("  s_cbranch_scc1 L_end")
e(f"  s_sub_u32 s20, s2, {NR}")
e("  s_lshr_b32 s20, s20, 3")
e("  s_mul_i32 s22, s21, 18")
e("  s_add_u32 s20, s20, s22             ; slice 0..143")
e("  s_cmp_ge_u32 s3, 4")
e("  s_cbranch_scc1 L_dn")
cm("---- gate/up waves: 144 rows each = 9 units of 16 rows; lane (g,chi): rows 2g,2g+1, chi<4 gate / chi>=4 up, 8 columns")
e("  s_movk_i32 s22, 9216")
e("  s_mov_b32 s23, 0")
e("  s_and_b32 s33, s20, 1")
e("  s_lshl_b32 s33, s33, 5")
e("  s_mul_i32 s34, s3, 144")
e("  s_add_u32 s35, s34, s33")
e("  s_mul_i32 s36, s35, s22")
e("  s_lshl_b32 s37, s20, 6")
e("  s_add_u32 s36, s36, s37")
e("  v_mul_u32_u24 v4, 2*9216, v2")
e("  v_and_b32 v5, 3, v0")
e("  v_lshlrev_b32 v5, 4, v5")
e("  v_add3_u32 v4, v4, v5, s36")
e("  v_mov_b32 v5, 0")
e("  s_mov_b32 exec_lo, 0x0f0f0f0f")
e("  s_mov_b32 exec_hi, 0x0f0f0f0f")
e("  s_waitcnt lgkmcnt(0)")
stamp(1)
e("  v_lshl_add_u64 v[4:5], v[4:5], 0, s[8:9]")
e("  s_not_b64 exec, exec")
e("  v_lshl_add_u64 v[4:5], v[4:5], 0, s[10:11]")
e("  s_mov_b64 exec, -1")
ORD = [0, 1, 4, 5, 2, 3, 6, 7, 8]
ORDB = [u ^ 2 if u < 8 else u for u in ORD]
RB = 100; NS = max(opts["W1"], opts["W2"]) + 2
assert RB + 4*NS <= 132
NVG = 156
def ring(i): return RB + 4*(i % NS)
def guload(i):
    e(f"  global_load_dwordx4 v[{ring(i)}:{ring(i)+3}], v[4:5], off")
    if i == 17: return
    if i % 2 == 0: st = 22
    else:
        t = i//2
        dA = (16*(ORD[t+1]-ORD[t]) - 1)*9216; dB = (16*(ORDB[t+1]-ORDB[t]) - 1)*9216
        e(f"  s_mov_b32 s24, {dA & 0xffffffff:#x}")
        if dA != dB:
            e("  s_bitcmp1_b32 s20, 0")
            e(f"  s_cselect_b32 s24, {dB & 0xffffffff:#x}, s24")
        e("  s_ashr_i32 s25, s24, 31")
        st = 24
    e(f"  v_lshl_add_u64 v[4:5], v[4:5], 0, s[{st}:{st+1}]")
def gsetup():
    e("  v_and_b32 v6, 16, v0")
    e("  v_bfe_u32 v7, v0, 3, 1")
    e("  v_lshl_add_u32 v6, v7, 2, v6")
    e("  s_lshl_b32 s34, s34, 1")
    e("  v_add_u32 v6, s34, v6")
    e("  v_lshrrev_b32 v1, 5, v0")
    e("  v_lshlrev_b32 v1, 7, v1")
    e("  v_and_b32 v2, 1, v0")
    e("  v_mul_u32_u24 v92, 0xaaaa, v2")
    e("  v_add_u32 v92, 0x4444, v92")
    e("  v_lshl_add_u32 v2, v2, 6, v1")
    e("  s_lshl_b32 s33, s33, 1")
    e("  v_xor_b32 v2, s33, v2")
    e("  v_add_u32 v2, v2, v6                ; units 0-7")
    e("  v_add_u32 v6, 256, v6               ; unit 8")
    e("  v_and_b32 v1, 3, v0")
    e("  v_bfe_u32 v72, v0, 2, 1")
    e("  v_lshl_add_u32 v1, v1, 1, v72")
    e("  v_mul_u32_u24 v1, 272, v1")
    e("  v_lshl_add_u32 v7, v7, 2, v1")
    e("  v_bfe_u32 v72, v0, 4, 1")
    e("  v_lshl_add_u32 v7, v72, 7, v7")
    e("  s_lshl_b32 s33, s3, 3")
    e(f"  s_add_u32 s33, s33, {L_PART}")
    e("  v_add_u32 v7, s33, v7")
    for r in list(range(80, 92, 2)) + list(range(132, 152, 2)):
        e(f"  v_mov_b64 v[{r}:{r+1}], 0")
    e("  s_mov_b32 s38, 0x00ff00ff")
    e("  s_mov_b32 s39, 0xff00ff00")
    e("  s_mov_b32 s32, 0x0f0f0f0f")
    e("  s_mov_b32 s33, 0x0f0f0f0f")
    e("  s_mov_b32 s34, 0x03030303")
    e("  s_mov_b32 s35, 0x30303030")
    e("  s_mov_b32 s36, 0x0c0c0c0c")
    e("  s_mov_b32 s37, 0xc0c0c0c0")
    roles(); redsetup()
def gperm(k):
    u = ORD[k]
    for c in range(8):
        d = 8 + 8*c + 4*(u >> 2) + ((u >> 1) & 1) + 2*(u & 1)
        e(f"  v_perm_b32 v{d}, v{ring(2*k+1)+(c>>1)}, v{ring(2*k)+(c>>1)}, s{30+(c&1)}")
def wof(i): return opts["W1"] if i < 8 else opts["W2"]
done = 0; permd = 0; setup = False
XB = opts["xb"]
for i in range(18):
    lim = wof(i) - 1
    if i - done > lim:
        if not setup and i >= opts["gs"]: gsetup(); setup = True
        e(f"  s_waitcnt vmcnt({lim})")
        done = i - lim
    if i < opts["tn"] and opts["tw"] - 1 < min(lim, i):
        e("  s_cmp_eq_u32 s21, 0")
        e(f"  s_cbranch_scc1 L_tw{i}")
        e(f"  s_waitcnt vmcnt({opts['tw']-1})")
        e(f"L_tw{i}:")
    while i - NS >= 2*permd:
        assert 2*permd + 2 <= done
        gperm(permd); permd += 1
    guload(i)
    if i == 0:
        e("  s_mov_b32 s30, 0x05040100")
        e("  s_mov_b32 s31, 0x07060302")
    if i + 1 == XB: bar("S: keep the four waves' first-touch loads ahead of the others")
    if opts["p00"] == opts["p0"]:
        if i + 1 == opts["p0"]: bar("P0: key wave may start")
    elif i + 1 in (opts["p0"], opts["p00"]):
        e("  s_cmp_eq_u32 s21, 0")
        e(f"  s_cbranch_scc{int(i + 1 == opts['p0'])} L_p0{i}")
        bar("P0: key wave may start (earlier in the stream for the group that starts last)")
        e(f"L_p0{i}:")
    if i == 17:
        stamp(2)
        bar("X1: x row requested, stream issued")
    if i == 17 or i + 1 - done > wof(i + 1) - 1:
        while 2*permd + 2 <= done:
            gperm(permd); permd += 1
assert setup
while permd < 8:
    e(f"  s_waitcnt vmcnt({18 - 2*permd - 2})")
    gperm(permd); permd += 1
e("  s_mov_b64 exec, s[32:33]")
stamp(3)
bar("X2: x row in LDS")
stamp(4)
e("  ds_read2_b32 v[80:81], v2 offset0:0 offset1:8")
e("  ds_read2_b32 v[82:83], v2 offset0:2 offset1:10")
e("  s_not_b64 exec, s[32:33]")
e("  ds_read2_b32 v[84:85], v2 offset0:0 offset1:8")
e("  ds_read2_b32 v[86:87], v2 offset0:2 offset1:10")
e("  s_mov_b64 exec, s[34:35]")
e("  ds_read_b32 v88, v6")
e("  ds_read_b32 v90, v6 offset:8")
e("  s_mov_b64 exec, s[36:37]")
e("  ds_read_b32 v89, v6")
e("  ds_read_b32 v91, v6 offset:8")
e("  s_mov_b64 exec, -1")
e("  s_waitcnt lgkmcnt(6)")
def p8(c): e(f"  v_perm_b32 v{72+c}, v{ring(17)+(c>>1)}, v{ring(16)+(c>>1)}, s{30+(c&1)}")
for i_ in range(4):
    e(f"  v_smfmac_f32_16x16x64_bf16 v[{132+4*i_}:{135+4*i_}], v[80:83], v[{8+8*i_}:{15+8*i_}], v92")
e("  s_waitcnt vmcnt(0) lgkmcnt(4)")
for i_ in range(4):
    p8(2*i_); p8(2*i_+1)
    e(f"  v_smfmac_f32_16x16x64_bf16 v[{132+4*i_}:{135+4*i_}], v[84:87], v[{40+8*i_}:{47+8*i_}], v92")
e("  s_waitcnt lgkmcnt(0)")
e("  v_smfmac_f32_16x16x64_bf16 v[148:151], v[88:91], v[72:79], v92")
e("  s_mov_b64 exec, s[38:39]")
e("  v_add_f32 v96, v132, v133")
e("  v_add_f32 v97, v136, v137")
e("  v_add_f32 v98, v140, v141")
e("  s_nop 1")
e("  v_add_f32 v99, v144, v145")
is_red()
e("  v_pk_add_f32 v[96:97], v[96:97], v[148:149]")
e("  v_pk_add_f32 v[98:99], v[98:99], v[150:151]")
e("  ds_write2_b32 v7, v96, v97 offset0:0 offset1:8")
e("  ds_write2_b32 v7, v98, v99 offset0:16 offset1:24")
e("  s_waitcnt lgkmcnt(0)")
bar("H: gate/up partial sums in LDS")
stamp(5)
e("  s_cbranch_scc1 L_red")
fin()
role[0] = "dn"
e("L_dn:")
roles(); redsetup()
e("  s_cmp_eq_u32 s3, 8")
e("  s_cbranch_scc1 L_w8")
cm("---- down waves: 128 columns each (wave 7 also the last 64), one-hot sparse A picks the column inside a 16 B chunk")
e("  s_sub_u32 s33, s3, 4")
e("  s_mul_i32 s24, s20, 32*1152")
e("  s_lshl_b32 s25, s33, 8")
e("  s_add_u32 s24, s24, s25")
e("  v_lshrrev_b32 v1, 5, v0")
e("  v_bfe_u32 v2, v0, 4, 1")
e("  v_lshl_add_u32 v1, v1, 3, v2")
e("  v_mul_u32_u24 v4, 1152, v1")
e("  v_and_b32 v2, 15, v0")
e("  v_lshl_add_u32 v4, v2, 4, v4")
e("  s_add_u32 s24, s24, 3456")
e("  v_add_u32 v4, s24, v4")
e("  v_add_u32 v5, 16*1152, v4")
e("  s_mov_b32 s32, 0xbfb8aa3b           ; -log2(e)")
e("  v_bfe_u32 v6, v0, 2, 2")
e("  v_sub_u32 v1, v2, v6")
e("  v_and_b32 v6, 1, v1")
e("  v_lshlrev_b32 v6, 4, v6")
e("  v_mov_b32 v7, 0xffff")
e("  v_lshlrev_b32 v6, v6, v7")
e("  v_bfe_u32 v102, v1, 1, 1")
e("  v_mul_u32_u24 v102, 0xaaaa, v102")
e("  v_add_u32 v102, 0x4444, v102")
e("  s_mov_b32 s36, 0x00170017")
e("  s_mov_b32 s37, 0x00170017")
e("  s_mov_b32 s38, 0x03600360")
e("  s_mov_b32 s39, 0x03600360")
e("  v_cndmask_b32 v100, 0, v6, s[36:37]")
e("  v_cndmask_b32 v101, 0, v6, s[38:39]")
e("  v_lshrrev_b32 v7, 3, v0")
e("  v_lshl_add_u32 v7, v0, 1, v7")
e("  v_lshlrev_b32 v7, 4, v7")
e(f"  v_add_u32 v7, {L_PART}, v7")
e("  v_bfe_u32 v103, v0, 3, 1")
e("  v_mul_u32_u24 v103, 3, v103")
e("  v_lshrrev_b32 v6, 4, v0")
e("  v_add_u32 v103, v103, v6")
e("  v_bfe_u32 v6, v0, 2, 1")
e("  v_lshl_add_u32 v103, v103, 1, v6")
e(f"  v_mul_u32_u24 v103, {NF*64}, v103")
e("  v_and_b32 v6, 3, v0")
e("  v_lshl_add_u32 v103, v6, 4, v103")
e("  s_lshl_b32 s26, s20, 6")
e(f"  s_mul_i32 s25, s33, {12*NF*64}")
e("  s_add_u32 s25, s25, s26")
e("  v_add_u32 v103, s25, v103")
e(f"  v_add_u32 v104, {12*NF*64}, v103")
for r in range(88, 96, 2):
    e(f"  v_mov_b64 v[{r}:{r+1}], 0")
e("  s_mov_b32 s34, 0x00ff00ff")
e("  s_mov_b32 s35, 0x00ff00ff")
e("  s_mov_b32 s40, -1")
e("  s_mov_b32 s41, 0xffff")
e("  s_waitcnt lgkmcnt(0)")
if XB: bar("S")
bar("P0")
def down(tail):
    parts = [1, 0] if tail else [0]
    seq = [(pt, V) for V in range(4) for pt in parts]
    bar("X1"); stamp(2)
    n = 0
    for pt, V in seq:
        if tail: e(f"  s_mov_b64 exec, {'s[34:35]' if pt else -1}")
        for hi in range(2):
            r = 8 + 32*pt + 8*V + 4*hi
            e(f"  global_load_dwordx4 v[{r}:{r+3}], v{4+hi}, s[12:13] offset:{2304*V-3456+256*pt}"); n += 1
            if n == opts["dsplit"]: bar("X2"); stamp(4)
    e("  ds_read_b32 v105, v154              ; tag")
    is_red()
    bar("H"); stamp(5)
    e("  ds_read_b128 v[108:111], v7")
    e("  ds_read_b128 v[112:115], v7 offset:16")
    e("  s_waitcnt lgkmcnt(1)")
    e("  v_pk_add_f32 v[108:109], v[108:109], v[110:111]")
    e("  s_waitcnt lgkmcnt(0)")
    e("  v_pk_add_f32 v[112:113], v[112:113], v[114:115]")
    e("  v_pk_add_f32 v[108:109], v[108:109], v[112:113]")
    e("  v_add_f32 v108, v108, v109")
    e("  v_cvt_pk_bf16_f32 v108, 0, v108")
    e("  v_mul_f32 v109, s32, v108")
    e("  v_exp_f32 v109, v109")
    e(f"  v_mov_b32_dpp v111, v108 row_ror:8 {DPPX}")
    e("  v_add_f32 v109, 1.0, v109")
    e("  v_rcp_f32 v109, v109")
    e("  s_nop 0")
    e("  v_mul_f32 v109, v108, v109")
    e("  v_cvt_pk_bf16_f32 v109, 0, v109")
    e("  v_mul_f32 v110, v111, v109")
    e("  v_cvt_pk_bf16_f32 v110, v110, v110")
    e("  s_nop 1")
    ands = [(V, p) for V in range(4) for p in range(4)]
    def emit_and(k):
        for _ in range(k):
            if ands:
                V, p = ands.pop(0)
                e(f"  v_and_b32_dpp v{72+4*V+p}, v110, v{100+(p&1)} row_newbcast:{2*V+(p>>1)} {DPPX}")
    emit_and(5)
    for k, (pt, V) in enumerate(seq):
        e(f"  s_waitcnt vmcnt({2*(len(seq)-1-k)})")
        if k == len(seq)-1: stamp(6)
        r = 8 + 32*pt + 8*V
        e(f"  v_smfmac_f32_16x16x64_bf16 v[{88+4*pt}:{91+4*pt}], v[{72+4*V}:{75+4*V}], v[{r}:{r+7}], v102")
        had = len(ands)
        emit_and(2 if tail else 4)
        if had and not ands: e("  s_nop 0")
    if tail:
        e("  s_mov_b32 exec_lo, s34")
        e("  s_movk_i32 exec_hi, 0xff")
        e("  s_nop 3")
        e("  v_mov_b32 v95, v105")
        e("  global_store_dwordx4 v104, v[92:95], s[18:19] sc1")
        e("  s_mov_b64 exec, s[40:41]")
    else:
        e("  s_mov_b64 exec, s[40:41]")
        e("  s_nop 6")
    e("  v_mov_b32 v91, v105")
    e("  global_store_dwordx4 v103, v[88:91], s[18:19] sc1")
    stamp(7)
    e("  s_cbranch_scc1 L_red")
    if want(8):
        e("  s_waitcnt vmcnt(0)"); stamp(8)
    fin()
e("  s_cmp_eq_u32 s3, 7")
e("  s_cbranch_scc1 L_dnt")
down(False)
e("L_dnt:")
down(True)
role[0] = "red"
e("L_w8:")
is_red()
e("  s_cbranch_scc0 L_end")
e("  s_waitcnt lgkmcnt(0)")
if XB: bar("S")
bar("P0"); bar("X1"); bar("X2"); bar("H")
cm("---- reducer: wave w sums the pieces of producers 16w..16w+15 once every 16 B granule carries this launch's tag")
e("L_red:")
e("  s_mov_b64 exec, -1")
e("  ds_read_b32 v9, v154                ; tag")
e("  s_mov_b32 s34, 0x000f000f")
e("  s_mov_b32 s35, 0x000f000f")
e(f"  s_mov_b32 s57, {SPIN}")
e("  s_waitcnt vmcnt(0) lgkmcnt(0)")
bar("Q: this workgroup's own pieces have landed")
stamp(10)
e("L_red_loop:")
e("  s_mov_b64 exec, -1")
e("  global_load_dwordx4 v[12:15], v152, s[18:19] sc1")
e("  s_sub_u32 s57, s57, 1")
e("  s_cselect_b64 s[36:37], -1, 0")
e("  s_waitcnt vmcnt(0)")
e("  v_permlane32_swap_b32 v12, v14")
e("  v_permlane32_swap_b32 v13, v18")
e("  v_add_f32 v16, v12, v14")
e("  v_add_f32 v17, v13, v18")
e("  v_cmp_eq_u32 vcc, v15, v9")
e("  s_nop 0")
e("  v_permlane16_swap_b32 v16, v17")
e("  v_add_f32 v16, v16, v17")
e("  s_or_b64 vcc, vcc, s[36:37]")
e("  s_cmp_eq_u64 vcc, -1")
e(f"  v_add_f32_dpp v16, v16, v16 row_ror:4 {DPPX}")
e("  s_nop 1")
e(f"  v_add_f32_dpp v16, v16, v16 row_ror:8 {DPPX}")
e("  s_mov_b64 exec, s[34:35]")
e("  ds_write_b32 v153, v16")
e("  s_cbranch_scc0 L_red_loop")
if STAMP: e(f"  s_sub_u32 s72, {SPIN}, s57")
stamp(11)
e("  s_waitcnt lgkmcnt(0)")
bar("E")
e("  s_lshl4_add_u32 s52, s51, s3")
e(f"  s_cmp_lg_u32 s52, {opts['ew']*16+8}")
e("  s_cbranch_scc1 L_noep")
e("  s_mov_b64 exec, 1")
e(f"  v_mov_b32 v10, {EOFF:#x}")
e("  global_store_dword v10, v9, s[18:19]")
e("L_noep:")
fin()
role[0] = "rt"
e("L_rt2:")
e("  s_lshl_b32 s25, s3, 2")
e("  v_mul_u32_u24 v41, 3*48, v2")
e("  v_add_u32 v41, s25, v41")
e("  s_mov_b32 s28, 0x01010101")
e("  s_mov_b32 s29, 0x01010101")
cm("prefetch addresses (one dword per 128 B line): w_down rows of this group; unit 8 of gate/up; slow-set columns; partial lines")
e("  s_mul_i32 s27, s3, 14")
e("  s_add_u32 s27, s27, s33")
e(f"  s_mul_i32 s26, s21, {576*1152}")
e("  s_mul_i32 s34, s27, 42")
e("  v_add_u32 v42, s34, v0")
e("  v_min_u32 v42, 5183, v42")
e("  v_mul_u32_u24 v49, 58255, v42")
e("  v_lshrrev_b32 v49, 21, v49          ; item/36")
for it_ in range(5184): assert (it_*58255) >> 21 == it_//36
e("  v_cmp_gt_u32 vcc, 2592, v42")
e("  v_mad_u32_u24 v42, v49, 36, v42")
e("  v_mov_b32 v49, -5184")
e("  v_cndmask_b32 v49, v49, 36, vcc")
e("  v_add_u32 v42, v42, v49")
e("  v_lshl_add_u32 v42, v42, 7, s26")
e("  s_mul_i32 s38, s27, 5")
e("  v_add_u32 v49, s38, v0")
e("  v_min_u32 v49, 575, v49")
e("  v_mul_u32_u24 v50, 7282, v49")
e("  v_lshrrev_b32 v50, 16, v50          ; item/9")
for it_ in range(576): assert (it_*7282) >> 16 == it_//9
e("  v_mul_u32_u24 v51, 9, v50")
e("  v_sub_u32 v51, v49, v51             ; item%9")
e("  v_lshrrev_b32 v52, 4, v50")
e("  v_lshl_add_u32 v50, v52, 7, v50")
e("  v_add_u32 v50, 128, v50")
e("  v_mul_u32_u24 v50, 9216, v50")
e("  v_lshl_add_u32 v50, v51, 7, v50")
e("  s_mul_i32 s39, s21, 1152")
e("  v_add_u32 v50, s39, v50")
e("  v_lshl_add_u32 v55, s27, 2, v0")
e("  v_min_u32 v55, 485, v55")
e("  v_mul_u32_u24 v56, 7282, v55")
e("  v_lshrrev_b32 v56, 16, v56")
e("  v_mul_u32_u24 v56, 63, v56")
e("  v_add_u32 v55, v55, v56             ; 72*piece+pair")
e("  v_lshl_add_u32 v55, v55, 7, s39")
e("  s_mul_i32 s38, s27, 3")
e("  v_add_u32 v49, s38, v3")
e("  v_min_u32 v49, 255, v49")
e("  v_lshrrev_b32 v51, 6, v49")
e("  v_lshlrev_b32 v51, 2, v51")
e("  s_movk_i32 s38, 0x7564")
e("  v_bfe_u32 v51, s38, v51, 4          ; units 4,6,5,7")
e("  v_bfe_u32 v52, v49, 4, 2")
e("  v_mul_u32_u24 v52, 144, v52")
e("  v_lshl_add_u32 v51, v51, 4, v52")
e("  v_and_b32 v49, 15, v49")
e("  v_add_u32 v51, v51, v49")
e("  v_mul_u32_u24 v51, 9216, v51")
e("  s_sub_u32 s38, 3, s21")
e("  s_and_b32 s38, s38, 7")
e("  s_lshl_b32 s41, s38, 7")
e("  s_add_u32 s41, s41, s39")
e("  v_add_u32 v51, s41, v51")
e("  s_cmp_eq_u32 s38, 0")
e("  s_cselect_b32 s41, 1024, 0")
e("  s_cselect_b32 s37, 0x707, 7")
e("  v_add_u32 v52, s41, v51")
e("  v_cmp_eq_u32 vcc, 4, v2")
e("  s_nop 1")
e("  v_cndmask_b32 v50, v50, v51, vcc")
e("  v_cmp_eq_u32 vcc, 5, v2")
e("  s_mov_b32 s36, 0x1f")
e("  s_nop 0")
e("  v_cndmask_b32 v50, v50, v52, vcc")
e("  s_mov_b64 exec, s[36:37]")
e("  s_waitcnt vmcnt(0)")
stamp(2)
e("  global_load_dword v49, v50, s[8:9]")
e("  global_load_dword v51, v50, s[10:11]")
e("  s_mov_b64 exec, -1")
for d in range(4):
    for i in range(3):
        c = "0" if d == 0 else f"v{32+i}"
        e(f"  v_dot2_f32_bf16 v{32+i}, v{16+4*i+d}, v{8+d}, {c}")
e("  s_nop 0")
for dp in ["quad_perm:[1,0,3,2]", "quad_perm:[2,3,0,1]", "row_half_mirror"]:
    for i in range(3):
        e(f"  v_add_f32_dpp v{32+i}, v{32+i}, v{32+i} {dp} {DPPX}")
e("  s_mov_b64 exec, s[28:29]")
e("  ds_write2_b32 v41, v32, v33 offset0:0 offset1:12")
e("  ds_write_b32 v41, v34 offset:96")
e("  s_mov_b64 exec, 15")
e("  s_waitcnt lgkmcnt(0)")
bar("A: row sums in LDS")
stamp(3)
bar("B: key store issued")
if opts["tp"]:
    e("  global_load_dword v57, v55, s[18:19] sc1")
    e("  s_waitcnt vmcnt(1)")
    e("  s_cmp_eq_u32 s21, 0")
    e("  s_cbranch_scc1 L_tp")
    e("  s_waitcnt vmcnt(0)")
    e("L_tp:")
    stamp(9)
else:
    if opts["nw0"]:
        e("  s_cmp_eq_u32 s21, 0")
        e("  s_cbranch_scc1 L_nw0")
    e("  s_waitcnt vmcnt(0)")
    if opts["nw0"]: e("L_nw0:")
    stamp(9)
    e("  global_load_dword v57, v55, s[18:19] sc1")
e("  s_mov_b32 exec_lo, -1")
e("  s_movk_i32 exec_hi, 0x3ff")
e("  global_load_dword v48, v42, s[12:13]")
cm("---- residual copy from the registers: out = x + x*0 for every row but the routed one")
e("  s_mov_b64 exec, -1")
e("  s_add_u32 s24, s33, 1")
e("  s_mul_i32 s24, s24, 4668")
e("  s_lshr_b32 s24, s24, 8")
e("  s_and_b32 s25, s20, 255")
e("  s_sub_u32 s24, s24, s25             ; rows this router stores (the next one starts there)")
e("  s_cmp_eq_u32 s33, 13")
e("  s_cselect_b32 s24, 19, s24")
e("  s_mov_b32 s25, 0x0000ffff")
e("  s_cmp_eq_u32 s24, 19")
e("  s_cselect_b32 s24, 0x00ffffff, s25")
e("  v_mul_u32_u24 v34, 3, v2")
e(f"  v_mov_b32 v35, {L_WIN}")
e("  s_mov_b32 s30, 0xffff0000")
e("  s_mov_b32 s31, 0x07060302")
def conv(lo, hi):
    for d in range(lo, hi):
        e(f"  v_lshlrev_b32 v32, 16, v{d}")
        e(f"  v_and_b32 v33, s30, v{d}")
        e("  v_fma_f32 v32, v32, 0, v32")
        e("  v_fma_f32 v33, v33, 0, v33")
        e(f"  v_perm_b32 v{d}, v33, v32, s31")
e("  s_waitcnt vmcnt(0)")
stamp(8)
bar("C: this router's reads are done")
if opts["rcv"] == 1: conv(16, 28)
bar("D: routed row known")
if opts["rcd"]: e(f"  s_sleep {opts['rcd']}")
stamp(4)
e("  ds_read_b32 v35, v35")
if opts["rcv"] >= 2: conv(16, 28)
e("  s_waitcnt lgkmcnt(0)")
e("  v_sub_u32 v35, v35, v34")
if opts["rcv"] == 4: bar("F: the rows leave together")
for i in range(3):
    e(f"  v_cmp_ne_u32 vcc, {i}, v35")
    e(f"  s_and_b32 vcc_hi, vcc_hi, s{24 if i == 0 else 25}")
    e("  s_mov_b64 exec, vcc")
    if not opts["nocopy"]: e(f"  global_store_dwordx4 v5, v[{16+4*i}:{19+4*i}], s[14:15] offset:{1152*i} sc1")
    if i < 2: e("  s_mov_b64 exec, -1")
stamp(6)
if want(7):
    e("  s_waitcnt vmcnt(0)"); stamp(7)
fin()
e("L_w9:")
e(f"  s_cmp_ge_u32 s2, {NWG}")
e("  s_cbranch_scc1 L_end")
e(f"  v_mov_b32 v20, {EOFF:#x}")
e("  s_setprio 3")
e(f"  s_mov_b32 s40, {LCG_A}")
e("  s_waitcnt lgkmcnt(0)")
e("  global_load_dword v20, v20, s[18:19] sc1   ; epoch")
key_addrs()
e(f"  s_cmp_ge_u32 s2, {NR}")
e("  s_cbranch_scc1 L_fpoll")
role[0] = "rw9"
cm("---- router wave 9: key = orderable(bf16 r)<<16 | (2047-row), max over the 19 rows")
first_row()
e("  s_mul_i32 s22, s21, 14")
e("  s_add_u32 s22, s22, s33")
e("  s_lshl_b32 s22, s22, 6")
e(f"  s_add_u32 s22, s22, {KOFF:#x}")
e("  v_mov_b32 v6, s22")
e("  global_load_dword v30, v6, s[18:19] sc1")
e("  v_and_b32 v42, 31, v0")
e("  v_mul_u32_u24 v43, 48, v42")
e("  v_cmp_gt_u32 s[46:47], 19, v42")
e("  s_sub_u32 s22, 2047, s20")
e("  v_sub_u32 v42, s22, v42")
e("  v_mov_b32 v34, 0")
e("  s_brev_b32 s41, 1")
e("  s_waitcnt vmcnt(1)")
e("  v_mul_lo_u32 v20, v20, s40")
e(f"  v_add_u32 v35, {LCG_C}, v20        ; tag")
e("  s_mov_b64 exec, s[46:47]")
bar("A")
stamp(3)
e("  ds_read_b128 v[36:39], v43")
e("  ds_read_b128 v[48:51], v43 offset:16")
e("  ds_read_b32 v52, v43 offset:32")
e("  s_waitcnt lgkmcnt(2)")
e("  v_pk_add_f32 v[36:37], v[36:37], v[38:39]")
e("  s_waitcnt lgkmcnt(1)")
e("  v_pk_add_f32 v[48:49], v[48:49], v[50:51]")
e("  v_pk_add_f32 v[36:37], v[36:37], v[48:49]")
e("  v_add_f32 v36, v36, v37")
e("  s_waitcnt lgkmcnt(0)")
e("  v_add_f32 v36, v36, v52")
e("  v_cmp_o_f32 vcc, v36, v36")
e("  v_cvt_pk_bf16_f32 v36, 0, v36       ; bf16(r)<<16")
e("  v_ashrrev_i32 v37, 31, v36")
e("  v_lshl_or_b32 v37, v37, 16, s41")
e("  v_xor_b32 v36, v36, v37")
e("  v_cndmask_b32 v36, 0, v36, vcc")
e("  v_or_b32 v34, v36, v42")
e("  s_mov_b64 exec, -1")
for k_, d in enumerate(["quad_perm:[1,0,3,2] row_mask:0xf", "quad_perm:[2,3,0,1] row_mask:0xf", "row_half_mirror row_mask:0xf",
          "row_mirror row_mask:0xf", "row_bcast:15 row_mask:0xa"]):
    e("  s_nop 0" if k_ == 0 else "  s_nop 1")
    e(f"  v_max_u32_dpp v34, v34, v34 {d} bank_mask:0xf")
e("  s_mov_b32 exec_lo, s41")
e("  s_mov_b32 exec_hi, 0")
e("  global_store_dwordx2 v6, v[34:35], s[18:19] sc1")
stamp(4)
if opts["ta"]:
    e("  s_cmp_eq_u32 s21, 0")
    e("  s_cbranch_scc1 L_ta")
    e("  s_waitcnt vmcnt(0)")
    e("L_ta:")
bar("B")
e("  s_mov_b64 exec, -1")
bar("C")
key_wait("rp", 35)
e("  s_sub_u32 s25, s25, s20")
e("  v_mov_b32 v8, s25")
e("  ds_write_b32 v9, v8")
e("  s_waitcnt lgkmcnt(0)")
bar("D")
fin()
role[0] = "fp"
cm("---- FFN wave 9: wait for all 112 keys, fetch x[idx] into LDS; in reducing WGs it also finishes the outputs")
e("L_fpoll:")
e("  v_lshlrev_b32 v7, 4, v0")
e("  s_mov_b32 m0, 0")
roles()
e("  s_mul_i32 s28, s51, 10923")
e("  s_lshr_b32 s28, s28, 16             ; block = j/6")
for j_ in range(64): assert (j_*10923) >> 16 == j_//6
e("  s_mul_i32 s29, s28, 6")
e("  s_sub_u32 s29, s51, s29")
e("  s_lshr_b32 s30, s29, 1              ; qd")
e("  s_and_b32 s29, s29, 1")
e("  s_lshl_b32 s27, s28, 7")
e("  s_lshl_b32 s29, s29, 6")
e("  s_add_u32 s27, s27, s29")
e("  s_mul_i32 s29, s30, 6")
e("  s_add_u32 s27, s27, s29")
e("  s_movk_i32 s48, 0x7777")
e("  s_cmp_eq_u32 s30, 2")
e("  s_cselect_b32 s48, 0x3333, s48")
e("  s_mov_b32 s49, 0")
e("  v_and_b32 v49, 15, v0")
e("  v_lshrrev_b32 v50, 2, v49")
e("  v_lshlrev_b32 v50, 4, v50")
e("  v_and_b32 v51, 3, v49")
e("  v_lshl_add_u32 v50, v51, 1, v50")
e("  v_add_u32 v50, s27, v50")
e("  v_mul_u32_u24 v54, 48, v49")
e(f"  v_add_u32 v54, {L_RED}, v54")
if XB: bar("S")
e("  s_waitcnt vmcnt(0)")
e("  v_mul_lo_u32 v20, v20, s40")
e(f"  v_add_u32 v20, {LCG_C}, v20        ; tag")
e("  ds_write_b32 v9, v20")
e("  s_waitcnt lgkmcnt(0)")
bar("P0")
stamp(1)
key_wait("fp", 20)
e("  s_mul_i32 s25, s25, 1152")
e("  v_add_u32 v5, s25, v7")
e("  global_load_lds_dwordx4 v5, s[4:5]")
e("  s_mov_b64 exec, 0xff")
e("  global_load_lds_dwordx4 v5, s[4:5] offset:1024")
bar("X1")
is_red()
e("  s_waitcnt vmcnt(0)")
stamp(3)
bar("X2")
e("  s_cbranch_scc1 L_fin")
if STAMP or ENC: bar("H (diagnostic)")
fin()
e("L_fin:")
e("  s_setprio 0")
bar("H")
e("  s_mov_b64 exec, s[48:49]")
e("  ds_read_u16 v51, v50")
e("  s_and_b32 s27, s26, 0xffff0000")
e("  s_ashr_i32 s28, s27, 31")
e("  s_not_b32 s28, s28")
e("  s_or_b32 s28, s28, 0x80000000")
e("  s_xor_b32 s27, s27, s28")
e("  s_and_b32 s27, s27, 0xffff0000")
bar("Q")
e("  v_add_u32 v50, s25, v50")
e("  v_mov_b32 v52, 0xbfb8aa3b")
e("  v_mul_f32 v52, s27, v52")
e("  v_exp_f32 v52, v52")
e("  s_nop 0")
e("  v_add_f32 v52, 1.0, v52")
e("  v_rcp_f32 v52, v52")
e("  s_nop 0")
e("  v_cvt_pk_bf16_f32 v52, 0, v52")
e("  s_waitcnt lgkmcnt(0)")
if opts["ps"]: e("  global_store_short v50, v51, s[14:15]")
e("  v_lshlrev_b32 v51, 16, v51")
e("  v_fma_f32 v51, v51, 0, v51          ; x + x*0")
if opts["ps"]: e("  s_waitcnt vmcnt(0)")
bar("E: nine sums per column in LDS")
stamp(7)
e("  ds_read_b128 v[32:35], v54")
e("  ds_read_b128 v[36:39], v54 offset:16")
e("  ds_read_b32 v48, v54 offset:32")
e("  s_waitcnt lgkmcnt(2)")
e("  v_pk_add_f32 v[32:33], v[32:33], v[34:35]")
e("  s_waitcnt lgkmcnt(1)")
e("  v_pk_add_f32 v[36:37], v[36:37], v[38:39]")
e("  v_pk_add_f32 v[32:33], v[32:33], v[36:37]")
e("  v_add_f32 v32, v32, v33")
e("  s_waitcnt lgkmcnt(0)")
e("  v_add_f32 v32, v32, v48")
e("  v_cvt_pk_bf16_f32 v32, 0, v32       ; y")
e("  v_mul_f32 v32, v32, v52")
e("  v_cvt_pk_bf16_f32 v32, 0, v32       ; y*sigmoid(r)")
e("  v_add_f32 v32, v51, v32")
e("  v_cvt_pk_bf16_f32 v32, v32, v32")
e("  global_store_short v50, v32, s[14:15]")
stamp(8)
if ENC:
    e("L_flush:")
    e("  s_cmp_eq_u32 s78, 0")
    e("  s_cbranch_scc1 L_end")
    if opts["encwg"] >= 0:
        e(f"  s_cmp_lg_u32 s2, {opts['encwg']}")
        e("  s_cbranch_scc1 L_end")
    e("  s_add_u32 s78, s78, 3000")
    e("L_spin:")
    e("  s_memrealtime s[58:59]")
    e("  s_waitcnt lgkmcnt(0)")
    e("  s_sub_u32 s58, s58, s78")
    e("  s_cmp_lt_i32 s58, 0")
    e("  s_cbranch_scc1 L_spin")
if STAMP:
    e("L_flush:")
    e("  s_mov_b64 exec, -1")
    e("  s_sleep 40")
    e("  s_mov_b32 s60, s76")
    e("  s_mul_i32 s56, s2, 10")
    e("  s_add_u32 s56, s56, s3")
    e("  s_lshl_b32 s56, s56, 6")
    e("  s_add_u32 s56, s56, 0x100000")
    e("  s_getreg_b32 s75, hwreg(HW_REG_XCC_ID)")
    e("  s_waitcnt vmcnt(0)")
    e("  v_mov_b32 v120, s56")
    for i in range(16): e(f"  v_mov_b32 v{100+i}, s{60+i}")
    e("  s_mov_b64 exec, 1")
    for i in range(4): e(f"  global_store_dwordx4 v120, v[{100+4*i}:{103+4*i}], s[18:19] offset:{16*i}")
e("L_end:")
e("  s_endpgm")
e("L_codeend:")
e('.section .rodata,"a"')
e(".p2align 6")
e(f".amdhsa_kernel {NAME}_kernel")
e(f"  .amdhsa_next_free_vgpr {NVG}")
e("  .amdhsa_next_free_sgpr 80")
e(f"  .amdhsa_accum_offset {NVG}")
e("  .amdhsa_group_segment_fixed_size 0")
e("  .amdhsa_kernarg_size 64")
e("  .amdhsa_user_sgpr_count 2")
e("  .amdhsa_user_sgpr_kernarg_segment_ptr 1")
e("  .amdhsa_system_sgpr_workgroup_id_x 1")
e("  .amdhsa_float_denorm_mode_32 3")
e(".end_amdhsa_kernel")
print("\n".join(out))
```
